```python
import torch

def _softmax(x, axis=-1):
    return torch.softmax(x, dim=axis)

def _gelu(x):
    return torch.nn.functional.gelu(x, approximate='tanh')

def _silu(x):
    return torch.nn.functional.silu(x)

def _sigmoid(x):
    return torch.sigmoid(x)

def _layernorm(x, axis=-1, eps=1e-05):
    m = x.mean(dim=axis, keepdim=True)
    v = x.var(dim=axis, keepdim=True, unbiased=False)
    return (x - m) / torch.sqrt(v + eps)

def _scatter_add(tgt, idx, src, axis=0):
    return tgt.clone().index_add_(axis, idx, src)

def _segment_sum(src, seg, n):
    out = torch.zeros((n,) + src.shape[1:], dtype=src.dtype)
    return out.index_add_(0, seg, src)

def _pad(x, pw):
    flat = tuple((v for pair in reversed(pw) for v in pair))
    return torch.nn.functional.pad(x, flat)
kernel_name = 'adaLN_cond__memory_aug_recurrent_mem_tr__dense_activation_squared_relu__prompt'

def setup_inputs():

    _w = lambda a: (lambda t: t.to(torch.bfloat16) if t.is_floating_point() else t)(torch.as_tensor(a))

    def _A_setup():
        B, S, Dm = (1, 2048, 640)
        H, Dh = (32, 192)
        M, seg = (8, 32)
        seg = min(seg, S)
        S = S // seg * seg
        return {'x': _w((lambda *s: torch.randn(*s, dtype=torch.bfloat16) * 0.05)(B, S, Dm)), 'mem0': _w((lambda *s: torch.randn(*s, dtype=torch.bfloat16) * 0.4)(B, M, Dm)), 'Wq': _w((lambda *s: torch.randn(*s, dtype=torch.bfloat16) * 3.2)(Dm, H, Dh) * Dm ** (-0.5)), 'Wk': _w((lambda *s: torch.randn(*s, dtype=torch.bfloat16) * 3.2)(Dm, H, Dh) * Dm ** (-0.5)), 'Wv': _w((lambda *s: torch.randn(*s, dtype=torch.bfloat16) * 0.4)(Dm, H, Dh) * Dm ** (-0.5)), 'Wo': _w((lambda *s: torch.randn(*s, dtype=torch.bfloat16) * 0.4)(H, Dh, Dm) * (H * Dh) ** (-0.5)), 'seg_len': seg}
    _A_in = _A_setup()

    def _B_setup():
        B, S, D, F = (1, 2048, 640, 1536)
        return {'x': _w((lambda *s: torch.randn(*s, dtype=torch.bfloat16) * 0.05)(B, S, D)), 'w1': _w((lambda *s: torch.randn(*s, dtype=torch.bfloat16) * 0.05)(D, F)), 'b1': _w((lambda *s: torch.randn(*s, dtype=torch.bfloat16) * 0.4)(F)), 'w2': _w((lambda *s: torch.randn(*s, dtype=torch.bfloat16) * 0.05)(F, D)), 'b2': _w((lambda *s: torch.randn(*s, dtype=torch.bfloat16) * 3.2)(D))}
    _B_in = _B_setup()
    return {'A_x': _A_in['x'], 'A_mem0': _A_in['mem0'], 'A_Wq': _A_in['Wq'], 'A_Wk': _A_in['Wk'], 'A_Wv': _A_in['Wv'], 'A_Wo': _A_in['Wo'], 'A_seg_len': _A_in['seg_len'], 'B_x': _B_in['x'], 'B_w1': _B_in['w1'], 'B_b1': _B_in['b1'], 'B_w2': _B_in['w2'], 'B_b2': _B_in['b2'], 'c': _w((lambda *s: torch.randn(*s, dtype=torch.bfloat16) * 0.1)(1, 640) * 8.0), 'w_mod': _w((lambda *s: torch.randn(*s, dtype=torch.bfloat16) * 0.1)(640, 6 * 640) * 640 ** (-0.5) * 8.0)}

def reference(A_x, A_mem0, A_Wq, A_Wk, A_Wv, A_Wo, A_seg_len, B_x, B_w1, B_b1, B_w2, B_b2, c, w_mod):

    def _A_ref(x, mem0, Wq, Wk, Wv, Wo, seg_len):
        B, S, Dm = x.shape
        H, Dh = (Wq.shape[1], Wq.shape[2])
        M = mem0.shape[1]
        scale = Dh ** (-0.5)
        n_seg = S // seg_len
        L = M + seg_len
        idx = torch.arange(L)
        mask = (idx[:, None] < M) | (idx[:, None] >= idx[None, :])
        mem = mem0
        outs = []
        for s in range(n_seg):
            xs = x[:, s * seg_len:(s + 1) * seg_len, :].clone()
            h = torch.concatenate([mem, xs], axis=1)
            q = torch.einsum('btd,dhe->bhte', h, Wq)
            k = torch.einsum('btd,dhe->bhte', h, Wk)
            v = torch.einsum('btd,dhe->bhte', h, Wv)
            scores = torch.einsum('bhqe,bhke->bhqk', q, k) * scale
            scores = torch.where(mask[None, None], scores, -1000000000.0)
            p = _softmax(scores, axis=-1)
            o = torch.einsum('bhqk,bhke->bhqe', p, v)
            o = torch.einsum('bhte,hed->btd', o, Wo)
            mem = o[:, :M, :].clone()
            outs.append(o[:, M:, :])
        return torch.concatenate(outs, axis=1)

    def _B_ref(x, w1, b1, w2, b2):
        h = torch.einsum('bsd,df->bsf', x, w1) + b1
        zero = torch.zeros_like(h)
        r = torch.where(h > zero, h, zero)
        h = r * r
        out = torch.einsum('bsf,fd->bsd', h, w2) + b2
        return out
    x = A_x
    mod = (_silu(c) @ w_mod).reshape(c.shape[0], 6, 1, -1)
    sa, ca, ga, sb, cb, gb = (mod[:, 0].clone(), mod[:, 1].clone(), mod[:, 2].clone(), mod[:, 3].clone(), mod[:, 4].clone(), mod[:, 5].clone())
    h = _layernorm(x, axis=-1) * (1 + ca) + sa
    x = x + ga * _A_ref(h, A_mem0, A_Wq, A_Wk, A_Wv, A_Wo, A_seg_len)
    h = _layernorm(x, axis=-1) * (1 + cb) + sb
    x = x + gb * _B_ref(h, B_w1, B_b1, B_w2, B_b2)
    return x
```

```python
class Asm:
    def __init__(self):
        self.lines = []
        self.nlab = 0
    def __call__(self, s, *a):
        if a: s = s % a
        for l in s.split("\n"):
            self.lines.append("    " + l.strip() if l.strip() and not l.strip().endswith(":") else l.strip())
    def label(self, base="L"):
        self.nlab += 1
        return "%s_%d" % (base, self.nlab)
    def put(self, lab):
        self.lines.append(lab + ":")
    def raw(self, s):
        self.lines.append(s)
    def text(self):
        return "\n".join(self.lines) + "\n"

def kernel_begin(a, name):
    a.raw(".text")
    a.raw(".globl %s" % name)
    a.raw(".p2align 8")
    a.raw(".type %s,@function" % name)
    a.raw("%s:" % name)

def kernel_desc(a, name, vgpr, sgpr=102, accum=None):
    if accum is None:
        accum = min(256, (vgpr + 3) // 4 * 4)
    a.raw('.section .rodata,"a"')
    a.raw(".p2align 6")
    a.raw(".amdhsa_kernel %s" % name)
    a.raw("  .amdhsa_next_free_vgpr %d" % vgpr)
    a.raw("  .amdhsa_next_free_sgpr %d" % sgpr)
    a.raw("  .amdhsa_accum_offset %d" % accum)
    a.raw("  .amdhsa_group_segment_fixed_size 0")
    a.raw("  .amdhsa_kernarg_size 136")
    a.raw("  .amdhsa_user_sgpr_count 2")
    a.raw("  .amdhsa_user_sgpr_kernarg_segment_ptr 1")
    a.raw("  .amdhsa_system_sgpr_workgroup_id_x 1")
    a.raw(".end_amdhsa_kernel")
    a.raw(".text")
```

```python
import sys
from ag import *

NAME = "adaLN_cond__memory_aug_recurrent_mem_tr__dense_activation_squared_relu__prompt"

KA = dict(x=0, mem0=8, Wq=16, Wk=24, Wv=32, Wo=40, seg=48, Bx=56, w1=64, b1=72, w2=80, b2=88, c=96, wmod=104, out=112, dbg=120, ws=128)

WS_MOD = 0x0
WS_MEM = 0x10000
WS_P   = 0x100000
WS_KM  = 0x280000
WS_X1  = 0x900000
WS_PP  = 0xE00000
WS_F   = 0x1300000
WS_H   = 0x1900000
WS_H2  = 0x1C00000
WS_Q   = 0x2000000
WS_K   = 0x3800000
WS_VO  = 0x5000000
WS_U   = 0x7000000
WS_Y   = 0xD000000
WS_FLG = 0x8000
WS_TKT = 0x7F00
F_U, F_K, F_Q, F_PA, F_PO, F_L2, F_L1, F_F1 = [WS_FLG + x for x in (0, 1024, 2048, 4096, 8192, 12288, 12544, 13312)]
class M: MEGA = False; TS = False
def tstamp(a, idx_expr, atomic=None):
    if not M.TS: return
    a("s_memrealtime s[86:87]"); a("s_waitcnt lgkmcnt(0)")
    a("v_mov_b32 v254, s86"); a("s_mov_b64 s[84:85], exec"); a("s_mov_b64 exec, 1")
    if atomic: a("buffer_atomic_umax v254, off, s[80:83], %s" % idx_expr)
    else: a("buffer_store_dword v254, off, s[80:83], %s" % idx_expr)
    a("s_mov_b64 exec, s[84:85]")
def ST(): return " sc1" if M.MEGA else ""
def kbegin(a, K, nwg):
    if M.MEGA: a.put(K + "_entry"); return
    kernel_begin(a, K)
    a("s_cmp_ge_u32 s2, %d" % nwg); a("s_cbranch_scc1 %s_end" % K)
def kend(a, K):
    if M.MEGA: a("s_branch task_done"); return
    a.put(K + "_end"); a("s_endpgm")
WS_SIZE = 0x10000000
SRD3 = 0x00020000

def srd_from_ptr(a, sd, sp, nbytes, add=None):
    if add is None:
        a("s_mov_b32 s%d, s%d" % (sd, sp))
        a("s_mov_b32 s%d, s%d" % (sd + 1, sp + 1))
    else:
        a("s_add_u32 s%d, s%d, %s" % (sd, sp, add))
        a("s_addc_u32 s%d, s%d, 0" % (sd + 1, sp + 1))
    a("s_mov_b32 s%d, %s" % (sd + 2, hex(nbytes) if isinstance(nbytes, int) else nbytes))
    a("s_mov_b32 s%d, 0x00020000" % (sd + 3))

def wave_sum(a, v, tmp, vaddr, n=1):
    for m in (1, 2, 4, 8, 16, 32):
        a("v_xor_b32 v%d, %d, v%d" % (tmp[n], m * 4, vaddr))
        for i in range(n):
            a("ds_bpermute_b32 v%d, v%d, v%d" % (tmp[i], tmp[n], v[i]))
        a("s_waitcnt lgkmcnt(0)")
        for i in range(n):
            a("v_add_f32 v%d, v%d, v%d" % (v[i], v[i], tmp[i]))

def gen_prep(a, emb=False):
    K = "prep_kernel"
    NMOD = 120
    NCLR = 8 if emb else 40
    if not emb:
        kernel_begin(a, K)
        a("s_cmp_ge_u32 s2, %d" % (NMOD + NCLR))
        a("s_cbranch_scc1 prep_end")
    a("s_load_dwordx2 s[4:5], s[0:1], %d" % KA["ws"])
    a("s_load_dwordx4 s[8:11], s[0:1], %d" % KA["c"])
    a("s_load_dwordx2 s[12:13], s[0:1], %d" % KA["mem0"])
    a("s_waitcnt lgkmcnt(0)")
    a("s_cmp_ge_u32 s2, %d" % NMOD)
    a("s_cbranch_scc1 prep_clear")
    srd_from_ptr(a, 16, 8, 1280)
    srd_from_ptr(a, 20, 10, 640 * 7680)
    srd_from_ptr(a, 24, 4, 16384)
    for i in range(3):
        a("v_add_u32 v1, %d, v0" % (256 * i))
        a("v_lshlrev_b32 v2, 1, v1")
        a("buffer_load_ushort v%d, v2, s[16:19], 0 offen" % (3 + i))
    a("s_waitcnt vmcnt(0)")
    for i in range(3):
        v = 3 + i
        a("v_lshlrev_b32 v%d, 16, v%d" % (v, v))
        a("v_mul_f32 v6, 0xbfb8aa3b, v%d" % v)
        a("v_exp_f32 v6, v6")
        a("s_nop 0")
        a("v_add_f32 v6, 1.0, v6")
        a("v_rcp_f32 v6, v6")
        a("s_nop 0")
        a("v_mul_f32 v6, v%d, v6" % v)
        a("v_cvt_pk_bf16_f32 v6, v6, v6")
        a("v_lshlrev_b32 v6, 16, v6")
        a("v_add_u32 v1, %d, v0" % (256 * i))
        a("v_lshlrev_b32 v2, 2, v1")
        a("ds_write_b32 v2, v6")
    a("s_waitcnt lgkmcnt(0)")
    a("s_barrier")
    a("v_and_b32 v1, 15, v0")
    a("v_lshrrev_b32 v2, 4, v0")
    a("v_mul_u32_u24 v3, 7680, v2")
    a("v_lshlrev_b32 v4, 2, v1")
    a("v_add_u32 v3, v3, v4")
    a("s_lshl_b32 s3, s2, 6")
    a("v_add_u32 v3, s3, v3")
    a("v_lshlrev_b32 v5, 2, v2")
    a("v_mov_b32 v6, 0")
    a("v_mov_b32 v7, 0")
    for blk in range(5):
        for i in range(8):
            ii = blk * 8 + i
            a("s_mov_b32 s14, %d" % (ii * 16 * 7680))
            a("buffer_load_dword v%d, v3, s[20:23], s14 offen" % (16 + i))
            a("ds_read_b32 v%d, v5 offset:%d" % (24 + i, ii * 64))
        a("s_waitcnt vmcnt(0) lgkmcnt(0)")
        for i in range(8):
            a("v_lshlrev_b32 v8, 16, v%d" % (16 + i))
            a("v_and_b32 v9, 0xffff0000, v%d" % (16 + i))
            a("v_fmac_f32 v6, v8, v%d" % (24 + i))
            a("v_fmac_f32 v7, v9, v%d" % (24 + i))
    a("s_barrier")
    a("v_lshlrev_b32 v8, 7, v2")
    a("v_lshlrev_b32 v9, 3, v1")
    a("v_add_u32 v8, v8, v9")
    a("ds_write_b64 v8, v[6:7] offset:4096")
    a("s_waitcnt lgkmcnt(0)")
    a("s_barrier")
    a("v_cmp_gt_u32 vcc, 32, v0")
    a("s_and_saveexec_b64 s[14:15], vcc")
    a("s_cbranch_execz prep_end")
    a("v_lshlrev_b32 v8, 2, v0")
    for i in range(16):
        a("ds_read_b32 v%d, v8 offset:%d" % (16 + i, 4096 + i * 128))
    a("s_waitcnt lgkmcnt(0)")
    for st in (8, 4, 2, 1):
        for i in range(st):
            a("v_add_f32 v%d, v%d, v%d" % (16 + i, 16 + i, 16 + i + st))
    a("v_cvt_pk_bf16_f32 v16, v16, v16")
    a("v_lshlrev_b32 v16, 16, v16")
    a("s_lshl_b32 s3, s2, 7")
    a("v_add_u32 v8, s3, v8")
    a("buffer_store_dword v16, v8, s[24:27], 0 offen")
    a("s_branch prep_end")
    a.put("prep_clear")
    c0 = WS_MEM + 10240
    csz = WS_P + 65 * 20480 - c0
    srd_from_ptr(a, 16, 4, csz, add=hex(c0))
    a("s_sub_u32 s3, s2, %d" % NMOD)
    a("s_lshl_b32 s14, s3, 8")
    a("v_add_u32 v1, s14, v0")
    a("v_lshlrev_b32 v1, 4, v1")
    for r in range(4, 8):
        a("v_mov_b32 v%d, -1" % r)
    nch = (csz // 16 + NCLR * 256 - 1) // (NCLR * 256)
    for i in range(nch):
        a("s_mov_b32 s14, %d" % (i * NCLR * 256 * 16))
        a("buffer_store_dwordx4 v[4:7], v1, s[16:19], s14 offen")
    a("s_cmp_lg_u32 s3, 1")
    a("s_cbranch_scc1 prep_nf")
    srd_from_ptr(a, 28, 4, 0x10000)
    a("v_lshlrev_b32 v1, 4, v0")
    for i in range(8):
        a("s_mov_b32 s14, %d" % (WS_FLG + i * 4096))
        a("buffer_store_dwordx4 v[4:7], v1, s[28:31], s14 offen")
    for r in range(12, 16): a("v_mov_b32 v%d, 0" % r)
    a("v_cmp_gt_u32 vcc, 16, v0"); a("s_and_saveexec_b64 s[14:15], vcc"); a("s_cbranch_execz prep_end")
    a("s_mov_b32 s16, %d" % WS_TKT)
    a("buffer_store_dwordx4 v[12:15], v1, s[28:31], s16 offen")
    a("s_branch prep_end")
    a.put("prep_nf")
    a("s_cmp_lg_u32 s3, 0")
    a("s_cbranch_scc1 prep_end")
    srd_from_ptr(a, 20, 12, 10240)
    srd_from_ptr(a, 24, 4, 10240, add=hex(WS_MEM))
    for i in range(3):
        a("v_add_u32 v1, %d, v0" % (256 * i))
        a("v_mul_u32_u24 v2, 0x334, v1")
        a("v_lshrrev_b32 v2, 16, v2")
        a("v_mul_u32_u24 v3, 80, v2")
        a("v_sub_u32 v3, v1, v3")
        a("v_lshlrev_b32 v8, 4, v1")
        a("buffer_load_dwordx4 v[12:15], v8, s[20:23], 0 offen")
        a("v_lshlrev_b32 v9, 7, v3")
        a("v_lshlrev_b32 v10, 4, v2")
        a("v_add_u32 v9, v9, v10")
        a("v_mov_b32 v10, 0x7fffff00")
        a("v_cmp_gt_u32 vcc, 640, v1")
        a("s_nop 1")
        a("v_cndmask_b32 v9, v10, v9, vcc")
        a("s_waitcnt vmcnt(0)")
        a("buffer_store_dwordx4 v[12:15], v9, s[24:27], 0 offen")
        a("s_nop 1")
    a.put("prep_end")
    a("s_endpgm")
    return K, 64

def gen_ln_body(a, pfx, src_f32, s_src, s_ws, dst_off, shift_i, scale_i, wg_sgpr):
    a("v_and_b32 v1, 63, v0")
    a("v_lshrrev_b32 v2, 6, v0")
    a("s_lshl_b32 s3, s%d, 2" % wg_sgpr)
    a("v_add_u32 v2, s3, v2")
    a("v_lshlrev_b32 v3, 2, v1")
    if src_f32:
        a("v_mul_u32_u24 v4, 2560, v2")
        a("v_lshlrev_b32 v5, 3, v1")
        a("v_add_u32 v4, v4, v5")
        for j in range(5):
            a("buffer_load_dwordx2 v[%d:%d], v4, s[%d:%d], 0 offen offset:%d" % (10 + 2 * j, 11 + 2 * j, s_src, s_src + 3, j * 512))
    else:
        a("v_mul_u32_u24 v4, 1280, v2")
        a("v_add_u32 v4, v4, v3")
        for j in range(5):
            a("buffer_load_dword v%d, v4, s[%d:%d], 0 offen offset:%d" % (20 + j, s_src, s_src + 3, j * 256))
    a("v_lshlrev_b32 v5, 3, v1")
    for j in range(5):
        a("s_mov_b32 s14, %d" % (WS_MOD + scale_i * 2560 + j * 512))
        a("buffer_load_dwordx2 v[%d:%d], v5, s[%d:%d], s14 offen" % (30 + 2 * j, 31 + 2 * j, s_ws, s_ws + 3))
        a("s_mov_b32 s14, %d" % (WS_MOD + shift_i * 2560 + j * 512))
        a("buffer_load_dwordx2 v[%d:%d], v5, s[%d:%d], s14 offen" % (40 + 2 * j, 41 + 2 * j, s_ws, s_ws + 3))
    a("s_waitcnt vmcnt(0)")
    if not src_f32:
        for j in range(5):
            a("v_lshlrev_b32 v%d, 16, v%d" % (10 + 2 * j, 20 + j))
            a("v_and_b32 v%d, 0xffff0000, v%d" % (11 + 2 * j, 20 + j))
    a("v_add_f32 v6, v10, v11")
    for j in range(2, 10):
        a("v_add_f32 v6, v6, v%d" % (10 + j))
    wave_sum(a, [6], [7, 8], 3)
    a("v_mul_f32 v6, 0x3acccccd, v6")
    for j in range(10):
        a("v_sub_f32 v%d, v%d, v6" % (10 + j, 10 + j))
    a("v_mul_f32 v6, v10, v10")
    for j in range(1, 10):
        a("v_fmac_f32 v6, v%d, v%d" % (10 + j, 10 + j))
    wave_sum(a, [6], [7, 8], 3)
    a("v_mov_b32 v7, 0x3727c5ac")
    a("v_fmac_f32 v7, 0x3acccccd, v6")
    a("v_rsq_f32 v7, v7")
    a("s_nop 0")
    for j in range(10):
        a("v_mul_f32 v%d, v%d, v7" % (10 + j, 10 + j))
        a("v_add_f32 v%d, 1.0, v%d" % (30 + j, 30 + j))
        a("v_fma_f32 v%d, v%d, v%d, v%d" % (10 + j, 10 + j, 30 + j, 40 + j))
    a("v_lshrrev_b32 v4, 6, v2"); a("v_mul_u32_u24 v4, 81920, v4")
    a("v_bfe_u32 v5, v2, 5, 1"); a("v_bfe_u32 v6, v2, 2, 1"); a("v_lshl_add_u32 v5, v5, 1, v6"); a("v_mul_u32_u24 v5, 20480, v5"); a("v_add_u32 v4, v4, v5")
    a("v_bfe_u32 v5, v2, 3, 2"); a("v_and_b32 v6, 3, v2"); a("v_lshl_add_u32 v5, v5, 2, v6"); a("v_lshl_add_u32 v4, v5, 4, v4")
    a("v_lshrrev_b32 v5, 4, v1"); a("v_lshl_add_u32 v4, v5, 10, v4")
    a("v_bfe_u32 v5, v1, 2, 2"); a("v_lshl_add_u32 v4, v5, 8, v4")
    a("v_and_b32 v5, 3, v1"); a("v_lshl_add_u32 v4, v5, 2, v4")
    for j in range(5):
        a("v_cvt_pk_bf16_f32 v%d, v%d, v%d" % (20 + j, 10 + 2 * j, 11 + 2 * j))
        a("s_mov_b32 s14, %d" % (dst_off + j * 4096))
        a("buffer_store_dword v%d, v4, s[%d:%d], s14 offen%s" % (20 + j, s_ws, s_ws + 3, ST()))

SLOT = 40960
NSLOT = 4

class VMQ:
    def __init__(self, a):
        self.a = a; self.cnt = 0; self.marks = {}
    def op(self, n=1): self.cnt += n
    def mark(self, tag): self.marks[tag] = self.cnt
    def wait(self, tag, extra=""):
        n = self.cnt - self.marks[tag]
        assert 0 <= n <= 63, n
        self.a("s_waitcnt vmcnt(%d)%s" % (n, extra))

def fsw_lane_exprs():
    pass

class ASG:
    def __init__(self, a, nmt):
        self.a = a; self.nmt = nmt
        self.q = VMQ(a)
        self.slots = []
        self.issued = 0
    def add_slot(self, srd, voff, soff, rowstride, nrows):
        self.slots.append(dict(srd=srd, voff=voff, soff=soff, rs=rowstride, nrows=nrows))
        return len(self.slots) - 1
    def dma(self, i, s_wlds, s_tmp):
        if i >= len(self.slots): return
        a = self.a; sl = self.slots[i]
        base = (i % NSLOT) * SLOT
        n = sl["nrows"] // 32
        for j in range(n):
            a("s_add_u32 m0, s%d, %d" % (s_wlds, base + j * 4096))
            a("s_mov_b32 s%d, %d" % (s_tmp, sl["soff"] + j * 32 * sl["rs"]))
            a("buffer_load_dwordx4 v%d, s[%d:%d], s%d offen lds" % (sl["voff"], sl["srd"], sl["srd"] + 3, s_tmp))
            self.q.op()
        self.q.mark(("dma", i))

def lane_setup(a):
    a("v_and_b32 v1, 63, v0")
    a("v_lshrrev_b32 v2, 4, v1")
    a("v_and_b32 v3, 15, v0")
    a("v_lshrrev_b32 v4, 6, v0")
    a("s_nop 0")
    a("v_readfirstlane_b32 s20, v4")
    a("s_nop 3")
    a("s_lshl_b32 s21, s20, 10")

def dma_voff(a, vdst, rowstride, t0, t1, t2):
    a("v_lshrrev_b32 v%d, 3, v1" % t0)
    a("v_lshl_add_u32 v%d, v4, 3, v%d" % (t1, t0))
    a("v_bfe_u32 v%d, v%d, 1, 1" % (t2, t1))
    a("v_lshrrev_b32 v%d, 2, v%d" % (vdst, t1))
    a("v_lshrrev_b32 v%d, 3, v%d" % (t0, t1))
    a("v_xor_b32 v%d, v%d, v%d" % (vdst, vdst, t0))
    a("v_and_b32 v%d, 1, v%d" % (vdst, vdst))
    a("v_lshl_or_b32 v%d, v%d, 1, v%d" % (t2, vdst, t2))
    a("v_bfe_u32 v%d, v1, 1, 2" % t0)
    a("v_xor_b32 v%d, v%d, v%d" % (t2, t2, t0))
    a("v_and_b32 v%d, 1, v1" % t0)
    a("v_lshl_or_b32 v%d, v%d, 1, v%d" % (t2, t2, t0))
    a("v_lshlrev_b32 v%d, 4, v%d" % (t2, t2))
    a("s_mov_b32 s22, %d" % rowstride)
    a("v_mul_lo_u32 v%d, s22, v%d" % (vdst, t1))
    a("v_add_u32 v%d, v%d, v%d" % (vdst, vdst, t2))

def tr_addr_nat(a, vbase, t0, t1, t2):
    a("v_bfe_u32 v%d, v1, 2, 2" % t0)
    a("v_lshl_add_u32 v%d, v2, 3, v%d" % (t1, t0))
    a("v_lshlrev_b32 v%d, 7, v%d" % (t1, t1))
    a("v_and_b32 v%d, 3, v1" % t2)
    a("v_lshl_add_u32 v%d, v%d, 3, v%d" % (t1, t2, t1))
    a("v_lshrrev_b32 v%d, 1, v%d" % (t0, t0))
    a("v_and_b32 v%d, 1, v2" % t2)
    for half in range(2):
        fr = vbase + half * 4 + 3
        a("v_xor_b32 v%d, %d, v%d" % (fr, half, t2))
        a("v_lshl_or_b32 v%d, v%d, 1, v%d" % (fr, fr, t0))
        for nt in range(4):
            d = vbase + half * 4 + nt
            a("v_xor_b32 v%d, %d, v%d" % (d, nt, fr))
            a("v_lshl_add_u32 v%d, v%d, 5, v%d" % (d, d, t1))
            if half: a("v_add_u32 v%d, 512, v%d" % (d, d))

def tr_addr_pi(a, vbase, t0, t1, t2):
    a("v_bfe_u32 v%d, v1, 2, 2" % t0)
    a("v_lshl_add_u32 v%d, v2, 2, v%d" % (t1, t0))
    a("v_lshlrev_b32 v%d, 7, v%d" % (t1, t1))
    a("v_and_b32 v%d, 3, v1" % t2)
    a("v_lshl_add_u32 v%d, v%d, 3, v%d" % (t1, t2, t1))
    a("v_lshrrev_b32 v%d, 1, v%d" % (t0, t0))
    a("v_lshrrev_b32 v%d, 1, v2" % t2)
    a("v_xor_b32 v%d, v%d, v2" % (t2, t2))
    a("v_and_b32 v%d, 1, v%d" % (t2, t2))
    fr = vbase + 3
    a("v_lshl_or_b32 v%d, v%d, 1, v%d" % (fr, t2, t0))
    for nt in range(4):
        d = vbase + nt
        a("v_xor_b32 v%d, %d, v%d" % (d, nt, fr))
        a("v_lshl_add_u32 v%d, v%d, 5, v%d" % (d, d, t1))

def reg(r, n=4):
    return "%s[%d:%d]" % (r[0], r[1], r[1] + n - 1)

def stream_gemm(a, g, units, S, nmt, vaddr, vW, s_wlds, s_tmp, cur_slot_reg_state):
    pass
```

```python
from gen import *

class Stream:
    BUF = 20
    def __init__(self, a, nmt, acc, nslot=4, slot_bytes=SLOT):
        self.a = a; self.nmt = nmt; self.acc = acc
        self.q = VMQ(a); self.slots = []; self.units = []
        self.nslot = nslot; self.sb = slot_bytes
        self.base = dict(nat=0, pi=0)
    def accr(self, mt, nt): return self.acc + (mt * 4 + nt) * 4
    def add_slot(self, srd, voff, soff, rs, nrows, mp):
        self.slots.append(dict(srd=srd, voff=voff, soff=soff, rs=rs, nrows=nrows, mp=mp)); return len(self.slots) - 1
    def add_unit(self, slots, afr, swap, epi):
        self.units.append(dict(slots=slots, afr=afr, swap=swap, epi=epi))
    def dma(self, i):
        if i >= len(self.slots): return
        a = self.a; sl = self.slots[i]
        base = (i % self.nslot) * self.sb
        for j in range(sl["nrows"] // 32):
            a("s_add_u32 m0, s21, %d" % (base + j * 4096))
            a("s_mov_b32 s23, %d" % (sl["soff"] + j * 32 * sl["rs"]))
            a("buffer_load_dwordx4 v%d, s[%d:%d], s23 offen lds" % (sl["voff"], sl["srd"], sl["srd"] + 3))
            self.q.op()
        self.q.mark(("dma", i))
    def reads(self, si, ks, buf):
        a = self.a; sl = self.slots[si]; mp = sl["mp"]
        want = (si % self.nslot) * self.sb
        if self.base[mp] != want:
            d = want - self.base[mp]
            regs = range(8, 16) if mp == "nat" else range(16, 20)
            for r in regs:
                if d > 0: a("v_add_u32 v%d, %d, v%d" % (r, d, r))
                else: a("v_subrev_u32 v%d, %d, v%d" % (r, -d, r))
            self.base[mp] = want
        for nt in range(4):
            d = self.BUF + buf * 16 + nt * 4
            for half in range(2):
                if mp == "nat":
                    a("ds_read_b64_tr_b16 v[%d:%d], v%d offset:%d" % (d + 2 * half, d + 2 * half + 1, 8 + half * 4 + nt, ks * 4096))
                else:
                    a("ds_read_b64_tr_b16 v[%d:%d], v%d offset:%d" % (d + 2 * half, d + 2 * half + 1, 16 + nt, ks * 4096 + half * 2048))
    def run(self):
        a = self.a
        seq = []
        for u in self.units:
            k = 0
            tot = sum(self.slots[s]["nrows"] // 32 for s in u["slots"])
            for s in u["slots"]:
                for ks in range(self.slots[s]["nrows"] // 32):
                    seq.append((s, ks, u, k, k == tot - 1)); k += 1
        import gen3
        st = (lambda k: gen3.stamp(a, k)) if getattr(self, "dbg", False) else (lambda k: None)
        if getattr(self, "dbg", False): gen3.dbg_init(a)
        for i in range(self.nslot): self.dma(i)
        self.q.wait(("dma", 0)); a("s_barrier")
        st(0)
        self.reads(seq[0][0], seq[0][1], 0)
        for n, (s, ks, u, k, last) in enumerate(seq):
            a("s_waitcnt lgkmcnt(0)")
            if n + 1 < len(seq):
                s2, ks2 = seq[n + 1][0], seq[n + 1][1]
                if s2 != s:
                    st(1)
                    self.q.wait(("dma", s2)); a("s_barrier")
                    st(2)
                    self.dma(s + self.nslot)
                self.reads(s2, ks2, (n + 1) & 1)
            for nt in range(4):
                b = "v[%d:%d]" % (self.BUF + (n & 1) * 16 + nt * 4, self.BUF + (n & 1) * 16 + nt * 4 + 3)
                for mt in range(self.nmt):
                    d = self.accr(mt, nt); dd = "v[%d:%d]" % (d, d + 3)
                    f = reg(u["afr"](k, mt))
                    c = "0" if k == 0 else dd
                    if u["swap"]: a("v_mfma_f32_16x16x32_bf16 %s, %s, %s, %s" % (dd, b, f, c))
                    else: a("v_mfma_f32_16x16x32_bf16 %s, %s, %s, %s" % (dd, f, b, c))
            if last:
                a("s_nop 7"); a("s_nop 1")
                st(1)
                u["epi"]()
                a("s_nop 1")
                st(3)
        if getattr(self, "dbg", False): gen3.dbg_out(a, 5, 0)

def common_setup(a, s_nat=True, s_pi=True):
    lane_setup(a)
    if s_nat: tr_addr_nat(a, 8, 5, 6, 7)
    if s_pi: tr_addr_pi(a, 16, 5, 6, 7)

def tokbase(a, vd, vt):
    a("v_lshrrev_b32 v%d, 2, v3" % vd)
    a("v_and_b32 v%d, 3, v3" % vt)
    a("v_lshl_add_u32 v%d, v%d, 3, v%d" % (vd, vd, vt))
def mtrow(mt): return (mt >> 1) * 32 + (mt & 1) * 4

def pack_pi(a, S, mt, q):
    x = S.accr(mt, 2 * q); y = S.accr(mt, 2 * q + 1)
    a("v_cvt_pk_bf16_f32 v%d, v%d, v%d" % (x, x, x + 1))
    a("v_cvt_pk_bf16_f32 v%d, v%d, v%d" % (x + 1, x + 2, x + 3))
    a("v_cvt_pk_bf16_f32 v%d, v%d, v%d" % (x + 2, y, y + 1))
    a("v_cvt_pk_bf16_f32 v%d, v%d, v%d" % (x + 3, y + 2, y + 3))
    return x

def u_epilogue(a, S, q, vU, srd, u, mstride, cstride16):
    def epi():
        for m in range(S.nmt // 2):
            for nt in range(4):
                x = S.accr(2 * m, nt); y = S.accr(2 * m + 1, nt)
                a("v_cvt_pk_bf16_f32 v%d, v%d, v%d" % (x, x, x + 1))
                a("v_cvt_pk_bf16_f32 v%d, v%d, v%d" % (x + 1, x + 2, x + 3))
                a("v_cvt_pk_bf16_f32 v%d, v%d, v%d" % (x + 2, y, y + 1))
                a("v_cvt_pk_bf16_f32 v%d, v%d, v%d" % (x + 3, y + 2, y + 3))
                a("s_mov_b32 s23, %d" % (m * mstride + (u * 4 + nt) * cstride16))
                a("buffer_store_dwordx4 v[%d:%d], v%d, s[%d:%d], s23 offen%s" % (x, x + 3, vU, srd, srd + 3, ST()))
                q.op()
    return epi

def gen_qku(a, part="all"):
    K = "qku_kernel" if part == "all" else "qku%s_kernel" % part
    kbegin(a, K, 256)
    a("s_load_dwordx4 s[4:7], s[0:1], %d" % KA["Wq"])
    a("s_load_dwordx4 s[8:11], s[0:1], %d" % KA["Wv"])
    a("s_load_dwordx2 s[12:13], s[0:1], %d" % KA["ws"])
    common_setup(a)
    a("s_and_b32 s24, s2, 7"); a("s_lshl_b32 s24, s24, 2"); a("s_bfe_u32 s25, s2, 0x20003"); a("s_add_u32 s24, s24, s25")
    a("s_lshr_b32 s25, s2, 5")
    a("s_waitcnt lgkmcnt(0)")
    a("s_mul_i32 s26, s24, 384")
    WSZ = 640 * 12288
    a("s_sub_u32 s27, %d, s26" % WSZ)
    srd_from_ptr(a, 32, 4, "s27", add="s26"); srd_from_ptr(a, 36, 6, "s27", add="s26"); srd_from_ptr(a, 40, 8, "s27", add="s26")
    a("s_mul_i32 s28, s24, 245760")
    srd_from_ptr(a, 44, 10, 245760, add="s28")
    a("s_lshl_b32 s29, s25, 2"); a("s_add_u32 s29, s29, s20")
    a("s_mul_i32 s30, s29, %d" % (64 * 1280)); a("s_add_u32 s30, s30, %d" % WS_H)
    srd_from_ptr(a, 48, 12, 64 * 1280, add="s30")
    a("s_mul_i32 s30, s29, %d" % (64 * 12288)); a("s_add_u32 s30, s30, s26")
    a("s_add_u32 s31, s30, %d" % WS_Q); srd_from_ptr(a, 52, 12, 64 * 12288, add="s31")
    a("s_add_u32 s31, s30, %d" % WS_K); srd_from_ptr(a, 56, 12, 64 * 12288, add="s31")
    a("s_lshl_b32 s30, s29, 6"); a("s_add_u32 s30, s30, s24"); a("s_mul_i32 s30, s30, 40960"); a("s_add_u32 s30, s30, %d" % WS_U)
    srd_from_ptr(a, 60, 12, 33 * 40960, add="s30")
    dma_voff(a, 5, 12288, 244, 245, 246)
    dma_voff(a, 6, 1280, 244, 245, 246)
    tokbase(a, 244, 245)
    a("v_lshlrev_b32 v245, 4, v2")
    a("v_mul_u32_u24 v247, 1280, v244"); a("v_add_u32 v247, v247, v245")
    a("v_mul_u32_u24 v248, 12288, v244"); a("v_add_u32 v248, v248, v245")
    a("v_lshl_add_u32 v249, v3, 6, v245")
    S = Stream(a, 4, 52)
    S.dbg = True
    def hfr(k, mt):
        idx = mt * 20 + k
        return ("a", idx * 4) if idx < 64 else ("v", 116 + (idx - 64) * 4)
    for mt in range(4):
        for k in range(20):
            a("s_mov_b32 s23, %d" % (mtrow(mt) * 1280 + k * 64))
            a("buffer_load_dwordx4 %s, v247, s[48:51], s23 offen" % reg(hfr(k, mt))); S.q.op()
    def vfr(k, mt):
        u = k // 2
        if u < 2: return ("v", 180 + ((u * 4 + mt) * 2 + (k & 1)) * 4)
        return ("v", 116 + (mt * 2 + (k & 1)) * 4)
    mats = dict(all=(("k", 36), ("q", 32), ("v", 40)), T1=(("k", 36), ("q", 32)), T2=(("v", 40),))[part]
    for mat, srd in mats:
        for u in range(3):
            sl = [S.add_slot(srd, 5, u * 128 + hh * 320 * 12288, 12288, 320, "nat") for hh in range(2)]
            if mat != "v":
                def epi(u=u, srdo=(52 if mat == "q" else 56), mat=mat):
                    for mt in range(4):
                        for q in range(2):
                            x = pack_pi(a, S, mt, q)
                            a("s_mov_b32 s23, %d" % (mtrow(mt) * 12288 + u * 128 + q * 64))
                            a("buffer_store_dwordx4 v[%d:%d], v248, s[%d:%d], s23 offen%s" % (x, x + 3, srdo, srdo + 3, ST())); S.q.op()
                    if M.MEGA and mat == "k" and u == 2: M.signal_mid(a)
            else:
                def epi(u=u):
                    for mt in range(4):
                        for q in range(2):
                            x = S.accr(mt, 2 * q); y = S.accr(mt, 2 * q + 1); d = vfr(u * 2 + q, mt)[1]
                            a("v_cvt_pk_bf16_f32 v%d, v%d, v%d" % (d, x, x + 1))
                            a("v_cvt_pk_bf16_f32 v%d, v%d, v%d" % (d + 1, x + 2, x + 3))
                            a("v_cvt_pk_bf16_f32 v%d, v%d, v%d" % (d + 2, y, y + 1))
                            a("v_cvt_pk_bf16_f32 v%d, v%d, v%d" % (d + 3, y + 2, y + 3))
            S.add_unit(sl, hfr, True, epi)
    for u in range(10 if part != "T1" else 0):
        sl = [S.add_slot(44, 6, u * 128, 1280, 192, "pi")]
        S.add_unit(sl, vfr, False, u_epilogue(a, S, S.q, 249, 60, u, 32 * 40960, 1024))
    S.run()
    kend(a, K)
    return K, 512, 256

def gen_vo_ln(a, pv=False):
    K = "voln_kernel" if not pv else "pv_kernel"
    kernel_begin(a, K)
    a("s_cmp_ge_u32 s2, %d" % (256 if pv else 640)); a("s_cbranch_scc1 voln_end")
    a("s_cmp_ge_u32 s2, 128"); a("s_cbranch_scc1 voln_ln")
    a("s_load_dwordx4 s[8:11], s[0:1], %d" % KA["Wv"])
    a("s_load_dwordx2 s[12:13], s[0:1], %d" % KA["ws"])
    common_setup(a)
    a("s_and_b32 s24, s2, 31"); a("s_bfe_u32 s25, s2, 0x10005"); a("s_lshr_b32 s26, s2, 6")
    a("s_waitcnt lgkmcnt(0)")
    a("s_lshl_b32 s27, s25, 2"); a("s_add_u32 s27, s27, s20"); a("s_mul_i32 s27, s27, 80"); a("s_min_u32 s27, s27, 544")
    a("s_mul_i32 s28, s27, 12288"); a("s_mul_i32 s29, s24, 384"); a("s_add_u32 s28, s28, s29")
    a("s_sub_u32 s29, %d, s28" % (640 * 12288))
    srd_from_ptr(a, 32, 8, "s29", add="s28")
    a("s_mul_i32 s28, s24, 245760"); a("s_mul_i32 s29, s26, 640"); a("s_add_u32 s28, s28, s29")
    a("s_sub_u32 s29, %d, s28" % (32 * 245760))
    srd_from_ptr(a, 44, 10, "s29", add="s28")
    a("s_mul_i32 s28, s26, %d" % (40 * 32 * 10240)); a("s_mul_i32 s29, s24, 10240"); a("s_add_u32 s28, s28, s29")
    a("s_lshl_b32 s29, s27, 1"); a("s_add_u32 s28, s28, s29"); a("s_add_u32 s28, s28, %d" % WS_VO)
    srd_from_ptr(a, 60, 12, 40 * 32 * 10240, add="s28")
    dma_voff(a, 6, 1280, 244, 245, 246)
    tokbase(a, 244, 245)
    a("v_lshlrev_b32 v245, 4, v2")
    a("v_mul_u32_u24 v247, 12288, v244"); a("v_add_u32 v247, v247, v245")
    a("v_lshrrev_b32 v249, 3, v3"); a("v_mul_u32_u24 v249, 327680, v249")
    a("v_and_b32 v246, 7, v3"); a("v_mul_u32_u24 v246, 1280, v246"); a("v_add_u32 v249, v249, v246"); a("v_add_u32 v249, v249, v245")
    S = Stream(a, 6, 52)
    def hfr(k, mt): return ("a", (mt * 6 + k) * 4)
    for mt in range(6):
        for k in range(6):
            a("s_mov_b32 s23, %d" % (mtrow(mt) * 12288 + k * 64))
            a("buffer_load_dwordx4 %s, v247, s[32:35], s23 offen" % reg(hfr(k, mt))); S.q.op()
    for u in range(5):
        sl = [S.add_slot(44, 6, u * 128, 1280, 192, "nat")]
        S.add_unit(sl, hfr, False, u_epilogue(a, S, S.q, 249, 60, u, 64, 2 * 327680))
    S.run()
    a("s_endpgm")
    a.put("voln_ln")
    if pv:
        a("s_sub_u32 s2, s2, 128")
        gen_prep(a, emb=True)
        a.put("voln_end"); a("s_endpgm")
        return K, 400, 256
    a("s_load_dwordx2 s[12:13], s[0:1], %d" % KA["ws"])
    a("s_load_dwordx2 s[6:7], s[0:1], %d" % KA["x"])
    a("s_waitcnt lgkmcnt(0)")
    srd_from_ptr(a, 32, 6, 2048 * 1280)
    srd_from_ptr(a, 36, 12, 0x2000000)
    a("s_sub_u32 s24, s2, 128")
    gen_ln_body(a, "ln1", False, 32, 36, WS_H, 0, 1, 24)
    a.put("voln_end"); a("s_endpgm")
    return K, 400, 256

def gen_ln2(a):
    K = "ln2_kernel"
    kernel_begin(a, K)
    a("s_cmp_ge_u32 s2, 512"); a("s_cbranch_scc1 ln2_end")
    a("s_load_dwordx2 s[12:13], s[0:1], %d" % KA["ws"])
    a("s_waitcnt lgkmcnt(0)")
    srd_from_ptr(a, 32, 12, 2048 * 2560, add=hex(WS_X1))
    srd_from_ptr(a, 36, 12, 0x2000000)
    a("s_mov_b32 s24, s2")
    gen_ln_body(a, "ln2", True, 32, 36, WS_H2, 3, 4, 24)
    a.put("ln2_end"); a("s_endpgm")
    return K, 64, 64

def gen_ffn1(a):
    K = "ffn1_kernel"
    kbegin(a, K, 192)
    a("s_load_dwordx4 s[4:7], s[0:1], %d" % KA["w1"])
    a("s_load_dwordx2 s[12:13], s[0:1], %d" % KA["ws"])
    common_setup(a, s_pi=False)
    a("s_and_b32 s24, s2, 7"); a("s_lshr_b32 s25, s2, 3")
    a("s_waitcnt lgkmcnt(0)")
    a("s_lshl_b32 s26, s25, 7"); a("s_sub_u32 s27, %d, s26" % (640 * 3072))
    srd_from_ptr(a, 32, 4, "s27", add="s26")
    srd_from_ptr(a, 36, 6, 128, add="s26")
    a("s_lshl_b32 s29, s24, 2"); a("s_add_u32 s29, s29, s20")
    a("s_mul_i32 s30, s29, %d" % (64 * 1280)); a("s_add_u32 s30, s30, %d" % WS_H2)
    srd_from_ptr(a, 48, 12, 64 * 1280, add="s30")
    a("s_mul_i32 s30, s29, %d" % (64 * 3072)); a("s_lshl_b32 s31, s25, 11"); a("s_add_u32 s30, s30, s31"); a("s_add_u32 s30, s30, %d" % WS_F)
    srd_from_ptr(a, 52, 12, 3 * 48 * 1024 + 2048, add="s30")
    a("v_lshlrev_b32 v250, 4, v1")
    dma_voff(a, 5, 3072, 244, 245, 246)
    tokbase(a, 244, 245)
    a("v_lshlrev_b32 v245, 4, v2")
    a("v_mul_u32_u24 v247, 1280, v244"); a("v_add_u32 v247, v247, v245")
    a("v_mul_u32_u24 v248, 3072, v244"); a("v_add_u32 v248, v248, v245")
    S = Stream(a, 4, 52)
    a("v_lshlrev_b32 v246, 3, v2")
    for nt in range(4):
        a("buffer_load_dwordx2 v[%d:%d], v246, s[36:39], 0 offen offset:%d" % (180 + 2 * nt, 181 + 2 * nt, nt * 32)); S.q.op()
    def hfr(k, mt):
        idx = mt * 20 + k
        return ("a", idx * 4) if idx < 64 else ("v", 116 + (idx - 64) * 4)
    for mt in range(4):
        for k in range(20):
            a("s_mov_b32 s23, %d" % ((mt * 20 + k) * 1024))
            a("buffer_load_dwordx4 %s, v250, s[48:51], s23 offen" % reg(hfr(k, mt))); S.q.op()
    sl = [S.add_slot(32, 5, hh * 320 * 3072, 3072, 320, "nat") for hh in range(2)]
    def epi():
        for nt in range(4):
            for j in range(2):
                a("v_lshlrev_b32 v%d, 16, v%d" % (190 + nt * 4 + 2 * j, 180 + 2 * nt + j))
                a("v_and_b32 v%d, 0xffff0000, v%d" % (190 + nt * 4 + 2 * j + 1, 180 + 2 * nt + j))
        for mt in range(4):
            for nt in range(4):
                x = S.accr(mt, nt)
                for r in range(4):
                    a("v_add_f32 v%d, v%d, v%d" % (x + r, x + r, 190 + nt * 4 + r))
                    a("v_cvt_pk_bf16_f32 v%d, v%d, v%d" % (x + r, x + r, x + r))
                    a("v_lshlrev_b32 v%d, 16, v%d" % (x + r, x + r))
                    a("v_max_f32 v%d, 0, v%d" % (x + r, x + r))
                    a("v_mul_f32 v%d, v%d, v%d" % (x + r, x + r, x + r))
            for q in range(2):
                x = pack_pi(a, S, mt, q)
                a("s_mov_b32 s23, %d" % ((mt * 48 + q) * 1024))
                a("buffer_store_dwordx4 v[%d:%d], v250, s[52:55], s23 offen%s" % (x, x + 3, ST())); S.q.op()
    S.add_unit(sl, hfr, True, epi)
    S.run()
    kend(a, K)
    return K, 512, 256

def gen_ffn2(a):
    K = "ffn2_kernel"
    kbegin(a, K, 160)
    a("s_load_dwordx4 s[4:7], s[0:1], %d" % KA["w2"])
    a("s_load_dwordx4 s[8:11], s[0:1], %d" % KA["out"])
    a("s_load_dwordx2 s[12:13], s[0:1], %d" % KA["ws"])
    common_setup(a, s_nat=False)
    a("s_and_b32 s24, s2, 15"); a("s_lshr_b32 s25, s2, 4")
    a("s_waitcnt lgkmcnt(0)")
    a("s_lshl_b32 s26, s25, 7"); a("s_sub_u32 s27, %d, s26" % (1536 * 1280))
    srd_from_ptr(a, 32, 4, "s27", add="s26")
    srd_from_ptr(a, 36, 6, 128, add="s26")
    a("s_lshl_b32 s29, s24, 2"); a("s_add_u32 s29, s29, s20")
    a("s_mul_i32 s30, s29, %d" % (32 * 3072)); a("s_add_u32 s30, s30, %d" % WS_F)
    srd_from_ptr(a, 48, 12, 32 * 3072, add="s30")
    a("s_mul_i32 s30, s29, %d" % (32 * 2560)); a("s_lshl_b32 s31, s26, 1"); a("s_add_u32 s30, s30, s31"); a("s_add_u32 s30, s30, %d" % WS_X1)
    srd_from_ptr(a, 52, 12, 32 * 2560, add="s30")
    a("s_mul_i32 s30, s29, %d" % (32 * 1280)); a("s_add_u32 s30, s30, s26")
    srd_from_ptr(a, 56, 8, 32 * 1280, add="s30")
    a("s_add_u32 s30, s31, %d" % (WS_MOD + 5 * 2560))
    srd_from_ptr(a, 60, 12, 256, add="s30")
    dma_voff(a, 6, 1280, 244, 245, 246)
    tokbase(a, 244, 245)
    a("v_lshlrev_b32 v245, 4, v2")
    a("v_mul_u32_u24 v247, 3072, v244"); a("v_add_u32 v247, v247, v245")
    a("v_mul_u32_u24 v248, 2560, v244"); a("v_add_u32 v248, v248, v245")
    a("v_lshlrev_b32 v246, 3, v2")
    a("v_mul_u32_u24 v249, 1280, v244"); a("v_add_u32 v249, v249, v246")
    a("v_lshlrev_b32 v250, 4, v1")
    S = Stream(a, 2, 52)
    for nt in range(4):
        a("buffer_load_dwordx2 v[%d:%d], v246, s[36:39], 0 offen offset:%d" % (84 + 2 * nt, 85 + 2 * nt, nt * 32)); S.q.op()
        a("buffer_load_dwordx4 v[%d:%d], v245, s[60:63], 0 offen offset:%d" % (92 + 4 * nt, 95 + 4 * nt, nt * 64)); S.q.op()
    def hfr(k, mt):
        idx = mt * 48 + k
        return ("a", idx * 4) if idx < 64 else ("v", 116 + (idx - 64) * 4)
    for mt in range(2):
        for k in range(48):
            a("s_mov_b32 s23, %d" % ((mt * 48 + k) * 1024))
            a("buffer_load_dwordx4 %s, v250, s[48:51], s23 offen" % reg(hfr(k, mt))); S.q.op()
            if S.q.cnt % 48 == 47: pass
    sl = [S.add_slot(32, 6, hh * 256 * 1280, 1280, 256, "pi") for hh in range(6)]
    def epi():
        for mt in range(2):
            for nt in range(4):
                a("s_mov_b32 s23, %d" % (mtrow(mt) * 2560 + nt * 64))
                a("buffer_load_dwordx4 v[%d:%d], v248, s[52:55], s23 offen" % (116 + (mt * 4 + nt) * 4, 119 + (mt * 4 + nt) * 4)); S.q.op()
        for nt in range(4):
            for j in range(2):
                a("v_lshlrev_b32 v%d, 16, v%d" % (150 + nt * 4 + 2 * j, 84 + 2 * nt + j))
                a("v_and_b32 v%d, 0xffff0000, v%d" % (150 + nt * 4 + 2 * j + 1, 84 + 2 * nt + j))
        a("s_waitcnt vmcnt(0)")
        for mt in range(2):
            for nt in range(4):
                x = S.accr(mt, nt)
                for r in range(4):
                    a("v_add_f32 v%d, v%d, v%d" % (x + r, x + r, 150 + nt * 4 + r))
                    a("v_fma_f32 v%d, v%d, v%d, v%d" % (x + r, x + r, 92 + nt * 4 + r, 116 + (mt * 4 + nt) * 4 + r))
                a("v_cvt_pk_bf16_f32 v%d, v%d, v%d" % (x, x, x + 1))
                a("v_cvt_pk_bf16_f32 v%d, v%d, v%d" % (x + 1, x + 2, x + 3))
                a("s_mov_b32 s23, %d" % (mtrow(mt) * 1280 + nt * 32))
                a("buffer_store_dwordx2 v[%d:%d], v249, s[56:59], s23 offen" % (x, x + 1))
    S.add_unit(sl, hfr, True, epi)
    S.run()
    kend(a, K)
    return K, 512, 256
```

```python
from gen import *
from gen2 import *
SPIN = 400000

def poll_check(a, regs, vt, lab_poll, lab_fail, s_cnt):
    a("v_max3_u32 v%d, v%d, v%d, v%d" % (vt, regs[0], regs[1], regs[2]))
    r = regs[3:]
    while len(r) >= 2:
        a("v_max3_u32 v%d, v%d, v%d, v%d" % (vt, vt, r[0], r[1])); r = r[2:]
    if r: a("v_max_u32 v%d, v%d, v%d" % (vt, vt, r[0]))
    a("v_cmp_eq_u32 vcc, -1, v%d" % vt)
    a("s_add_u32 s%d, s%d, 1" % (s_cnt, s_cnt))
    a("s_cmp_gt_u32 s%d, %d" % (s_cnt, SPIN))
    a("s_cbranch_scc1 %s" % lab_fail)
    a("s_cbranch_vccnz %s" % lab_poll)

def gather_mem(a, pfx, G, srd, s_off, vG, vLw):
    a("s_mov_b32 s60, 0")
    a.put(pfx + "_pm")
    for n in range(3):
        a("buffer_load_dwordx4 v[%d:%d], v%d, s[%d:%d], s%d offen sc1" % (G + 4 * n, G + 4 * n + 3, vG + n, srd, srd + 3, s_off))
    a("s_waitcnt vmcnt(0)")
    poll_check(a, list(range(G, G + 12)), 15, pfx + "_pm", "chain_end", 60)
    for n in range(3):
        a("ds_write_b128 v%d, v[%d:%d]" % (vG + n, G + 4 * n, G + 4 * n + 3))
    a("s_waitcnt lgkmcnt(0)")
    a("s_barrier")

DBG = False
def stamp(a, k):
    if not DBG: return
    a("s_memtime s[66:67]"); a("s_waitcnt lgkmcnt(0)")
    a("s_sub_u32 s65, s66, s68"); a("s_add_u32 s%d, s%d, s65" % (70 + k, 70 + k)); a("s_mov_b32 s68, s66")
def dbg_init(a):
    if not DBG: return
    for k in range(8): a("s_mov_b32 s%d, 0" % (70 + k))
    a("s_memtime s[66:67]"); a("s_waitcnt lgkmcnt(0)"); a("s_mov_b32 s68, s66")
def dbg_out(a, wg, base):
    if not DBG: return
    lab = a.label("dbgo")
    a("s_cmp_lg_u32 s2, %d" % wg); a("s_cbranch_scc1 %s" % lab); a("s_cmp_lg_u32 s20, 0"); a("s_cbranch_scc1 %s" % lab)
    a("s_load_dwordx2 s[80:81], s[0:1], %d" % KA["dbg"]); a("s_waitcnt lgkmcnt(0)"); a("s_mov_b32 s82, 256"); a("s_mov_b32 s83, 0x00020000")
    a("v_mov_b32 v16, 0")
    for k in range(8):
        a("v_mov_b32 v17, s%d" % (70 + k)); a("buffer_store_dword v17, v16, s[80:83], 0 offen offset:%d" % (base + 4 * k))
    a.put(lab)

def gen_chain(a):
    K = "chain_kernel"
    kernel_begin(a, K)
    a("s_cmp_ge_u32 s2, 112"); a("s_cbranch_scc1 chain_end")
    a("s_load_dwordx4 s[4:7], s[0:1], %d" % KA["Wq"])
    a("s_load_dwordx2 s[12:13], s[0:1], %d" % KA["ws"])
    lane_setup(a)
    a("s_waitcnt lgkmcnt(0)")
    srd_from_ptr(a, 44, 12, 65 * 10240, add=hex(WS_MEM))
    srd_from_ptr(a, 48, 12, 64 * 20480, add=hex(WS_P))
    a("s_mul_i32 s22, s20, 2560")
    a("v_lshlrev_b32 v5, 4, v1"); a("v_add_u32 v5, s22, v5"); a("v_add_u32 v6, 1024, v5")
    a("v_and_b32 v7, 31, v1"); a("v_lshlrev_b32 v7, 4, v7"); a("v_add_u32 v7, s22, v7"); a("v_add_u32 v7, 2048, v7")
    a("v_and_b32 v9, 7, v3"); a("v_lshlrev_b32 v8, 7, v2"); a("v_lshl_add_u32 v8, v9, 4, v8")
    a("s_mov_b32 s40, 0")
    a("s_mov_b32 s41, 0")
    a("s_mov_b32 s42, 0")
    a("s_cmp_ge_u32 s2, 32"); a("s_cbranch_scc1 chain_R")
    h = 2
    a("s_mul_i32 s26, s2, 384"); a("s_sub_u32 s27, %d, s26" % (640 * 12288))
    srd_from_ptr(a, 32, 4, "s27", add="s26"); srd_from_ptr(a, 36, 6, "s27", add="s26")
    a("s_add_u32 s28, s26, %d" % WS_K); srd_from_ptr(a, 52, 12, 2048 * 12288, add="s28")
    a("s_mul_i32 s28, s2, 3072"); a("s_add_u32 s28, s28, %d" % WS_KM); srd_from_ptr(a, 56, 12, 64 * 32 * 3072, add="s28")
    dma_voff(a, 10, 12288, 16, 17, 18)
    a("v_bfe_u32 v16, v1, 2, 2"); a("v_lshl_add_u32 v17, v2, 3, v16"); a("v_lshlrev_b32 v17, 7, v17")
    a("v_and_b32 v18, 3, v1"); a("v_lshl_add_u32 v17, v18, 3, v17"); a("v_lshrrev_b32 v16, 1, v16"); a("v_and_b32 v18, 1, v2")
    for half in range(2):
        a("v_xor_b32 v19, %d, v18" % half); a("v_lshl_or_b32 v19, v19, 1, v16"); a("v_xor_b32 v19, v4, v19")
        a("v_lshl_add_u32 v%d, v19, 5, v17" % (11 + half))
        if half: a("v_add_u32 v12, 512, v12")
    a("v_add_u32 v14, %d, v11" % SLOT); a("v_add_u32 v15, %d, v12" % SLOT)
    a("s_mul_i32 s22, s20, 20480"); a("s_add_u32 s22, s22, 81920"); a("v_lshlrev_b32 v13, 4, v1"); a("v_add_u32 v13, s22, v13")
    def wfr(t, ks):
        idx = t * 20 + ks
        if idx < 64: return ("a", idx * 4)
        if idx < 100: return ("v", 112 + (idx - 64) * 4)
        return None
    slots = [(32 if m == 0 else 36, u, hh) for m in range(2) for u in range(3) for hh in range(2)]
    def dma(i):
        if i >= len(slots): return
        srd, u, hh = slots[i]
        for j in range(10):
            a("s_add_u32 m0, s21, %d" % ((i & 1) * SLOT + j * 4096))
            a("s_mov_b32 s23, %d" % (u * 128 + (hh * 320 + j * 32) * 12288))
            a("buffer_load_dwordx4 v10, s[%d:%d], s23 offen lds" % (srd, srd + 3))
    dma(0); dma(1)
    for i in range(12):
        a("s_waitcnt vmcnt(%d)" % (10 if i < 11 else 0)); a("s_barrier")
        t = i // 2; hh = i & 1
        for k in range(10):
            ks = hh * 10 + k; f = wfr(t, ks)
            off = k * 4096
            r0, r1 = (14, 15) if (i & 1) else (11, 12)
            d = 40 + k * 4 if (f is None or f[0] == "a") else f[1]
            a("ds_read_b64_tr_b16 v[%d:%d], v%d offset:%d" % (d, d + 1, r0, off)); a("ds_read_b64_tr_b16 v[%d:%d], v%d offset:%d" % (d + 2, d + 3, r1, off))
        a("s_waitcnt lgkmcnt(0)")
        for k in range(10):
            ks = hh * 10 + k; f = wfr(t, ks); d = 40 + k * 4
            if f is None: a("ds_write_b128 v13, v[%d:%d] offset:%d" % (d, d + 3, ks * 1024))
            elif f[0] == "a":
                for r in range(4): a("v_accvgpr_write_b32 a%d, v%d" % (f[1] + r, d + r))
        a("s_waitcnt lgkmcnt(0)"); a("s_barrier")
        dma(i + 2)
    a("v_mul_u32_u24 v9, 12288, v3"); a("v_lshl_add_u32 v9, v2, 4, v9")
    a("s_lshr_b32 s22, s20, 1"); a("s_lshl_b32 s22, s22, 6"); a("s_and_b32 s23, s20, 1"); a("s_lshl_b32 s23, s23, 3"); a("s_add_u32 s22, s22, s23")
    a("v_add_u32 v9, s22, v9")
    a("v_mul_u32_u24 v10, 384, v3"); a("v_lshl_add_u32 v10, v2, 4, v10"); a("v_add_u32 v10, s22, v10")
    a("v_lshrrev_b32 v11, 1, v2"); a("v_lshlrev_b32 v11, 7, v11"); a("v_lshl_add_u32 v11, v3, 4, v11"); a("v_and_b32 v12, 1, v2"); a("v_lshl_add_u32 v11, v12, 3, v11")
    a("v_lshlrev_b32 v14, 4, v1"); a("v_add_u32 v14, 16384, v14"); a("s_mul_i32 s22, s20, 3072"); a("v_add_u32 v12, s22, v14")
    a("s_mul_i32 s43, s2, 640")
    a("s_mov_b32 s61, 0")
    a("s_mov_b32 s62, 0")
    def kseg_loads():
        for tt in range(2):
            for u in range(3):
                a("s_add_u32 s23, s61, %d" % (tt * 16 * 12288 + u * 128))
                a("buffer_load_dwordx2 v[%d:%d], v9, s[52:55], s23 offen" % (40 + (tt * 3 + u) * 2, 41 + (tt * 3 + u) * 2))
    kseg_loads()
    dbg_init(a)
    a.put("chA_loop")
    gather_mem(a, "chA", 52, 44, 41, 5, None)
    stamp(a, 0)
    ND = 4
    def rd(ks):
        a("ds_read_b128 v[%d:%d], v8 offset:%d" % (64 + (ks % ND) * 4, 67 + (ks % ND) * 4, ks * 512))
        a("ds_read_b128 v[%d:%d], v13 offset:%d" % (80 + (ks % ND) * 4, 83 + (ks % ND) * 4, ks * 1024))
    for ks in range(ND - 1): rd(ks)
    for ks in range(20):
        if ks + ND - 1 < 20: rd(ks + ND - 1)
        rem = min(19, ks + ND - 1) - ks
        a("s_waitcnt lgkmcnt(%d)" % (2 * rem))
        mb = "v[%d:%d]" % (64 + (ks % ND) * 4, 67 + (ks % ND) * 4)
        for t in range(6):
            f = wfr(t, ks) or ("v", 80 + (ks % ND) * 4)
            d = "v[%d:%d]" % (16 + 4 * t, 19 + 4 * t)
            a("v_mfma_f32_16x16x32_bf16 %s, %s, %s, %s" % (d, reg(f), mb, "0" if ks == 0 else d))
    a("s_nop 7"); a("s_nop 1")
    stamp(a, 1)
    for t in range(6):
        a("v_cvt_pk_bf16_f32 v%d, v%d, v%d" % (16 + 4 * t, 16 + 4 * t, 17 + 4 * t))
        a("v_cvt_pk_bf16_f32 v%d, v%d, v%d" % (17 + 4 * t, 18 + 4 * t, 19 + 4 * t))
    a("s_nop 1")
    for tile in range(3):
        d = "v[%d:%d]" % (96 + 4 * tile, 99 + 4 * tile)
        for u in range(3):
            A = (16 + 4 * (3 + u)) if tile == 0 else 40 + ((tile - 1) * 3 + u) * 2
            a("v_mfma_f32_16x16x16_bf16 %s, v[%d:%d], v[%d:%d], %s" % (d, A, A + 1, 16 + 4 * u, 17 + 4 * u, "0" if u == 0 else d))
    a("s_nop 7"); a("s_nop 3")
    for tile in range(3):
        a("ds_write_b128 v12, v[%d:%d] offset:%d" % (96 + 4 * tile, 99 + 4 * tile, tile * 1024))
    a("s_mov_b32 exec_lo, 0x00ff00ff"); a("s_mov_b32 exec_hi, 0x00ff00ff")
    for u in range(3):
        a("buffer_store_dwordx2 v[%d:%d], v10, s[56:59], s62 offen offset:%d" % (16 + 4 * (3 + u), 17 + 4 * (3 + u), u * 128))
    a("s_mov_b64 exec, -1")
    a("s_add_u32 s61, s61, %d" % (32 * 12288)); a("s_add_u32 s62, s62, %d" % (32 * 3072))
    kseg_loads()
    a("s_waitcnt lgkmcnt(0)"); a("s_barrier")
    stamp(a, 2)
    a("s_cmp_lg_u32 s20, 0"); a("s_cbranch_scc1 chA_next")
    for w in range(4):
        for tile in range(3):
            a("ds_read_b128 v[%d:%d], v14 offset:%d" % (52 + (w * 3 + tile) * 4, 55 + (w * 3 + tile) * 4, w * 3072 + tile * 1024))
    a("s_waitcnt lgkmcnt(0)")
    for j in range(12):
        a("v_add_f32 v%d, v%d, v%d" % (52 + j, 52 + j, 64 + j)); a("v_add_f32 v%d, v%d, v%d" % (76 + j, 76 + j, 88 + j))
    for j in range(12): a("v_add_f32 v%d, v%d, v%d" % (52 + j, 52 + j, 76 + j))
    a("v_cmp_gt_u32 vcc, 2, v2"); a("v_mov_b32 v64, 0xff800000"); a("s_nop 1")
    for j in range(4): a("v_cndmask_b32 v%d, v64, v%d, vcc" % (52 + j, 52 + j))
    softmax12(a, 52, 64)
    for j in range(6): a("v_cvt_pk_bf16_f32 v%d, v%d, v%d" % (64 + j, 52 + 2 * j, 53 + 2 * j))
    a("s_add_u32 s23, s42, s43")
    a("s_mov_b32 exec_lo, 0x00ff00ff"); a("s_mov_b32 exec_hi, 0x00ff00ff")
    a("buffer_store_dwordx2 v[66:67], v11, s[48:51], s23 offen offset:128 sc1")
    a("buffer_store_dwordx2 v[68:69], v11, s[48:51], s23 offen offset:384 sc1")
    a("s_mov_b32 exec_hi, 0")
    a("buffer_store_dwordx2 v[64:65], v11, s[48:51], s23 offen sc1")
    a("s_mov_b64 exec, -1")
    stamp(a, 3)
    a.put("chA_next")
    a("s_add_u32 s40, s40, 1"); a("s_add_u32 s41, s41, 10240"); a("s_add_u32 s42, s42, 20480")
    a("s_cmp_lt_u32 s40, 64"); a("s_cbranch_scc1 chA_loop")
    dbg_out(a, 0, 0)
    a("s_branch chain_end")
    a.put("chain_R")
    a("s_sub_u32 s24, s2, 32")
    a("s_mul_i32 s26, s24, 327680"); a("s_mul_i32 s27, s20, 81920"); a("s_add_u32 s26, s26, s27"); a("s_add_u32 s26, s26, %d" % WS_VO)
    srd_from_ptr(a, 32, 12, 81920, add="s26")
    a("s_mul_i32 s26, s20, %d" % (8 * 51200)); a("s_mul_i32 s27, s24, 640"); a("s_add_u32 s26, s26, s27"); a("s_add_u32 s26, s26, %d" % WS_YU)
    a("s_sub_u32 s27, %d, s26" % (WS_YU + 64 * 32 * 51200))
    srd_from_ptr(a, 36, 12, "s27", add="s26")
    a("v_mul_u32_u24 v9, 1280, v3"); a("v_lshl_add_u32 v9, v2, 4, v9")
    def vfr(tt, ks):
        idx = tt * 20 + ks
        return ("a", idx * 4) if idx < 64 else ("v", 192 + (idx - 64) * 4)
    for tt in range(4):
        for ks in range(20):
            a("s_mov_b32 s23, %d" % (tt * 20480 + ks * 64))
            a("buffer_load_dwordx4 %s, v9, s[32:35], s23 offen" % reg(vfr(tt, ks)))
    a("v_and_b32 v10, 7, v3")
    for b in range(5):
        a("v_add_u32 v11, %d, v2" % (4 * b))
        a("v_mul_u32_u24 v12, 52, v11"); a("v_lshrrev_b32 v12, 8, v12")
        a("v_mul_u32_u24 v13, 5, v12"); a("v_sub_u32 v13, v11, v13")
        a("v_mul_u32_u24 v%d, 51200, v12" % (16 + b)); a("v_lshl_add_u32 v%d, v13, 4, v%d" % (16 + b, 16 + b))
        a("v_mul_u32_u24 v13, 80, v10"); a("v_add_u32 v%d, v%d, v13" % (16 + b, 16 + b))
    a("s_mul_i32 s22, s20, 5120"); a("v_lshlrev_b32 v21, 7, v2"); a("v_lshl_add_u32 v21, v10, 4, v21"); a("v_add_u32 v21, s22, v21")
    a("s_lshl_b32 s22, s20, 10"); a("s_add_u32 s22, s22, 16384")
    a("v_lshlrev_b32 v22, 4, v3"); a("v_lshl_add_u32 v22, v2, 3, v22"); a("v_add_u32 v22, s22, v22")
    a("v_lshlrev_b32 v23, 4, v10"); a("v_add_u32 v23, s22, v23")
    a("v_lshlrev_b32 v24, 4, v1"); a("v_add_u32 v24, s22, v24")
    a("v_lshrrev_b32 v25, 3, v1"); a("v_mul_u32_u24 v25, 51200, v25"); a("v_and_b32 v11, 7, v1"); a("v_mul_u32_u24 v11, 80, v11"); a("v_add_u32 v25, v25, v11")
    a("v_lshlrev_b32 v27, 4, v1"); a("v_add_u32 v27, 24576, v27"); a("s_lshl_b32 s22, s20, 10"); a("v_add_u32 v26, s22, v27")
    a("s_lshl_b32 s22, s24, 7"); a("v_lshlrev_b32 v28, 4, v3"); a("v_lshl_add_u32 v28, v2, 3, v28"); a("v_add_u32 v28, s22, v28")
    a("s_mov_b32 s61, 0")
    dbg_init(a)
    a.put("chR_loop")
    for ks in range(10):
        aa, b = divmod(ks, 5)
        a("s_add_u32 s23, s61, %d" % (aa * 4 * 51200))
        a("buffer_load_dwordx4 v[%d:%d], v%d, s[36:39], s23 offen" % (76 + 4 * ks, 79 + 4 * ks, 16 + b))
    gather_mem(a, "chR", 32, 44, 41, 5, None)
    stamp(a, 0)
    def rd(ks): a("ds_read_b128 v[%d:%d], v8 offset:%d" % (60 + (ks % ND) * 4, 63 + (ks % ND) * 4, ks * 512))
    for ks in range(ND - 1): rd(ks)
    for ks in range(20):
        if ks + ND - 1 < 20: rd(ks + ND - 1)
        rem = min(19, ks + ND - 1) - ks
        a("s_waitcnt lgkmcnt(%d)" % rem)
        mb = "v[%d:%d]" % (60 + (ks % ND) * 4, 63 + (ks % ND) * 4)
        for tt in range(4):
            d = "v[%d:%d]" % (44 + 4 * tt, 47 + 4 * tt)
            a("v_mfma_f32_16x16x32_bf16 %s, %s, %s, %s" % (d, mb, reg(vfr(tt, ks)), "0" if ks == 0 else d))
    a("s_nop 7"); a("s_nop 1")
    for tt in range(4):
        a("v_cvt_pk_bf16_f32 v%d, v%d, v%d" % (44 + 4 * tt, 44 + 4 * tt, 45 + 4 * tt))
        a("v_cvt_pk_bf16_f32 v%d, v%d, v%d" % (45 + 4 * tt, 46 + 4 * tt, 47 + 4 * tt))
    a("s_mov_b32 exec_hi, 0")
    for tt in range(4):
        a("ds_write_b64 v22, v[%d:%d] offset:%d" % (44 + 4 * tt, 45 + 4 * tt, tt * 256))
    a("s_mov_b64 exec, -1")
    a("s_waitcnt lgkmcnt(0)")
    for ks in range(10):
        for g0 in range(4):
            if (4 * ks + g0) % 5 == 0:
                hl = (4 * ks + g0) // 5
                lo = (0xffff << (16 * g0)) & 0xffffffff; hi = (0xffff << (16 * g0)) >> 32
                a("s_mov_b32 exec_lo, 0x%x" % lo); a("s_mov_b32 exec_hi, 0x%x" % hi)
                a("ds_read_b128 v[%d:%d], v23 offset:%d" % (76 + 4 * ks, 79 + 4 * ks, hl * 128))
    a("s_mov_b64 exec, -1")
    a("ds_read_b128 v[32:35], v24")
    a("s_waitcnt lgkmcnt(0)")
    a("buffer_store_dwordx4 v[32:35], v25, s[36:39], s61 offen")
    stamp(a, 1)
    a("s_mov_b32 s60, 0")
    a.put("chR_pp")
    for ks in range(10):
        if ks < 8: a("buffer_load_dwordx4 v[%d:%d], v21, s[48:51], s42 offen offset:%d sc1" % (116 + 4 * ks, 119 + 4 * ks, ks * 512))
        else:
            a("s_add_u32 s23, s42, %d" % (ks * 512))
            a("buffer_load_dwordx4 v[%d:%d], v21, s[48:51], s23 offen sc1" % (116 + 4 * ks, 119 + 4 * ks))
    a("s_waitcnt vmcnt(0)")
    poll_check(a, list(range(116, 156)), 15, "chR_pp", "chain_end", 60)
    stamp(a, 2)
    for ks in range(10):
        d = "v[%d:%d]" % (44 + 4 * (ks & 1), 47 + 4 * (ks & 1))
        a("v_mfma_f32_16x16x32_bf16 %s, v[%d:%d], v[%d:%d], %s" % (d, 76 + 4 * ks, 79 + 4 * ks, 116 + 4 * ks, 119 + 4 * ks, "0" if ks < 2 else d))
    a("s_nop 7"); a("s_nop 1")
    for r in range(4): a("v_add_f32 v%d, v%d, v%d" % (44 + r, 44 + r, 48 + r))
    a("ds_write_b128 v26, v[44:47]")
    a("s_waitcnt lgkmcnt(0)"); a("s_barrier")
    a("s_cmp_lg_u32 s20, 0"); a("s_cbranch_scc1 chR_next")
    for w in range(4): a("ds_read_b128 v[%d:%d], v27 offset:%d" % (44 + 4 * w, 47 + 4 * w, w * 1024))
    a("s_waitcnt lgkmcnt(0)")
    for r in range(4):
        a("v_add_f32 v%d, v%d, v%d" % (44 + r, 44 + r, 48 + r)); a("v_add_f32 v%d, v%d, v%d" % (52 + r, 52 + r, 56 + r))
    for r in range(4): a("v_add_f32 v%d, v%d, v%d" % (44 + r, 44 + r, 52 + r))
    a("v_cvt_pk_bf16_f32 v44, v44, v45"); a("v_cvt_pk_bf16_f32 v45, v46, v47")
    a("v_min_u32 v44, 0xfffffffe, v44"); a("v_min_u32 v45, 0xfffffffe, v45")
    a("s_add_u32 s23, s41, 10240")
    a("s_mov_b32 exec_lo, 0x00ff00ff"); a("s_mov_b32 exec_hi, 0")
    a("buffer_store_dwordx2 v[44:45], v28, s[44:47], s23 offen sc1")
    a("s_mov_b64 exec, -1")
    stamp(a, 3)
    a.put("chR_next")
    a("s_add_u32 s40, s40, 1"); a("s_add_u32 s41, s41, 10240"); a("s_add_u32 s42, s42, 20480"); a("s_add_u32 s61, s61, %d" % (32 * 51200))
    a("s_cmp_lt_u32 s40, 64"); a("s_cbranch_scc1 chR_loop")
    dbg_out(a, 32, 32)
    a.put("chain_end"); a("s_endpgm")
    return K, 512, 256

def softmax12(a, V, T, n=12):
    c = 192 ** -0.5 * 1.4426950408889634
    import struct
    ch = struct.unpack("<I", struct.pack("<f", c))[0]
    a("v_max3_f32 v%d, v%d, v%d, v%d" % (T, V, V + 1, V + 2))
    for j in range(3, n - 1, 2): a("v_max3_f32 v%d, v%d, v%d, v%d" % (T, T, V + j, V + j + 1))
    if (n - 3) % 2: a("v_max_f32 v%d, v%d, v%d" % (T, T, V + n - 1))
    for sw in ("v_permlane16_swap_b32", "v_permlane32_swap_b32"):
        a("v_mov_b32 v%d, v%d" % (T + 1, T)); a("s_nop 1")
        a("%s v%d, v%d" % (sw, T, T + 1)); a("s_nop 1")
        a("v_max_f32 v%d, v%d, v%d" % (T, T, T + 1))
    a("v_mul_f32 v%d, 0x%08x, v%d" % (T, ch, T))
    a("v_mov_b32 v%d, 0x%08x" % (T + 2, ch))
    for j in range(n):
        a("v_fma_f32 v%d, v%d, v%d, -v%d" % (V + j, V + j, T + 2, T))
    for j in range(n): a("v_exp_f32 v%d, v%d" % (V + j, V + j))
    a("s_nop 0")
    a("v_add_f32 v%d, v%d, v%d" % (T, V, V + 1))
    for j in range(2, n): a("v_add_f32 v%d, v%d, v%d" % (T, T, V + j))
    for sw in ("v_permlane16_swap_b32", "v_permlane32_swap_b32"):
        a("v_mov_b32 v%d, v%d" % (T + 1, T)); a("s_nop 1")
        a("%s v%d, v%d" % (sw, T, T + 1)); a("s_nop 1")
        a("v_add_f32 v%d, v%d, v%d" % (T, T, T + 1))
    a("v_rcp_f32 v%d, v%d" % (T, T)); a("s_nop 0")
    for j in range(n): a("v_mul_f32 v%d, v%d, v%d" % (V + j, V + j, T))

def gen_pattn(a):
    K = "pattn_kernel"
    kbegin(a, K, 512)
    a("s_load_dwordx2 s[12:13], s[0:1], %d" % KA["ws"])
    lane_setup(a)
    a("s_lshl_b32 s24, s2, 2"); a("s_add_u32 s24, s24, s20"); a("s_and_b32 s25, s24, 31"); a("s_lshr_b32 s26, s24, 5")
    a("s_waitcnt lgkmcnt(0)")
    a("s_mul_i32 s27, s26, %d" % (32 * 12288)); a("s_mul_i32 s28, s25, 384"); a("s_add_u32 s27, s27, s28")
    a("s_add_u32 s28, s27, %d" % WS_Q); srd_from_ptr(a, 32, 12, 32 * 12288, add="s28")
    a("s_add_u32 s28, s27, %d" % WS_K); srd_from_ptr(a, 36, 12, 32 * 12288, add="s28")
    a("s_mul_i32 s28, s24, 3072"); a("s_add_u32 s28, s28, %d" % WS_KM); srd_from_ptr(a, 40, 12, 3072, add="s28")
    a("s_mul_i32 s28, s26, %d" % (32 * 2560)); a("s_mul_i32 s29, s25, 80"); a("s_add_u32 s28, s28, s29"); a("s_add_u32 s28, s28, %d" % WS_PP)
    srd_from_ptr(a, 44, 12, 32 * 2560, add="s28")
    a("v_mul_u32_u24 v5, 12288, v3"); a("v_lshl_add_u32 v5, v2, 4, v5")
    a("v_and_b32 v7, 7, v3"); a("v_mul_u32_u24 v6, 384, v7"); a("v_lshl_add_u32 v6, v2, 4, v6")
    for ks in range(6):
        for t in range(2):
            a("s_mov_b32 s23, %d" % (t * 16 * 12288 + ks * 64))
            a("buffer_load_dwordx4 v[%d:%d], v5, s[32:35], s23 offen" % (16 + (t * 6 + ks) * 4, 19 + (t * 6 + ks) * 4))
            a("buffer_load_dwordx4 v[%d:%d], v5, s[36:39], s23 offen" % (64 + (t * 6 + ks) * 4, 67 + (t * 6 + ks) * 4))
        a("buffer_load_dwordx4 v[%d:%d], v6, s[40:43], 0 offen offset:%d" % (112 + ks * 4, 115 + ks * 4, ks * 64))
    a("s_waitcnt vmcnt(0)")
    for ks in range(6):
        for qt in range(2):
            for tile in range(3):
                A = 112 + ks * 4 if tile == 0 else 64 + ((tile - 1) * 6 + ks) * 4
                d = "v[%d:%d]" % (136 + (qt * 3 + tile) * 4, 139 + (qt * 3 + tile) * 4)
                a("v_mfma_f32_16x16x32_bf16 %s, v[%d:%d], v[%d:%d], %s" % (d, A, A + 3, 16 + (qt * 6 + ks) * 4, 19 + (qt * 6 + ks) * 4, "0" if ks == 0 else d))
    a("s_nop 7"); a("s_nop 1")
    a("v_mov_b32 v8, 0xff800000")
    a("v_lshlrev_b32 v9, 2, v2")
    a("v_mul_u32_u24 v10, 2560, v3"); a("v_lshl_add_u32 v10, v2, 3, v10")
    for qt in range(2):
        V = 136 + qt * 12
        a("v_cmp_gt_u32 vcc, 2, v2"); a("s_nop 1")
        for j in range(4): a("v_cndmask_b32 v%d, v8, v%d, vcc" % (V + j, V + j))
        for kt in range(2):
            for r in range(4):
                a("v_add_u32 v11, %d, v9" % (kt * 16 + r - qt * 16 + 64))
                a("v_add_u32 v12, 64, v3")
                a("v_cmp_le_u32 vcc, v11, v12"); a("s_nop 1")
                a("v_cndmask_b32 v%d, v8, v%d, vcc" % (V + 4 + kt * 4 + r, V + 4 + kt * 4 + r))
        softmax12(a, V, 13)
        for j in range(6): a("v_cvt_pk_bf16_f32 v%d, v%d, v%d" % (V + j, V + 2 * j, V + 2 * j + 1))
        a("s_mov_b32 s23, %d" % (qt * 16 * 2560))
        a("buffer_store_dwordx2 v[%d:%d], v10, s[44:47], s23 offen offset:16%s" % (V + 2, V + 3, ST()))
        a("buffer_store_dwordx2 v[%d:%d], v10, s[44:47], s23 offen offset:48%s" % (V + 4, V + 5, ST()))
        a("s_mov_b32 exec_hi, 0")
        a("buffer_store_dwordx2 v[%d:%d], v10, s[44:47], s23 offen%s" % (V, V + 1, ST()))
        a("s_mov_b64 exec, -1")
    kend(a, K)
    return K, 168

def gen_pout(a):
    K = "pout_kernel"
    kbegin(a, K, 320)
    a("s_load_dwordx2 s[12:13], s[0:1], %d" % KA["ws"])
    a("s_load_dwordx2 s[6:7], s[0:1], %d" % KA["x"])
    lane_setup(a)
    a("s_lshl_b32 s24, s2, 2"); a("s_add_u32 s24, s24, s20")
    a("s_mul_i32 s26, s24, 3277"); a("s_lshr_b32 s26, s26, 16")
    a("s_mul_i32 s25, s26, 20"); a("s_sub_u32 s25, s24, s25")
    a("s_waitcnt lgkmcnt(0)")
    a("s_mul_i32 s28, s26, %d" % (32 * 2560)); a("s_add_u32 s28, s28, %d" % WS_PP); srd_from_ptr(a, 32, 12, 32 * 2560, add="s28")
    srd_from_ptr(a, 36, 12, WS_SIZE)
    a("s_mul_i32 s28, s26, %d" % (32 * 1280)); a("s_lshl_b32 s29, s25, 6"); a("s_add_u32 s28, s28, s29"); srd_from_ptr(a, 40, 6, 32 * 1280, add="s28")
    a("s_mul_i32 s28, s26, %d" % (32 * 2560)); a("s_lshl_b32 s29, s25, 7"); a("s_add_u32 s28, s28, s29"); a("s_add_u32 s28, s28, %d" % WS_X1)
    srd_from_ptr(a, 44, 12, 32 * 2560, add="s28")
    a("s_add_u32 s28, s29, %d" % (WS_MOD + 2 * 2560)); srd_from_ptr(a, 48, 12, 128, add="s28")
    a("v_mul_u32_u24 v5, 2560, v3"); a("v_lshl_add_u32 v5, v2, 4, v5")
    a("s_mul_i32 s28, s26, %d" % (32 * 640)); a("s_sub_u32 s29, s25, s20"); a("s_lshl_b32 s29, s29, 5"); a("s_add_u32 s28, s28, s29")
    a("v_add_u32 v14, s28, v3")
    a("s_lshl_b32 s30, s20, 1")
    for b in range(5):
        a("v_add_u32 v11, %d, v2" % (4 * b))
        a("v_mul_u32_u24 v12, 52, v11"); a("v_lshrrev_b32 v12, 8, v12")
        a("v_mul_u32_u24 v13, 5, v12"); a("v_sub_u32 v13, v11, v13")
        a("v_mul_u32_u24 v12, 640, v12"); a("v_add_u32 v12, v12, v14")
        a("v_lshlrev_b32 v6, 4, v12"); a("v_add_u32 v6, %d, v6" % WS_Y)
        a("v_lshlrev_b32 v7, 6, v12"); a("v_lshl_add_u32 v7, v13, 4, v7"); a("v_add_u32 v7, %d, v7" % (WS_U - 16))
        a("v_cmp_eq_u32 vcc, 0, v13"); a("v_mov_b32 v8, %d" % (4 * 640 * 64)); a("v_mov_b32 v9, %d" % (4 * 640 * 16))
        a("v_cndmask_b32 v%d, v7, v6, vcc" % (216 + b))
        a("v_cndmask_b32 v%d, v8, v9, vcc" % (222 + b))
        a("v_mov_b32 v8, 1024"); a("v_mov_b32 v9, 256"); a("v_cndmask_b32 v%d, v8, v9, vcc" % (228 + b))
        a("v_mul_lo_u32 v8, s30, v%d" % (222 + b)); a("v_add_u32 v%d, v%d, v8" % (216 + b, 216 + b))
    a("s_mul_i32 s31, s20, 640")
    def fr(gr, b, j):
        i = gr * 50 + b * 10 + j
        if i < 64: return ("a", i * 4)
        return ("v", 80 + (i - 64) * 4) if i - 64 < 34 else ("v", 236 + (i - 98) * 4)
    assert fr(1, 4, 9) == ("v", 236 + 4)
    for gr in range(2):
        for b in range(5):
            for t in range(2):
                a("s_add_u32 s23, s31, %d" % (t * 16 * 2560 + (gr * 5 + b) * 64))
                a("buffer_load_dwordx4 %s, v5, s[32:35], s23 offen" % reg(fr(gr, b, t)))
            a("v_mov_b32 v6, v%d" % (216 + b))
            for nt in range(8):
                a("buffer_load_dwordx4 %s, v6, s[36:39], 0 offen" % reg(fr(gr, b, 2 + nt)))
                if nt < 7: a("v_add_u32 v6, v6, v%d" % (228 + b))
            if gr == 0: a("v_add_u32 v%d, v%d, v%d" % (216 + b, 216 + b, 222 + b))
    for gr in range(2):
        for b in range(5):
            a("s_waitcnt vmcnt(%d)" % (100 - (gr * 50 + b * 10 + 10) if 100 - (gr * 50 + b * 10 + 10) < 63 else 62))
            for mt in range(2):
                for nt in range(8):
                    d = "v[%d:%d]" % (16 + (mt * 8 + nt) * 4, 19 + (mt * 8 + nt) * 4)
                    a("v_mfma_f32_16x16x32_bf16 %s, %s, %s, %s" % (d, reg(fr(gr, b, 2 + nt)), reg(fr(gr, b, mt)), "0" if (gr == 0 and b == 0) else d))
    a("s_nop 7"); a("s_nop 1")
    a("v_lshlrev_b32 v6, 4, v1"); a("s_lshl_b32 s23, s20, 14"); a("v_add_u32 v7, s23, v6")
    for tl in range(16): a("ds_write_b128 v7, v[%d:%d] offset:%d" % (16 + tl * 4, 19 + tl * 4, tl * 1024))
    a("s_waitcnt lgkmcnt(0)"); a("s_barrier")
    a("s_lshl_b32 s23, s20, 11"); a("v_add_u32 v7, s23, v6")
    for w in range(4):
        for mt in range(2):
            for nt in range(2):
                r = 80 + (w * 4 + mt * 2 + nt) * 4
                a("ds_read_b128 v[%d:%d], v7 offset:%d" % (r, r + 3, w * 16384 + (mt * 8 + nt) * 1024))
    a("s_waitcnt lgkmcnt(0)")
    for tl in range(4):
        for r in range(4):
            d = 16 + tl * 4 + r
            a("v_add_f32 v%d, v%d, v%d" % (d, 80 + tl * 4 + r, 96 + tl * 4 + r)); a("v_add_f32 v6, v%d, v%d" % (112 + tl * 4 + r, 128 + tl * 4 + r)); a("v_add_f32 v%d, v%d, v6" % (d, d))
    a("v_mul_u32_u24 v12, 1280, v3"); a("v_lshl_add_u32 v12, v2, 3, v12"); a("v_lshlrev_b32 v13, 4, v2")
    for nt in range(2):
        a("buffer_load_dwordx4 v[%d:%d], v13, s[48:51], 0 offen offset:%d" % (32 + 4 * nt, 35 + 4 * nt, nt * 64))
        for mt in range(2):
            a("s_mov_b32 s23, %d" % (mt * 16 * 1280 + nt * 32))
            a("buffer_load_dwordx2 v[%d:%d], v12, s[40:43], s23 offen" % (40 + (mt * 2 + nt) * 2, 41 + (mt * 2 + nt) * 2))
    a("s_waitcnt vmcnt(0)")
    for mt in range(2):
        for nt in range(2):
            x = 40 + (mt * 2 + nt) * 2; d = 16 + (mt * 2 + nt) * 4
            for j in range(2):
                a("v_lshlrev_b32 v48, 16, v%d" % (x + j)); a("v_and_b32 v49, 0xffff0000, v%d" % (x + j))
                a("v_fma_f32 v%d, v%d, v%d, v48" % (d + 2 * j, d + 2 * j, 32 + 4 * nt + 2 * j))
                a("v_fma_f32 v%d, v%d, v%d, v49" % (d + 2 * j + 1, d + 2 * j + 1, 32 + 4 * nt + 2 * j + 1))
            a("s_mov_b32 s23, %d" % (mt * 16 * 2560 + nt * 64))
            a("buffer_store_dwordx4 v[%d:%d], v5, s[44:47], s23 offen%s" % (d, d + 3, ST()))
    kend(a, K)
    return K, 512, 256
```

```python
from gen import *
from gen2 import *
import gen3
from gen3 import stamp, dbg_init, dbg_out, SPIN
import struct
CFG = dict(S=3, gap=5, slpA=20, slpR=6, slpRm=8, slpA0=16)

def spoll(a, pfx, S, nl, issue, regs, succ, sleep, gap, vt=15):
    if sleep: a("s_sleep %d" % sleep)
    a("s_mov_b32 s60, 0")
    for k in range(S):
        issue(k)
        if k < S - 1 and gap: a("s_sleep %d" % gap)
    a.put(pfx + "_lp")
    for k in range(S):
        a("s_waitcnt vmcnt(%d)" % ((S - 1) * nl))
        r = regs(k)
        a("v_max3_u32 v%d, v%d, v%d, v%d" % (vt, r[0], r[1], r[2]))
        r = r[3:]
        while len(r) >= 2:
            a("v_max3_u32 v%d, v%d, v%d, v%d" % (vt, vt, r[0], r[1])); r = r[2:]
        if r: a("v_max_u32 v%d, v%d, v%d" % (vt, vt, r[0]))
        a("v_cmp_ne_u32 vcc, -1, v%d" % vt)
        a("s_nop 1")
        a("s_cmp_eq_u64 vcc, exec")
        a("s_cbranch_scc1 %s_ok%d" % (pfx, k))
        issue(k)
    a("s_add_u32 s60, s60, 1"); a("s_cmp_gt_u32 s60, %d" % SPIN); a("s_cbranch_scc1 chain_end")
    a("s_branch %s_lp" % pfx)
    for k in range(S):
        a.put("%s_ok%d" % (pfx, k))
        succ(k)
        if k < S - 1: a("s_branch %s_done" % pfx)
    a.put(pfx + "_done")

def gather_mem(a, pfx, sets, srd, s_off, vG, sleep):
    S = len(sets)
    def issue(k):
        for n in range(3):
            a("buffer_load_dwordx4 v[%d:%d], v%d, s[%d:%d], s%d offen sc1" % (sets[k] + 4 * n, sets[k] + 4 * n + 3, vG + n, srd, srd + 3, s_off))
    def succ(k):
        for n in range(3):
            a("ds_write_b128 v%d, v[%d:%d]" % (vG + n, sets[k] + 4 * n, sets[k] + 4 * n + 3))
    spoll(a, pfx, S, 3, issue, lambda k: list(range(sets[k], sets[k] + 12)), succ, sleep, CFG["gap"])
    a("s_waitcnt lgkmcnt(0)")
    a("s_barrier")

def gen_chain(a):
    K = "chain_kernel"
    S = CFG["S"]
    if M.MEGA: a.put("chain_entry")
    else:
        kernel_begin(a, K)
        a("s_cmp_ge_u32 s2, 112"); a("s_cbranch_scc1 chain_end")
    def fpoll(lab, voff, soff_expr):
        if not M.MEGA: return
        a("s_mov_b32 s60, 0")
        a.put(lab)
        if voff is None: a("buffer_load_dword v15, off, s[92:95], %s sc1" % soff_expr)
        else: a("buffer_load_dword v15, v%d, s[92:95], %s offen sc1" % (voff, soff_expr))
        a("s_waitcnt vmcnt(0)")
        a("v_cmp_ne_u32 vcc, -1, v15"); a("s_nop 1"); a("s_cmp_eq_u64 vcc, exec"); a("s_cbranch_scc1 %s_ok" % lab)
        a("s_sleep 8")
        a("s_add_u32 s60, s60, 1"); a("s_cmp_gt_u32 s60, %d" % SPIN); a("s_cbranch_scc1 chain_end")
        a("s_branch %s" % lab)
        a.put(lab + "_ok")
    a("s_load_dwordx4 s[4:7], s[0:1], %d" % KA["Wq"])
    a("s_load_dwordx2 s[12:13], s[0:1], %d" % KA["ws"])
    lane_setup(a)
    a("s_waitcnt lgkmcnt(0)")
    srd_from_ptr(a, 44, 12, 66 * 10240, add=hex(WS_MEM))
    srd_from_ptr(a, 48, 12, 65 * 20480, add=hex(WS_P))
    a("s_mul_i32 s22, s20, 2560")
    a("v_lshlrev_b32 v5, 4, v1"); a("v_add_u32 v5, s22, v5"); a("v_add_u32 v6, 1024, v5")
    a("v_and_b32 v7, 31, v1"); a("v_lshlrev_b32 v7, 4, v7"); a("v_add_u32 v7, s22, v7"); a("v_add_u32 v7, 2048, v7")
    a("v_and_b32 v9, 7, v3"); a("v_lshlrev_b32 v8, 7, v2"); a("v_lshl_add_u32 v8, v9, 4, v8")
    a("s_mov_b32 s40, 0"); a("s_mov_b32 s41, 0"); a("s_mov_b32 s42, 0")
    a("s_cmp_ge_u32 s2, 32"); a("s_cbranch_scc1 chain_R")
    a("s_mul_i32 s26, s2, 384"); a("s_sub_u32 s27, %d, s26" % (640 * 12288))
    srd_from_ptr(a, 32, 4, "s27", add="s26"); srd_from_ptr(a, 36, 6, "s27", add="s26")
    a("s_add_u32 s28, s26, %d" % WS_K); srd_from_ptr(a, 52, 12, 2048 * 12288, add="s28")
    a("s_mul_i32 s28, s2, 3072"); a("s_add_u32 s28, s28, %d" % WS_KM); srd_from_ptr(a, 56, 12, 64 * 32 * 3072, add="s28")
    dma_voff(a, 10, 12288, 16, 17, 18)
    a("v_bfe_u32 v16, v1, 2, 2"); a("v_lshl_add_u32 v17, v2, 3, v16"); a("v_lshlrev_b32 v17, 7, v17")
    a("v_and_b32 v18, 3, v1"); a("v_lshl_add_u32 v17, v18, 3, v17"); a("v_lshrrev_b32 v16, 1, v16"); a("v_and_b32 v18, 1, v2")
    for half in range(2):
        a("v_xor_b32 v19, %d, v18" % half); a("v_lshl_or_b32 v19, v19, 1, v16"); a("v_xor_b32 v19, v4, v19")
        a("v_lshl_add_u32 v%d, v19, 5, v17" % (11 + half))
        if half: a("v_add_u32 v12, 512, v12")
    SS = 20480
    PERS = 65536
    NL = 24
    a("s_mul_i32 s22, s20, %d" % (NL * 1024)); a("s_add_u32 s22, s22, %d" % PERS); a("v_lshlrev_b32 v13, 4, v1"); a("v_add_u32 v13, s22, v13")
    def wfr(t, ks):
        idx = t * 20 + ks
        if idx < 64: return ("a", idx * 4)
        if idx < 96: return ("v", 128 + (idx - 64) * 4)
        return ("l", idx - 96)
    slots = [(32 if m == 0 else 36, u, hh) for m in range(2) for u in range(3) for hh in range(4)]
    def dma(i):
        if i >= len(slots): return
        srd, u, hh = slots[i]
        for j in range(5):
            a("s_add_u32 m0, s21, %d" % ((i % 3) * SS + j * 4096))
            a("s_mov_b32 s23, %d" % (u * 128 + (hh * 160 + j * 32) * 12288))
            a("buffer_load_dwordx4 v10, s[%d:%d], s23 offen lds" % (srd, srd + 3))
    dma(0); dma(1); dma(2)
    for i in range(24):
        a("s_waitcnt vmcnt(%d)" % (10 if i < 22 else (5 if i == 22 else 0))); a("s_barrier")
        t = i // 4; hh = i % 4
        for k in range(5):
            ks = hh * 5 + k; f = wfr(t, ks)
            off = (i % 3) * SS + k * 4096
            d = 40 + k * 4 if f[0] != "v" else f[1]
            a("ds_read_b64_tr_b16 v[%d:%d], v11 offset:%d" % (d, d + 1, off)); a("ds_read_b64_tr_b16 v[%d:%d], v12 offset:%d" % (d + 2, d + 3, off))
        a("s_waitcnt lgkmcnt(0)")
        for k in range(5):
            ks = hh * 5 + k; f = wfr(t, ks); d = 40 + k * 4
            if f[0] == "l": a("ds_write_b128 v13, v[%d:%d] offset:%d" % (d, d + 3, f[1] * 1024))
            elif f[0] == "a":
                for r in range(4): a("v_accvgpr_write_b32 a%d, v%d" % (f[1] + r, d + r))
        a("s_waitcnt lgkmcnt(0)"); a("s_barrier")
        dma(i + 3)
    SETS = [52, 64, 76][:S]
    a("v_mul_u32_u24 v9, 12288, v3"); a("v_lshl_add_u32 v9, v2, 4, v9")
    a("s_lshr_b32 s22, s20, 1"); a("s_lshl_b32 s22, s22, 6"); a("s_and_b32 s23, s20, 1"); a("s_lshl_b32 s23, s23, 3"); a("s_add_u32 s22, s22, s23")
    a("v_add_u32 v9, s22, v9")
    a("v_mul_u32_u24 v10, 384, v3"); a("v_lshl_add_u32 v10, v2, 4, v10"); a("v_add_u32 v10, s22, v10")
    a("v_lshlrev_b32 v11, 4, v1")
    SCB = 16384
    a("v_lshrrev_b32 v12, 1, v2"); a("v_lshlrev_b32 v12, 8, v12"); a("v_lshl_add_u32 v12, v3, 5, v12"); a("v_and_b32 v14, 1, v2"); a("v_lshl_add_u32 v12, v14, 4, v12")
    a("s_mul_i32 s22, s20, 1280"); a("s_add_u32 s22, s22, %d" % SCB); a("v_add_u32 v12, s22, v12")
    a("v_lshlrev_b32 v14, 5, v1"); a("v_add_u32 v14, %d, v14" % SCB)
    a("s_mul_i32 s43, s2, 640")
    a("s_mov_b32 s61, 0"); a("s_mov_b32 s62, 0")
    def kseg_loads():
        for tt in range(2):
            for u in range(3):
                a("s_add_u32 s23, s61, %d" % (tt * 16 * 12288 + u * 128))
                a("buffer_load_dwordx2 v[%d:%d], v9, s[52:55], s23 offen" % (40 + (tt * 3 + u) * 2, 41 + (tt * 3 + u) * 2))
    def km_and_prefetch():
        a("s_mov_b32 exec_lo, 0x00ff00ff"); a("s_mov_b32 exec_hi, 0x00ff00ff")
        for u in range(3):
            a("buffer_store_dwordx2 v[%d:%d], v10, s[56:59], s62 offen offset:%d%s" % (16 + 4 * (3 + u), 17 + 4 * (3 + u), u * 128, ST()))
        a("s_mov_b64 exec, -1")
        a("s_add_u32 s61, s61, %d" % (32 * 12288)); a("s_add_u32 s62, s62, %d" % (32 * 3072))
        if M.MEGA:
            a("s_add_u32 s22, s40, 1"); a("s_and_b32 s23, s22, 7"); a("s_cmp_lg_u32 s23, 0"); a("s_cbranch_scc1 chA_fk_ok")
            a("s_cmp_ge_u32 s22, 64"); a("s_cbranch_scc1 chA_fk_ok")
            a("s_lshl_b32 s22, s22, 4"); a("s_lshl_b32 s23, s2, 2"); a("s_add_u32 s22, s22, s23"); a("s_add_u32 s22, s22, %d" % F_K)
            fpoll("chA_fk", None, "s22")
        kseg_loads()
    if M.MEGA:
        a("s_lshl_b32 s22, s2, 2"); a("s_add_u32 s22, s22, %d" % F_K)
        fpoll("chA_fk0", None, "s22")
    kseg_loads()
    dbg_init(a)
    a("s_mov_b32 s63, 0")
    a.put("chA_loop")
    gather_mem(a, "chA", SETS, 44, 41, 5, 0)
    if M.TS:
        a("s_and_b32 s22, s40, 7"); a("s_or_b32 s22, s22, s2"); a("s_or_b32 s22, s22, s20"); a("s_cmp_lg_u32 s22, 0"); a("s_cbranch_scc1 chA_ts")
        a("s_lshr_b32 s23, s40, 1"); a("v_mov_b32 v15, v254"); tstamp(a, "s23"); a("v_mov_b32 v254, v15"); a.put("chA_ts")
    stamp(a, 0)
    ND = 4; NW = 6
    lf = [ks for ks in range(20)]
    uses = []
    for ks in range(20):
        for t in range(6):
            if wfr(t, ks)[0] == "l": uses.append((ks, t))
    wbuf = {u: 104 + (n % NW) * 4 for n, u in enumerate(uses)}
    issued = []
    def rd_m(ks): a("ds_read_b128 v[%d:%d], v8 offset:%d" % (88 + (ks % ND) * 4, 91 + (ks % ND) * 4, ks * 512)); issued.append(("m", ks))
    def rd_w(u): a("ds_read_b128 v[%d:%d], v13 offset:%d" % (wbuf[u], wbuf[u] + 3, wfr(u[1], u[0])[1] * 1024)); issued.append(("w", u))
    wi = 0
    def prefetch(upto_ks):
        nonlocal wi
        while len([x for x in issued if x[0] == "m"]) <= min(19, upto_ks):
            k = len([x for x in issued if x[0] == "m"])
            rd_m(k)
            while wi < len(uses) and uses[wi][0] <= k:
                rd_w(uses[wi]); wi += 1
    prefetch(ND - 2)
    for ks in range(20):
        lim = ks + ND - 1
        cons = len([u for u in uses if u[0] < ks])
        while lim > ks and len([u for u in uses if u[0] <= min(lim, 19)]) > cons + NW: lim -= 1
        prefetch(lim)
        need = max(i for i, x in enumerate(issued) if (x[0] == "m" and x[1] == ks) or (x[0] == "w" and x[1][0] == ks))
        a("s_waitcnt lgkmcnt(%d)" % min(15, len(issued) - 1 - need))
        mb = "v[%d:%d]" % (88 + (ks % ND) * 4, 91 + (ks % ND) * 4)
        for t in range(6):
            f = wfr(t, ks)
            if f[0] == "l": f = ("v", wbuf[(ks, t)])
            d = "v[%d:%d]" % (16 + 4 * t, 19 + 4 * t)
            a("v_mfma_f32_16x16x32_bf16 %s, %s, %s, %s" % (d, reg(f), mb, "0" if ks == 0 else d))
    a("s_waitcnt vmcnt(0)")
    a("s_nop 6"); a("s_nop 1")
    stamp(a, 1)
    for t in range(6):
        a("v_cvt_pk_bf16_f32 v%d, v%d, v%d" % (16 + 4 * t, 16 + 4 * t, 17 + 4 * t))
        a("v_cvt_pk_bf16_f32 v%d, v%d, v%d" % (17 + 4 * t, 18 + 4 * t, 19 + 4 * t))
    a("s_nop 1")
    SC = 88
    for u in range(3):
        for tile in range(3):
            d = "v[%d:%d]" % (SC + 4 * tile, SC + 3 + 4 * tile)
            A = (16 + 4 * (3 + u)) if tile == 0 else 40 + ((tile - 1) * 3 + u) * 2
            a("v_mfma_f32_16x16x16_bf16 %s, v[%d:%d], v[%d:%d], %s" % (d, A, A + 1, 16 + 4 * u, 17 + 4 * u, "0" if u == 0 else d))
    a("s_mov_b32 exec_lo, 0x00ff00ff"); a("s_mov_b32 exec_hi, 0x00ff00ff")
    a("s_nop 7"); a("s_nop 1")
    a("ds_write_b128 v12, v[%d:%d] offset:256" % (SC + 4, SC + 7))
    a("ds_write_b128 v12, v[%d:%d] offset:768" % (SC + 8, SC + 11))
    a("s_mov_b32 exec_hi, 0")
    a("ds_write_b128 v12, v[%d:%d]" % (SC, SC + 3))
    a("s_mov_b64 exec, -1")
    a("s_waitcnt lgkmcnt(0)"); a("s_barrier")
    stamp(a, 2)
    a("s_cmp_lg_u32 s20, 0"); a("s_cbranch_scc1 chA_rest")
    for w in range(4):
        for hf in range(2):
            a("ds_read_b128 v[%d:%d], v14 offset:%d" % (52 + (w * 2 + hf) * 4, 55 + (w * 2 + hf) * 4, w * 1280 + hf * 16))
    a("v_cmp_gt_u32 vcc, 40, v1")
    a("v_mov_b32 v88, 0xff800000")
    a("s_waitcnt lgkmcnt(4)")
    for j in range(8): a("v_add_f32 v%d, v%d, v%d" % (52 + j, 52 + j, 60 + j))
    a("s_waitcnt lgkmcnt(0)")
    for j in range(8): a("v_add_f32 v%d, v%d, v%d" % (68 + j, 68 + j, 76 + j))
    for j in range(8): a("v_add_f32 v%d, v%d, v%d" % (52 + j, 52 + j, 68 + j))
    V = 52; T = 89
    c = 192 ** -0.5 * 1.4426950408889634
    ch = struct.unpack("<I", struct.pack("<f", c))[0]
    a("v_max3_f32 v%d, v52, v53, v54" % T); a("v_max3_f32 v%d, v55, v56, v57" % (T + 1)); a("v_max3_f32 v%d, v%d, v58, v59" % (T, T)); a("v_max_f32 v%d, v%d, v%d" % (T, T, T + 1))
    a("v_cndmask_b32 v%d, v88, v%d, vcc" % (T, T))
    def xred(op):
        a("s_nop 1")
        a("%s_dpp v%d, v%d, v%d row_ror:8 row_mask:0xf bank_mask:0xf" % (op, T, T, T))
        for sw in ("v_permlane16_swap_b32", "v_permlane32_swap_b32"):
            a("v_mov_b32 v%d, v%d" % (T + 1, T)); a("s_nop 1")
            a("%s v%d, v%d" % (sw, T, T + 1)); a("s_nop 1")
            a("%s v%d, v%d, v%d" % (op, T, T, T + 1))
    xred("v_max_f32")
    a("v_mul_f32 v%d, 0x%08x, v%d" % (T, ch, T)); a("v_mov_b32 v%d, 0x%08x" % (T + 2, ch))
    for j in range(8): a("v_fma_f32 v%d, v%d, v%d, -v%d" % (V + j, V + j, T + 2, T))
    for j in range(8): a("v_exp_f32 v%d, v%d" % (V + j, V + j))
    a("v_mov_b32 v88, 0")
    a("v_add_f32 v%d, v52, v53" % T); a("v_add_f32 v%d, v54, v55" % (T + 1)); a("v_add_f32 v%d, v56, v57" % (T + 3)); a("v_add_f32 v%d, v58, v59" % (T + 4))
    a("v_add_f32 v%d, v%d, v%d" % (T, T, T + 1)); a("v_add_f32 v%d, v%d, v%d" % (T + 3, T + 3, T + 4)); a("v_add_f32 v%d, v%d, v%d" % (T, T, T + 3))
    a("v_cndmask_b32 v%d, v88, v%d, vcc" % (T, T))
    xred("v_add_f32")
    a("v_rcp_f32 v%d, v%d" % (T, T)); a("s_nop 0")
    for j in range(8): a("v_mul_f32 v%d, v%d, v%d" % (V + j, V + j, T))
    for j in range(4): a("v_cvt_pk_bf16_f32 v%d, v%d, v%d" % (60 + j, 52 + 2 * j, 53 + 2 * j))
    a("s_add_u32 s23, s42, s43")
    a("s_mov_b32 exec_hi, 0xff")
    a("buffer_store_dwordx4 v[60:63], v11, s[48:51], s23 offen sc1")
    a("s_mov_b64 exec, -1")
    stamp(a, 3)
    a.put("chA_rest")
    km_and_prefetch()
    a("s_add_u32 s40, s40, 1"); a("s_add_u32 s41, s41, 10240"); a("s_add_u32 s42, s42, 20480")
    a("s_cmp_ge_u32 s40, 64"); a("s_cbranch_scc1 chA_end")
    a("s_cmp_lg_u32 s20, 0"); a("s_cbranch_scc1 chA_slp")
    if CFG["slpA0"]: a("s_sleep %d" % CFG["slpA0"])
    a("s_branch chA_loop")
    a.put("chA_slp")
    if CFG["slpA"]: a("s_sleep %d" % CFG["slpA"])
    a("s_branch chA_loop")
    a.put("chA_end")
    if M.TS:
        a("s_or_b32 s22, s2, s20"); a("s_cmp_lg_u32 s22, 0"); a("s_cbranch_scc1 chA_ts2")
        a("s_mov_b32 s23, 32"); tstamp(a, "s23"); a.put("chA_ts2")
    dbg_out(a, 0, 0)
    if M.MEGA:
        a("s_waitcnt vmcnt(0)"); a("s_barrier")
        a("s_cmp_lg_u32 s20, 0"); a("s_cbranch_scc1 chain_fin")
        for r in range(60, 64): a("v_mov_b32 v%d, 0" % r)
        a("s_add_u32 s23, s42, s43")
        a("s_mov_b32 exec_hi, 0xff")
        a("buffer_store_dwordx4 v[60:63], v11, s[48:51], s23 offen sc1")
        a("s_mov_b64 exec, -1")
        a("s_branch chain_fin")
    a("s_branch chain_end")
    a.put("chain_R")
    a("s_sub_u32 s24, s2, 32")
    a("s_mul_i32 s26, s24, 327680"); a("s_mul_i32 s27, s20, 81920"); a("s_add_u32 s26, s26, s27"); a("s_add_u32 s26, s26, %d" % WS_VO)
    srd_from_ptr(a, 32, 12, 81920, add="s26")
    a("s_mul_i32 s26, s20, %d" % (8 * 640)); a("s_lshl_b32 s27, s24, 3"); a("s_add_u32 s26, s26, s27")
    a("s_lshl_b32 s27, s26, 6"); a("s_add_u32 s27, s27, %d" % WS_U); a("s_sub_u32 s28, %d, s27" % (WS_U + 64 * 32 * 40960))
    srd_from_ptr(a, 36, 12, "s28", add="s27")
    a("s_lshl_b32 s27, s26, 4"); a("s_add_u32 s27, s27, %d" % WS_Y); a("s_sub_u32 s28, %d, s27" % (WS_Y + 64 * 32 * 10240))
    srd_from_ptr(a, 52, 12, "s28", add="s27")
    a("v_mul_u32_u24 v9, 1280, v3"); a("v_lshl_add_u32 v9, v2, 4, v9")
    def vfr(tt, ks):
        idx = tt * 20 + ks
        return ("a", idx * 4) if idx < 64 else ("v", 192 + (idx - 64) * 4)
    for tt in range(4):
        for ks in range(20):
            a("s_mov_b32 s23, %d" % (tt * 20480 + ks * 64))
            a("buffer_load_dwordx4 %s, v9, s[32:35], s23 offen" % reg(vfr(tt, ks)))
    YLB = 16384
    a("v_and_b32 v10, 7, v3")
    a("v_lshrrev_b32 v14, 3, v3"); a("v_lshl_add_u32 v14, v14, 2, v2")
    a("s_lshl_b32 s22, s20, 10"); a("s_add_u32 s22, s22, %d" % YLB)
    for m in range(5):
        a("v_add_u32 v11, %d, v14" % (8 * m))
        a("v_mul_u32_u24 v12, 52, v11"); a("v_lshrrev_b32 v12, 8, v12")
        a("v_mul_u32_u24 v13, 5, v12"); a("v_sub_u32 v13, v11, v13")
        a("v_max_u32 v13, 1, v13"); a("v_subrev_u32 v13, 1, v13")
        a("v_mul_u32_u24 v%d, 40960, v12" % (16 + m)); a("v_lshl_add_u32 v%d, v13, 4, v%d" % (16 + m, 16 + m))
        a("v_lshl_add_u32 v%d, v10, 6, v%d" % (16 + m, 16 + m))
        a("v_lshlrev_b32 v%d, 7, v12" % (184 + m)); a("v_lshl_add_u32 v%d, v10, 4, v%d" % (184 + m, 184 + m)); a("v_add_u32 v%d, s22, v%d" % (184 + m, 184 + m))
    a("s_mul_i32 s23, s20, 5120"); a("v_lshlrev_b32 v21, 7, v14"); a("v_lshl_add_u32 v21, v10, 4, v21"); a("v_add_u32 v21, s23, v21")
    a("v_lshlrev_b32 v22, 4, v3"); a("v_lshl_add_u32 v22, v2, 3, v22"); a("v_add_u32 v22, s22, v22")
    a("v_lshlrev_b32 v24, 4, v1"); a("v_add_u32 v24, s22, v24")
    a("v_lshrrev_b32 v25, 3, v1"); a("v_mul_u32_u24 v25, 10240, v25"); a("v_and_b32 v11, 7, v1"); a("v_lshl_add_u32 v25, v11, 4, v25")
    RB = 24576
    a("v_lshlrev_b32 v27, 4, v1"); a("v_add_u32 v27, %d, v27" % RB); a("s_lshl_b32 s22, s20, 10"); a("v_add_u32 v26, s22, v27")
    a("s_lshl_b32 s22, s24, 7"); a("v_lshlrev_b32 v28, 4, v3"); a("v_lshl_add_u32 v28, v2, 3, v28"); a("v_add_u32 v28, s22, v28")
    a("s_mov_b32 s61, 0"); a("s_mov_b32 s62, 0")
    MS = [32, 44, 56][:S]; PS = [120, 140, 160][:S]
    def u_loads():
        for m in range(5):
            a("buffer_load_dwordx4 v[%d:%d], v%d, s[36:39], s61 offen" % (100 + 4 * m, 103 + 4 * m, 16 + m))
    if M.MEGA:
        a("v_and_b32 v30, 31, v1"); a("v_lshlrev_b32 v30, 2, v30")
        a("s_mov_b32 s22, %d" % F_U)
        fpoll("chR_fu0", 30, "s22")
    u_loads()
    dbg_init(a)
    a.put("chR_loop")
    gather_mem(a, "chR", MS, 44, 41, 5, 0)
    stamp(a, 0)
    def rd(ks): a("ds_read_b128 v[%d:%d], v8 offset:%d" % (84 + (ks % ND) * 4, 87 + (ks % ND) * 4, ks * 512))
    for ks in range(ND - 1): rd(ks)
    for ks in range(20):
        if ks + ND - 1 < 20: rd(ks + ND - 1)
        rem = min(19, ks + ND - 1) - ks
        a("s_waitcnt lgkmcnt(%d)" % rem)
        mb = "v[%d:%d]" % (84 + (ks % ND) * 4, 87 + (ks % ND) * 4)
        for tt in range(4):
            d = "v[%d:%d]" % (68 + 4 * tt, 71 + 4 * tt)
            a("v_mfma_f32_16x16x32_bf16 %s, %s, %s, %s" % (d, mb, reg(vfr(tt, ks)), "0" if ks == 0 else d))
    a("s_nop 7"); a("s_nop 1")
    for tt in range(4):
        a("v_cvt_pk_bf16_f32 v%d, v%d, v%d" % (68 + 4 * tt, 68 + 4 * tt, 69 + 4 * tt))
        a("v_cvt_pk_bf16_f32 v%d, v%d, v%d" % (69 + 4 * tt, 70 + 4 * tt, 71 + 4 * tt))
    a("s_mov_b32 exec_hi, 0")
    for tt in range(4):
        a("ds_write_b64 v22, v[%d:%d] offset:%d" % (68 + 4 * tt, 69 + 4 * tt, tt * 256))
    a("s_mov_b64 exec, -1")
    a("s_waitcnt vmcnt(0) lgkmcnt(0)")
    for m in range(5):
        mask = 0
        for n in range(16):
            for g in range(4):
                if (m * 8 + (n >> 3) * 4 + g) % 5 == 0: mask |= 1 << (g * 16 + n)
        a("s_mov_b32 exec_lo, 0x%x" % (mask & 0xffffffff)); a("s_mov_b32 exec_hi, 0x%x" % (mask >> 32))
        a("ds_read_b128 v[%d:%d], v%d" % (100 + 4 * m, 103 + 4 * m, 184 + m))
    a("s_mov_b64 exec, -1")
    a("ds_read_b128 v[84:87], v24")
    a("s_waitcnt lgkmcnt(0)")
    a("buffer_store_dwordx4 v[84:87], v25, s[52:55], s62 offen%s" % ST())
    stamp(a, 1)
    def issue(k):
        for m in range(5):
            if m < 4: a("buffer_load_dwordx4 v[%d:%d], v21, s[48:51], s42 offen offset:%d sc1" % (PS[k] + 4 * m, PS[k] + 4 * m + 3, m * 1024))
            else:
                a("buffer_load_dwordx4 v[%d:%d], v29, s[48:51], s42 offen sc1" % (PS[k] + 4 * m, PS[k] + 4 * m + 3))
    a("v_add_u32 v29, 4096, v21")
    def succ(k):
        stamp(a, 2)
        for m in range(5):
            d = "v[%d:%d]" % (68 + 4 * (m & 1), 71 + 4 * (m & 1))
            a("v_mfma_f32_16x16x32_bf16 %s, v[%d:%d], v[%d:%d], %s" % (d, 100 + 4 * m, 103 + 4 * m, PS[k] + 4 * m, PS[k] + 4 * m + 3, "0" if m < 2 else d))
    spoll(a, "chRp", S, 5, issue, lambda k: list(range(PS[k], PS[k] + 20)), succ, CFG["slpR"], CFG["gap"])
    a("s_nop 7"); a("s_nop 1")
    for r in range(4): a("v_add_f32 v%d, v%d, v%d" % (68 + r, 68 + r, 72 + r))
    a("ds_write_b128 v26, v[68:71]")
    a("s_waitcnt lgkmcnt(0)"); a("s_barrier")
    a("s_cmp_lg_u32 s20, 0"); a("s_cbranch_scc1 chR_next")
    for w in range(4):
        a("ds_read_b128 v[%d:%d], v27 offset:%d" % (68 + 8 * w, 71 + 8 * w, w * 1024))
        a("ds_read_b128 v[%d:%d], v27 offset:%d" % (72 + 8 * w, 75 + 8 * w, w * 1024 + 40 * 16))
    a("s_waitcnt lgkmcnt(0)")
    for st in (16, 8, 4):
        for r in range(st): a("v_add_f32 v%d, v%d, v%d" % (68 + r, 68 + r, 68 + st + r))
    a("v_cvt_pk_bf16_f32 v68, v68, v69"); a("v_cvt_pk_bf16_f32 v69, v70, v71")
    a("v_min_u32 v68, 0xfffffffe, v68"); a("v_min_u32 v69, 0xfffffffe, v69")
    a("s_add_u32 s23, s41, 10240")
    a("s_mov_b32 exec_lo, 0x00ff00ff"); a("s_mov_b32 exec_hi, 0")
    a("buffer_store_dwordx2 v[68:69], v28, s[44:47], s23 offen sc1")
    a("s_mov_b64 exec, -1")
    stamp(a, 3)
    a.put("chR_next")
    a("s_add_u32 s40, s40, 1"); a("s_add_u32 s41, s41, 10240"); a("s_add_u32 s42, s42, 20480"); a("s_add_u32 s61, s61, %d" % (32 * 40960)); a("s_add_u32 s62, s62, %d" % (32 * 10240))
    a("s_cmp_ge_u32 s40, 64"); a("s_cbranch_scc1 chR_end")
    if M.MEGA:
        a("s_and_b32 s23, s40, 7"); a("s_cmp_lg_u32 s23, 0"); a("s_cbranch_scc1 chR_fu_ok")
        a("s_lshl_b32 s22, s40, 4"); a("s_add_u32 s22, s22, %d" % F_U)
        fpoll("chR_fu", 30, "s22")
    u_loads()
    if CFG["slpRm"]: a("s_sleep %d" % CFG["slpRm"])
    a("s_branch chR_loop")
    a.put("chR_end")
    dbg_out(a, 32, 32)
    if M.MEGA:
        a("s_waitcnt vmcnt(0)")
        spoll(a, "chRz", 1, 5, issue, lambda k: list(range(PS[k], PS[k] + 20)), lambda k: None, 4, 0)
        a("s_barrier")
        a("s_cmp_lg_u32 s20, 0"); a("s_cbranch_scc1 chain_fin")
        a("v_mov_b32 v68, 0"); a("v_mov_b32 v69, 0")
        a("s_add_u32 s23, s41, 10240")
        a("s_mov_b32 exec_lo, 0x00ff00ff"); a("s_mov_b32 exec_hi, 0")
        a("buffer_store_dwordx2 v[68:69], v28, s[44:47], s23 offen sc1")
        a("s_mov_b64 exec, -1")
        a.put("chain_fin"); a("s_branch task_next")
        a.put("chain_end"); a("s_branch mega_exit")
        return K, 512, 256
    a.put("chain_end"); a("s_endpgm")
    return K, 512, 256
```

```python
from gen import *
from gen2 import *

import os
EXP = os.environ.get("EXP", "")
def reads(a, mp, ks, buf, BUF=20):
    if "noread" in EXP: return
    if "b128" in EXP:
        for nt in range(4):
            d = BUF + buf * 16 + nt * 4
            a("ds_read_b128 v[%d:%d], v1000 offset:%d" .replace("v1000", "v250") % (d, d + 3, ks * 4096 + nt * 1024))
        return
    for nt in range(4):
        d = BUF + buf * 16 + nt * 4
        for half in range(2):
            if mp == "nat": a("ds_read_b64_tr_b16 v[%d:%d], v%d offset:%d" % (d + 2 * half, d + 2 * half + 1, 8 + half * 4 + nt, ks * 4096))
            else: a("ds_read_b64_tr_b16 v[%d:%d], v%d offset:%d" % (d + 2 * half, d + 2 * half + 1, 16 + nt, ks * 4096 + half * 2048))

def adj(a, mp, val):
    for r in (range(8, 16) if mp == "nat" else range(16, 20)):
        a("v_add_u32 v%d, %s, v%d" % (r, val, r))

def loop_phase(a, name, S, nks, mp, afr, swap, joined, epi, dma, wait_n, stores, pre_iter=None, post_bar=None):
    a.put(name)
    if pre_iter: pre_iter()
    for half in range(2):
        st = list(stores) if (not joined or half == 0) else []
        if "nostore" in EXP: st = []
        per = (len(st) + nks - 2) // (nks - 1) if st else 0
        for ks in range(nks):
            a("s_waitcnt lgkmcnt(0)")
            if ks == nks - 1:
                if post_bar and half == 1: post_bar(0)
                a("s_waitcnt vmcnt(%d)" % wait_n); a("s_barrier")
                if post_bar and half == 1: post_bar(1)
                dma(half)
                adj(a, mp, str(SLOT) if half == 0 else "s65")
                reads(a, mp, 0, (ks + 1) & 1)
            else:
                reads(a, mp, ks + 1, (ks + 1) & 1)
            for nt in range(4):
                b = "v[%d:%d]" % (20 + (ks & 1) * 16 + nt * 4, 20 + (ks & 1) * 16 + nt * 4 + 3)
                for mt in range(S.nmt):
                    d = S.accr(mt, nt); dd = "v[%d:%d]" % (d, d + 3)
                    k = ks + (half * nks if joined else 0)
                    f = reg(afr(k, mt)); c = "0" if k == 0 else dd
                    if swap: a("v_mfma_f32_16x16x32_bf16 %s, %s, %s, %s" % (dd, b, f, c))
                    else: a("v_mfma_f32_16x16x32_bf16 %s, %s, %s, %s" % (dd, f, b, c))
                if nt == 1:
                    for _ in range(per):
                        if st: st.pop(0)()
        assert not st
        if not joined or half == 1:
            a("s_nop 7"); a("s_nop 1")
            epi(half)
    a("s_sub_u32 s65, %d, s65" % (-81920 & 0xffffffff))
    a("s_xor_b32 s66, s66, 81920")
    a("s_sub_u32 s64, s64, 1"); a("s_cmp_lg_u32 s64, 0"); a("s_cbranch_scc1 %s" % name)

def qku_setup(a):
    a("s_load_dwordx4 s[4:7], s[0:1], %d" % KA["Wq"])
    a("s_load_dwordx4 s[8:11], s[0:1], %d" % KA["Wv"])
    a("s_load_dwordx2 s[12:13], s[0:1], %d" % KA["ws"])
    common_setup(a)
    if not M.MEGA:
        a("s_and_b32 s24, s2, 7"); a("s_lshl_b32 s24, s24, 2"); a("s_bfe_u32 s25, s2, 0x20003"); a("s_add_u32 s24, s24, s25")
        a("s_bfe_u32 s25, s2, 0x30005")
    else:
        a("s_and_b32 s24, s2, 31"); a("s_lshr_b32 s25, s2, 5")
    a("s_waitcnt lgkmcnt(0)")
    a("s_mul_i32 s26, s24, 384")
    a("s_sub_u32 s27, %d, s26" % (640 * 12288))
    a("s_lshl_b32 s29, s25, 2"); a("s_add_u32 s29, s29, s20")
    a("s_mul_i32 s30, s29, %d" % (64 * 1280)); a("s_add_u32 s30, s30, %d" % WS_H)
    srd_from_ptr(a, 48, 12, 64 * 1280, add="s30")
    dma_voff(a, 5, 12288, 244, 245, 246)
    dma_voff(a, 6, 1280, 244, 245, 246)
    tokbase(a, 244, 245)
    a("v_lshlrev_b32 v245, 4, v2")
    a("v_mul_u32_u24 v247, 1280, v244"); a("v_add_u32 v247, v247, v245")
    a("v_mul_u32_u24 v248, 12288, v244"); a("v_add_u32 v248, v248, v245")
    a("v_lshl_add_u32 v249, v3, 6, v245")
    a("v_lshlrev_b32 v250, 4, v1")
def hfr(k, mt):
    idx = mt * 20 + k
    return ("a", idx * 4) if idx < 64 else ("v", 116 + (idx - 64) * 4)
def load_h(a):
    for mt in range(4):
        for k in range(20):
            a("s_mov_b32 s23, %d" % ((mt * 20 + k) * 1024))
            a("buffer_load_dwordx4 %s, v250, s[48:51], s23 offen" % reg(hfr(k, mt)))

def gen_t1(a):
    K = "t1_kernel"
    kbegin(a, K, 64 if "q64" in EXP else (144 if "q144" in EXP else 256))
    def stp(i):
        if "stamp" in EXP: a("s_memtime s[%d:%d]" % (80 + 2 * i, 81 + 2 * i)); a("s_waitcnt lgkmcnt(0)")
    stp(0)
    qku_setup(a)
    srd_from_ptr(a, 32, 4, "s27", add="s26"); srd_from_ptr(a, 36, 6, "s27", add="s26")
    a("s_mul_i32 s30, s29, %d" % (64 * 12288)); a("s_add_u32 s30, s30, s26"); a("s_add_u32 s30, s30, %d" % WS_Q)
    srd_from_ptr(a, 52, 12, (WS_K - WS_Q) + 64 * 12288, add="s30")
    S = Stream(a, 4, 52)
    load_h(a)
    def dma_unit_static(n, half):
        srd = 36 if n < 3 else 32
        for j in range(10):
            a("s_add_u32 m0, s21, %d" % (((n & 1) * 2 + half) * SLOT + j * 4096))
            a("s_mov_b32 s23, %d" % ((n % 3) * 128 + (half * 320 + j * 32) * 12288))
            a("buffer_load_dwordx4 v5, s[%d:%d], s23 offen lds" % (srd, srd + 3))
    for n in range(2):
        for half in range(2): dma_unit_static(n, half)
    a("s_mov_b32 s64, 6"); a("s_mov_b32 s65, %d" % SLOT); a("s_mov_b32 s66, s21")
    a("s_mov_b32 s72, 2")
    a("s_mov_b32 s73, 0x7f000000")
    a("s_mov_b32 s74, 0")
    stp(1)
    a("s_waitcnt vmcnt(30)"); a("s_barrier")
    stp(2)
    reads(a, "nat", 0, 0)
    def pre_iter():
        a("s_min_u32 s23, s72, 5"); a("s_cmp_lt_u32 s23, 3")
        a("s_cselect_b32 s68, s36, s32"); a("s_cselect_b32 s69, s37, s33"); a("s_mov_b32 s70, s34"); a("s_mov_b32 s71, 0x00020000")
        a("s_cselect_b32 s22, 0, 3"); a("s_sub_u32 s67, s23, s22"); a("s_lshl_b32 s67, s67, 7")
        a("s_add_u32 s72, s72, 1")
    def dma(half):
        for j in range(10 if "nodma" not in EXP else 0):
            a("s_add_u32 m0, s66, %d" % (half * SLOT + j * 4096))
            a("s_add_u32 s23, s67, %d" % ((half * 320 + j * 32) * 12288))
            a("buffer_load_dwordx4 v5, s[68:71], s23 offen lds")
    def epi(half):
        for mt in range(4):
            for q in range(2):
                x = S.accr(mt, 2 * q); y = S.accr(mt, 2 * q + 1); d = 180 + (mt * 2 + q) * 4
                a("v_cvt_pk_bf16_f32 v%d, v%d, v%d" % (d, x, x + 1)); a("v_cvt_pk_bf16_f32 v%d, v%d, v%d" % (d + 1, x + 2, x + 3))
                a("v_cvt_pk_bf16_f32 v%d, v%d, v%d" % (d + 2, y, y + 1)); a("v_cvt_pk_bf16_f32 v%d, v%d, v%d" % (d + 3, y + 2, y + 3))
        a("s_cmp_lt_u32 s74, 3"); a("s_cselect_b32 s73, %d, 0" % (WS_K - WS_Q)); a("s_cselect_b32 s22, 0, 3"); a("s_sub_u32 s22, s74, s22")
        a("s_lshl_b32 s22, s22, 7"); a("s_add_u32 s73, s73, s22"); a("s_add_u32 s74, s74, 1")
    def mk(mt, q):
        def f():
            d = 180 + (mt * 2 + q) * 4
            a("s_add_u32 s23, s73, %d" % (mtrow(mt) * 12288 + q * 64))
            a("buffer_store_dwordx4 v[%d:%d], v248, s[52:55], s23 offen%s" % (d, d + 3, ST()))
        return f
    stores = [mk(mt, q) for mt in range(4) for q in range(2)]
    def post_bar(ph):
        if not M.MEGA: return
        lab = "t1_nosig%d" % ph
        a("s_cmp_lg_u32 s74, 3"); a("s_cbranch_scc1 %s" % lab)
        if ph == 0: a("s_waitcnt vmcnt(10)")
        else: M.signal_mid(a)
        a.put(lab)
    loop_phase(a, "t1_loop", S, 10, "nat", hfr, True, True, epi, dma, 20, stores, pre_iter, post_bar)
    stp(3)
    for f in stores: f()
    if "stamp" in EXP:
        a("s_waitcnt vmcnt(0)"); stp(4)
        a("s_load_dwordx2 s[4:5], s[0:1], 120"); a("s_waitcnt lgkmcnt(0)")
        a("s_cmp_lg_u32 s2, 77"); a("s_cbranch_scc1 t1_kernel_end")
        a("s_mov_b32 s92, s4"); a("s_mov_b32 s93, s5"); a("s_mov_b32 s94, 256"); a("s_mov_b32 s95, 0x00020000")
        for i in range(4):
            a("s_sub_u32 s23, s%d, s%d" % (82 + 2 * i, 80 + 2 * i)); a("v_mov_b32 v%d, s23" % (8 + i))
        a("v_mov_b32 v12, 0"); a("v_cmp_eq_u32 vcc, 0, v0"); a("s_and_saveexec_b64 s[22:23], vcc"); a("s_cbranch_execz t1_kernel_end")
        a("buffer_store_dwordx4 v[8:11], v12, s[92:95], 0 offen")
    kend(a, K)
    return K, 512, 256

def gen_t2(a):
    K = "t2_kernel"
    kbegin(a, K, 64 if "q64" in EXP else (144 if "q144" in EXP else 256))
    qku_setup(a)
    srd_from_ptr(a, 40, 8, "s27", add="s26")
    a("s_mul_i32 s28, s24, 245760"); srd_from_ptr(a, 44, 10, 245760, add="s28")
    a("s_lshl_b32 s30, s29, 6"); a("s_add_u32 s30, s30, s24"); a("s_mul_i32 s30, s30, 40960"); a("s_add_u32 s30, s30, %d" % WS_U)
    srd_from_ptr(a, 60, 12, 33 * 40960, add="s30")
    S = Stream(a, 4, 52)
    load_h(a)
    def vfr(k, mt):
        u = k // 2
        if u < 2: return ("v", 180 + ((u * 4 + mt) * 2 + (k & 1)) * 4)
        return ("v", 116 + (mt * 2 + (k & 1)) * 4)
    def dma_static(i):
        if i < 6:
            for j in range(10):
                a("s_add_u32 m0, s21, %d" % ((i % 4) * SLOT + j * 4096))
                a("s_mov_b32 s23, %d" % ((i // 2) * 128 + ((i & 1) * 320 + j * 32) * 12288))
                a("buffer_load_dwordx4 v5, s[40:43], s23 offen lds")
        else:
            for j in range(6):
                a("s_add_u32 m0, s21, %d" % ((i % 4) * SLOT + j * 4096))
                a("s_mov_b32 s23, %d" % ((i - 6) * 128 + j * 32 * 1280))
                a("buffer_load_dwordx4 v6, s[44:47], s23 offen lds")
    for i in range(4): dma_static(i)
    a("s_waitcnt vmcnt(30)"); a("s_barrier")
    reads(a, "nat", 0, 0)
    base = 0
    for i in range(6):
        for ks in range(10):
            k = (i & 1) * 10 + ks
            a("s_waitcnt lgkmcnt(0)")
            if ks == 9:
                cnt = sum((10 if x < 6 else 6) for x in (i + 2, i + 3))
                a("s_waitcnt vmcnt(%d)" % cnt); a("s_barrier")
                dma_static(i + 4)
                if i < 5:
                    adj(a, "nat", str((((i + 1) % 4) - (i % 4)) * SLOT & 0xffffffff)); reads(a, "nat", 0, 0)
                else:
                    adj(a, "pi", str(2 * SLOT)); reads(a, "pi", 0, 0)
            else: reads(a, "nat", ks + 1, (ks + 1) & 1)
            for nt in range(4):
                b = "v[%d:%d]" % (20 + (ks & 1) * 16 + nt * 4, 20 + (ks & 1) * 16 + nt * 4 + 3)
                for mt in range(4):
                    d = S.accr(mt, nt); dd = "v[%d:%d]" % (d, d + 3)
                    a("v_mfma_f32_16x16x32_bf16 %s, %s, %s, %s" % (dd, b, reg(hfr(k, mt)), "0" if k == 0 else dd))
        if i & 1:
            u = i // 2
            a("s_nop 7"); a("s_nop 1")
            for mt in range(4):
                for q in range(2):
                    x = S.accr(mt, 2 * q); y = S.accr(mt, 2 * q + 1); d = vfr(u * 2 + q, mt)[1]
                    a("v_cvt_pk_bf16_f32 v%d, v%d, v%d" % (d, x, x + 1)); a("v_cvt_pk_bf16_f32 v%d, v%d, v%d" % (d + 1, x + 2, x + 3))
                    a("v_cvt_pk_bf16_f32 v%d, v%d, v%d" % (d + 2, y, y + 1)); a("v_cvt_pk_bf16_f32 v%d, v%d, v%d" % (d + 3, y + 2, y + 3))
            a("s_nop 1")
    a("s_mov_b32 s64, 5"); a("s_mov_b32 s65, %d" % (-122880 & 0xffffffff)); a("s_add_u32 s66, s21, 81920")
    a("s_mov_b32 s72, %d" % (4 * 128))
    a("s_mov_b32 s73, 0x7f000000"); a("s_mov_b32 s74, 0")
    def dma(half):
        a("s_min_u32 s22, s72, %d" % (8 * 128))
        for j in range(6):
            a("s_add_u32 m0, s66, %d" % (half * SLOT + j * 4096))
            a("s_add_u32 s23, s22, %d" % (half * 128 + j * 32 * 1280))
            a("buffer_load_dwordx4 v6, s[44:47], s23 offen lds")
        if half == 1: a("s_add_u32 s72, s72, 256")
    def epi(half):
        for m in range(2):
            for nt in range(4):
                x = S.accr(2 * m, nt); y = S.accr(2 * m + 1, nt); d = 148 + (m * 4 + nt) * 4
                a("v_cvt_pk_bf16_f32 v%d, v%d, v%d" % (d, x, x + 1)); a("v_cvt_pk_bf16_f32 v%d, v%d, v%d" % (d + 1, x + 2, x + 3))
                a("v_cvt_pk_bf16_f32 v%d, v%d, v%d" % (d + 2, y, y + 1)); a("v_cvt_pk_bf16_f32 v%d, v%d, v%d" % (d + 3, y + 2, y + 3))
        a("s_mov_b32 s73, s74"); a("s_add_u32 s74, s74, 4096")
    def mk(m, nt):
        def f():
            d = 148 + (m * 4 + nt) * 4
            a("s_add_u32 s23, s73, %d" % (m * 32 * 40960 + nt * 1024))
            a("buffer_store_dwordx4 v[%d:%d], v249, s[60:63], s23 offen%s" % (d, d + 3, ST()))
        return f
    stores = [mk(m, nt) for m in range(2) for nt in range(4)]
    loop_phase(a, "t2_loop", S, 6, "pi", vfr, False, False, epi, dma, 12, stores)
    for f in stores: f()
    kend(a, K)
    return K, 512, 256
```

```python
from gen import *
from gen2 import *
import gen3, gen4, gen5
from gen3 import SPIN
POST = True
WSLP = 32

def signal_mid(a):
    a("v_mov_b32 v251, 0"); a("s_mov_b64 exec, 1")
    a("buffer_store_dword v251, off, s[92:95], s99 sc1")
    a("s_mov_b64 exec, -1")

def wpoll(a, lab, srd, s_off, cnt, shift, slp=None):
    n = (cnt + 63) // 64
    for j in range(n):
        a("v_and_b32 v250, 63, v0"); a("v_add_u32 v250, %d, v250" % (64 * j)); a("v_min_u32 v250, %d, v250" % (cnt - 1)); a("v_lshlrev_b32 v%d, %d, v250" % (252 + j, shift))
    a("s_mov_b32 s60, 0")
    a.put(lab)
    for j in range(n): a("buffer_load_dword v%d, v%d, s[%d:%d], %s offen sc1" % (250 + j, 252 + j, srd, srd + 3, s_off))
    a("s_waitcnt vmcnt(0)")
    if n == 2: a("v_max_u32 v250, v250, v251")
    a("v_cmp_ne_u32 vcc, -1, v250"); a("s_nop 1"); a("s_cmp_eq_u64 vcc, exec"); a("s_cbranch_scc1 %s_ok" % lab)
    a("s_sleep %d" % (slp or WSLP))
    a("s_add_u32 s60, s60, 1"); a("s_cmp_gt_u32 s60, %d" % SPIN); a("s_cbranch_scc1 mega_exit")
    a("s_branch %s" % lab)
    a.put(lab + "_ok")

def ticket(a, off, sdst):
    a("s_cmp_lg_u32 s100, 0"); lab = a.label("tk"); a("s_cbranch_scc1 %s" % lab)
    a("v_mov_b32 v251, 1"); a("s_mov_b32 s23, %d" % off); a("s_mov_b64 exec, 1")
    a("buffer_atomic_add v251, off, s[92:95], s23 sc0 sc1")
    a("s_waitcnt vmcnt(0)")
    a("v_mov_b32 v252, 0"); a("ds_write_b32 v252, v251"); a("s_waitcnt lgkmcnt(0)")
    a("s_mov_b64 exec, -1")
    a.put(lab)
    a("s_barrier")
    a("v_mov_b32 v252, 0"); a("ds_read_b32 v251, v252"); a("s_waitcnt lgkmcnt(0)"); a("s_nop 0")
    a("v_readfirstlane_b32 s%d, v251" % sdst); a("s_nop 3")
    a("s_barrier")

import os
TSR = int(os.environ.get("TSR", "55"))
def wstamp(a, which):
    if not M.TS: return
    lab = a.label("ws")
    a("s_sub_u32 s22, s97, %d" % (576 + 20 * TSR)); a("s_cmp_ge_u32 s22, 20"); a("s_cbranch_scc1 %s" % lab)
    a("s_cmp_lg_u32 s100, 0"); a("s_cbranch_scc1 %s" % lab)
    a("s_lshl_b32 s23, s22, 3"); a("s_add_u32 s23, s23, %d" % (96 + 4 * which)); tstamp(a, "s23")
    a.put(lab)
def gen_ln2m(a):
    a.put("ln2_kernel_entry")
    a("s_load_dwordx2 s[12:13], s[0:1], %d" % KA["ws"])
    a("s_waitcnt lgkmcnt(0)")
    srd_from_ptr(a, 32, 12, 2048 * 2560, add=hex(WS_X1))
    srd_from_ptr(a, 36, 12, 0x2000000)
    a("s_mov_b32 s24, s2"); a("s_mov_b32 s25, 8")
    a.put("ln2_lp")
    gen_ln_body(a, "ln2", True, 32, 36, WS_H2, 3, 4, 24)
    a("s_add_u32 s24, s24, 1"); a("s_sub_u32 s25, s25, 1"); a("s_cmp_lg_u32 s25, 0"); a("s_cbranch_scc1 ln2_lp")
    a("s_branch task_done")

def gen_mega(a):
    K = "mega_kernel"
    M.MEGA = True; M.signal_mid = staticmethod(signal_mid)
    kernel_begin(a, K)
    a("s_cmp_ge_u32 s2, 256"); a("s_cbranch_scc1 mega_exit2")
    a("s_load_dwordx2 s[12:13], s[0:1], %d" % KA["ws"])
    a("v_lshrrev_b32 v4, 6, v0"); a("s_nop 0"); a("v_readfirstlane_b32 s100, v4")
    a("s_waitcnt lgkmcnt(0)")
    srd_from_ptr(a, 92, 12, 0x10000)
    srd_from_ptr(a, 88, 12, 66 * 10240, add=hex(WS_MEM))
    if M.TS:
        a("s_load_dwordx2 s[14:15], s[0:1], %d" % KA["dbg"]); a("s_waitcnt lgkmcnt(0)")
        srd_from_ptr(a, 80, 14, 256)
    ticket(a, WS_TKT, 96)
    if M.TS:
        a("s_cmp_lg_u32 s96, 0"); a("s_cbranch_scc1 ts_a"); a("s_mov_b32 s23, 36"); tstamp(a, "s23"); a.put("ts_a")
    a("s_cmp_ge_u32 s96, 112"); a("s_cbranch_scc1 task_take")
    a("s_mov_b32 s2, s96"); a("s_branch chain_entry")
    a.put("task_done")
    a("s_mov_b64 exec, -1")
    a("s_waitcnt vmcnt(0) lgkmcnt(0)"); a("s_barrier")
    wstamp(a, 1)
    a("s_cmp_lg_u32 s100, 0"); a("s_cbranch_scc1 task_take")
    a("v_mov_b32 v251, 0"); a("s_mov_b64 exec, 1")
    a("buffer_store_dword v251, off, s[92:95], s98 sc1")
    a("s_mov_b64 exec, -1")
    a("s_branch task_take")
    a.put("task_next")
    a("s_mov_b64 exec, -1")
    a("s_waitcnt vmcnt(0) lgkmcnt(0)"); a("s_barrier")
    a.put("task_take")
    ticket(a, WS_TKT + 128, 97)
    a("s_cmp_ge_u32 s97, 576"); a("s_cbranch_scc1 task_post")
    a("s_cmp_ge_u32 s97, 64"); a("s_cbranch_scc1 task_t")
    a("s_mov_b32 s2, s97"); a("s_lshl_b32 s98, s97, 2"); a("s_add_u32 s98, s98, %d" % F_L1); a("s_branch ln1_kernel_entry")
    a.put("task_t")
    a("s_sub_u32 s24, s97, 64")
    a("s_cmp_lg_u32 s100, 0"); a("s_cbranch_scc1 task_t_go")
    a("s_lshr_b32 s22, s24, 6"); a("s_lshl_b32 s22, s22, 5"); a("s_add_u32 s22, s22, %d" % F_L1)
    wpoll(a, "w_t", 92, "s22", 8, 2, 8)
    a.put("task_t_go"); a("s_barrier")
    a("s_lshr_b32 s22, s24, 6"); a("s_bfe_u32 s23, s24, 0x50001"); a("s_lshl_b32 s2, s22, 5"); a("s_add_u32 s2, s2, s23")
    a("s_lshl_b32 s22, s2, 2")
    a("s_bitcmp1_b32 s24, 0"); a("s_cbranch_scc1 task_t1")
    a("s_add_u32 s98, s22, %d" % F_U); a("s_branch t2_kernel_entry")
    a.put("task_t1")
    a("s_add_u32 s98, s22, %d" % F_Q); a("s_add_u32 s99, s22, %d" % F_K); a("s_branch t1_kernel_entry")
    a.put("task_post")
    if M.TS:
        a("s_cmp_lg_u32 s97, 576"); a("s_cbranch_scc1 ts_b"); a("s_mov_b32 s23, 40"); tstamp(a, "s23"); a.put("ts_b")
    if not POST:
        a("s_branch mega_exit")
    else:
        a("s_sub_u32 s22, s97, 576"); a("s_mul_i32 s24, s22, 3277"); a("s_lshr_b32 s24, s24, 16")
        a("s_mul_i32 s23, s24, 20"); a("s_sub_u32 s25, s22, s23")
        a("s_cmp_ge_u32 s24, 74"); a("s_cbranch_scc1 mega_exit")
        a("s_cmp_ge_u32 s25, 14"); a("s_cbranch_scc1 task_ffn")
        a("s_cmp_ge_u32 s25, 13"); a("s_cbranch_scc1 task_ln2")
        a("s_cmp_ge_u32 s25, 8"); a("s_cbranch_scc1 task_po")
        a("s_cmp_ge_u32 s24, 64"); a("s_cbranch_scc1 task_take")
        a("s_lshl_b32 s2, s24, 3"); a("s_add_u32 s2, s2, s25"); a("s_lshl_b32 s98, s2, 2"); a("s_add_u32 s98, s98, %d" % F_PA)
        a("s_cmp_lg_u32 s100, 0"); a("s_cbranch_scc1 task_pa_go")
        a("s_lshr_b32 s22, s24, 3"); a("s_lshl_b32 s22, s22, 7"); a("s_add_u32 s22, s22, %d" % F_Q)
        wpoll(a, "w_pa1", 92, "s22", 32, 2)
        a("s_add_u32 s22, s24, 2"); a("s_mul_i32 s22, s22, 10240")
        wpoll(a, "w_pa2", 88, "s22", 80, 7)
        a.put("task_pa_go"); wstamp(a, 0); a("s_barrier"); a("s_branch pattn_kernel_entry")
        a.put("task_po")
        a("s_sub_u32 s24, s24, 1"); a("s_cmp_ge_u32 s24, 64"); a("s_cbranch_scc1 task_take")
        a("s_sub_u32 s25, s25, 8"); a("s_mul_i32 s2, s24, 5"); a("s_add_u32 s2, s2, s25")
        a("s_lshl_b32 s98, s24, 5"); a("s_lshl_b32 s22, s25, 2"); a("s_add_u32 s98, s98, s22"); a("s_add_u32 s98, s98, %d" % F_PO)
        a("s_cmp_lg_u32 s100, 0"); a("s_cbranch_scc1 task_po_go")
        a("s_lshl_b32 s22, s24, 5"); a("s_add_u32 s22, s22, %d" % F_PA)
        wpoll(a, "w_po", 92, "s22", 8, 2)
        a.put("task_po_go"); wstamp(a, 0); a("s_barrier"); a("s_branch pout_kernel_entry")
        a.put("task_ln2")
        a("s_sub_u32 s24, s24, 2"); a("s_cmp_ge_u32 s24, 64"); a("s_cbranch_scc1 task_take")
        a("s_mov_b32 s2, s24"); a("s_lshl_b32 s98, s24, 2"); a("s_add_u32 s98, s98, %d" % F_L2)
        a("s_cmp_lg_u32 s100, 0"); a("s_cbranch_scc1 task_ln2_go")
        a("s_lshl_b32 s22, s24, 5"); a("s_add_u32 s22, s22, %d" % F_PO)
        wpoll(a, "w_ln2", 92, "s22", 5, 2)
        a.put("task_ln2_go"); wstamp(a, 0); a("s_barrier"); a("s_branch ln2_kernel_entry")
        a.put("task_ffn")
        a("s_cmp_lt_u32 s24, 10"); a("s_cbranch_scc1 task_take")
        a("s_sub_u32 s24, s24, 10"); a("s_mul_i32 s24, s24, 6"); a("s_add_u32 s24, s24, s25"); a("s_sub_u32 s24, s24, 14")
        a("s_mul_i32 s25, s24, 1366"); a("s_lshr_b32 s25, s25, 16")
        a("s_mul_i32 s22, s25, 48"); a("s_sub_u32 s24, s24, s22")
        a("s_cmp_ge_u32 s24, 44"); a("s_cbranch_scc1 task_take")
        a("s_cmp_ge_u32 s24, 24"); a("s_cbranch_scc1 task_f2")
        a("s_lshl_b32 s2, s24, 3"); a("s_add_u32 s2, s2, s25")
        a("s_lshl_b32 s98, s25, 7"); a("s_lshl_b32 s22, s24, 2"); a("s_add_u32 s98, s98, s22"); a("s_add_u32 s98, s98, %d" % F_F1)
        a("s_cmp_lg_u32 s100, 0"); a("s_cbranch_scc1 task_f1_go")
        a("s_lshl_b32 s22, s25, 5"); a("s_add_u32 s22, s22, %d" % F_L2)
        wpoll(a, "w_f1", 92, "s22", 8, 2)
        a.put("task_f1_go"); wstamp(a, 0); a("s_barrier"); a("s_branch ffn1_kernel_entry")
        a.put("task_f2")
        a("s_sub_u32 s24, s24, 24"); a("s_lshl_b32 s2, s25, 1")
        a("s_cmp_lt_u32 s24, 10"); a("s_cbranch_scc1 task_f2a")
        a("s_sub_u32 s24, s24, 10"); a("s_add_u32 s2, s2, 1")
        a.put("task_f2a")
        a("s_lshl_b32 s22, s24, 4"); a("s_add_u32 s2, s2, s22")
        a("s_mov_b32 s98, %d" % (F_F1 + 2048))
        a("s_cmp_lg_u32 s100, 0"); a("s_cbranch_scc1 task_f2_go")
        a("s_lshl_b32 s22, s25, 7"); a("s_add_u32 s22, s22, %d" % F_F1)
        wpoll(a, "w_f2", 92, "s22", 24, 2)
        a.put("task_f2_go"); wstamp(a, 0); a("s_barrier"); a("s_branch ffn2_kernel_entry")
    a.put("mega_exit")
    if M.TS:
        a("s_cmp_ge_u32 s2, 100000"); a("s_cbranch_scc1 ts_c")
        a("s_mov_b32 s23, 44"); tstamp(a, "s23", atomic=True); a.put("ts_c")
    a("s_endpgm")
    a.put("mega_exit2"); a("s_endpgm")
    gen4.gen_chain(a)
    gen5.gen_t2(a); gen5.gen_t1(a)
    if POST:
        gen3.gen_pattn(a); gen3.gen_pout(a); gen_ln_seg(a, "ln2_kernel", True, "ws", WS_X1, 2048 * 2560, WS_H2, 3, 4); gen_ln_seg(a, "ln1_kernel", False, "x", 0, 2048 * 1280, WS_H, 0, 1); gen_ffn1(a); gen_ffn2(a)
    M.MEGA = False
    return K, 512, 256

def gen_ln_seg(a, name, src_f32, src_ka, src_add, src_size, dst_off, shift_i, scale_i):
    NR = 8
    a.put(name + "_entry")
    a("s_load_dwordx2 s[12:13], s[0:1], %d" % KA["ws"])
    a("s_load_dwordx2 s[6:7], s[0:1], %d" % KA[src_ka])
    a("v_and_b32 v1, 63, v0"); a("v_lshlrev_b32 v3, 2, v1"); a("v_lshlrev_b32 v5, 3, v1")
    a("s_waitcnt lgkmcnt(0)")
    srd_from_ptr(a, 32, 6, src_size, add=(hex(src_add) if src_add else None))
    srd_from_ptr(a, 36, 12, 0x2000000)
    a("s_lshl_b32 s24, s2, 5"); a("s_lshl_b32 s25, s100, 3"); a("s_add_u32 s24, s24, s25")
    X = 20; T = 160
    rs = 2560 if src_f32 else 1280
    a("s_mul_i32 s26, s24, %d" % rs)
    for r in range(NR):
        a("s_add_u32 s23, s26, %d" % (r * rs))
        for j in range(5):
            if src_f32: a("buffer_load_dwordx2 v[%d:%d], v5, s[32:35], s23 offen offset:%d" % (X + r * 10 + 2 * j, X + r * 10 + 2 * j + 1, j * 512))
            else: a("buffer_load_dword v%d, v3, s[32:35], s23 offen offset:%d" % (100 + r * 5 + j, j * 256))
    for j in range(5):
        a("s_mov_b32 s14, %d" % (WS_MOD + scale_i * 2560 + j * 512))
        a("buffer_load_dwordx2 v[%d:%d], v5, s[36:39], s14 offen" % (140 + 2 * j, 141 + 2 * j))
        a("s_mov_b32 s14, %d" % (WS_MOD + shift_i * 2560 + j * 512))
        a("buffer_load_dwordx2 v[%d:%d], v5, s[36:39], s14 offen" % (150 + 2 * j, 151 + 2 * j))
    a("v_lshrrev_b32 v6, 4, v1"); a("v_lshlrev_b32 v4, 10, v6"); a("v_bfe_u32 v6, v1, 2, 2"); a("v_lshl_add_u32 v4, v6, 8, v4"); a("v_and_b32 v6, 3, v1"); a("v_lshl_add_u32 v4, v6, 2, v4")
    a("s_lshr_b32 s27, s2, 1"); a("s_mul_i32 s27, s27, 81920"); a("s_and_b32 s28, s2, 1"); a("s_mul_i32 s28, s28, 40960"); a("s_add_u32 s27, s27, s28")
    a("s_lshl_b32 s28, s100, 6"); a("v_add_u32 v4, s28, v4"); a("s_add_u32 s27, s27, %d" % dst_off)
    a("s_waitcnt vmcnt(0)")
    S = [168 + r for r in range(NR)]; TM = [T + i for i in range(NR)]
    TM = [176 + i for i in range(NR + 1)]
    for r in range(NR):
        x = X + r * 10
        if not src_f32:
            for j in range(5):
                a("v_lshlrev_b32 v%d, 16, v%d" % (x + 2 * j, 100 + r * 5 + j)); a("v_and_b32 v%d, 0xffff0000, v%d" % (x + 2 * j + 1, 100 + r * 5 + j))
        a("v_add_f32 v%d, v%d, v%d" % (S[r], x, x + 1))
        for j in range(2, 10): a("v_add_f32 v%d, v%d, v%d" % (S[r], S[r], x + j))
    wave_sum(a, S, TM, 3, NR)
    for r in range(NR):
        x = X + r * 10
        a("v_mul_f32 v%d, 0x3acccccd, v%d" % (S[r], S[r]))
        for j in range(10): a("v_sub_f32 v%d, v%d, v%d" % (x + j, x + j, S[r]))
        a("v_mul_f32 v%d, v%d, v%d" % (S[r], x, x))
        for j in range(1, 10): a("v_fmac_f32 v%d, v%d, v%d" % (S[r], x + j, x + j))
    wave_sum(a, S, TM, 3, NR)
    for j in range(10): a("v_add_f32 v%d, 1.0, v%d" % (140 + j, 140 + j))
    for r in range(NR):
        x = X + r * 10
        a("v_mov_b32 v7, 0x3727c5ac"); a("v_fmac_f32 v7, 0x3acccccd, v%d" % S[r]); a("v_rsq_f32 v7, v7"); a("s_nop 0")
        for j in range(10):
            a("v_mul_f32 v%d, v%d, v7" % (x + j, x + j)); a("v_fma_f32 v%d, v%d, v%d, v%d" % (x + j, x + j, 140 + j, 150 + j))
        for j in range(5):
            a("v_cvt_pk_bf16_f32 v%d, v%d, v%d" % (x + j, x + 2 * j, x + 2 * j + 1))
            a("ds_write_b32 v4, v%d offset:%d" % (x + j, (r >> 2) * 20480 + (r & 3) * 16 + j * 4096))
    a("s_waitcnt lgkmcnt(0)"); a("s_barrier")
    a("v_lshlrev_b32 v5, 4, v0")
    for j in range(10): a("ds_read_b128 v[%d:%d], v5 offset:%d" % (20 + 4 * j, 23 + 4 * j, j * 4096))
    for j in range(10):
        a("s_waitcnt lgkmcnt(%d)" % (9 - j))
        a("s_add_u32 s14, s27, %d" % (j * 4096))
        a("buffer_store_dwordx4 v[%d:%d], v5, s[36:39], s14 offen%s" % (20 + 4 * j, 23 + 4 * j, ST()))
    a("s_branch task_done")
```

```python
import sys, os
from gen import *
from gen2 import *
from gen3 import *
import gen4
from gen4 import gen_chain
from gen5 import *
import gen6

def build(path, upto=99):
    a = Asm()
    specs = []
    mega = os.environ.get("MEGA", "")
    if mega == "2":
        specs.append((gen_prep, 160, 8192))
    else:
        specs.append((gen_prep, 160, 8192))
        specs.append((gen_vo_ln, 640, 163840))
    M.TS = bool(os.environ.get("TS", ""))
    if mega:
        gen6.POST = (mega == "2")
        gen6.NT0 = int(os.environ.get("NT0", "512"))
        specs.append((gen6.gen_mega, 256, 163840))
    else:
        specs.append((gen_t2, 256, 163840))
        specs.append((gen_t1, 256, 163840))
    if upto >= 4 and not mega:
        specs.append((gen_chain, 112, 163840))
    if upto >= 5 and mega != "2":
        specs.append((gen_pattn, 512, 0))
        specs.append((gen_pout, 320, 65536))
        specs.append((gen_ln2, 512, 0))
        specs.append((gen_ffn1, 192, 163840))
        specs.append((gen_ffn2, 160, 163840))
    hdr = []
    for g, grid, lds in specs:
        r = g(a)
        name, vg = r[0], r[1]
        acc = r[2] if len(r) > 2 else None
        kernel_desc(a, name, vg, accum=acc)
        hdr.append("; @launch kernel=%s grid=(%d,1,1) block=(256,1,1) lds=%d" % (name, grid, lds))
    body = a.text()
    import re
    body = "\n".join(l.strip() for l in body.split("\n"))
    body = re.sub(r"ds_read_b64_tr_b16 (\S+), (\S+) offset:(\d+)", r"tr \1,\2,\3", body)
    body = body.replace("v_mfma_f32_16x16x32_bf16 ", "mf ").replace("v_cvt_pk_bf16_f32 ", "cv ").replace(", ", ",")
    mac = """.macro mf a,b,c,d
v_mfma_f32_16x16x32_bf16 \\a,\\b,\\c,\\d
.endm
.macro tr a,b,c
ds_read_b64_tr_b16 \\a,\\b offset:\\c
.endm
.macro cv a,b,c
v_cvt_pk_bf16_f32 \\a,\\b,\\c
.endm
"""
    txt = "\n".join(hdr) + "\n.amdgcn_target \"amdgcn-amd-amdhsa--gfx950\"\n" + mac + body
    open(path, "w").write(txt)
    return len(txt)

if __name__ == "__main__":
    path = sys.argv[1]
    import gen3
    gen3.DBG = len(sys.argv) > 3
    import os, json
    if os.environ.get('CFG'): gen4.CFG.update(json.loads(os.environ['CFG']))
    upto = int(sys.argv[2]) if len(sys.argv) > 2 else 99
    print(build(path, upto))
```

```python
import sys
from ag import *

NAME = "adaLN_cond__memory_aug_recurrent_mem_tr__dense_activation_squared_relu__prompt"

KA = dict(x=0, mem0=8, Wq=16, Wk=24, Wv=32, Wo=40, seg=48, Bx=56, w1=64, b1=72, w2=80, b2=88, c=96, wmod=104, out=112, dbg=120, ws=128)

WS_MOD = 0x0
WS_MEM = 0x10000
WS_P   = 0x100000
WS_KM  = 0x280000
WS_X1  = 0x900000
WS_PP  = 0xE00000
WS_F   = 0x1300000
WS_H   = 0x1900000
WS_H2  = 0x1C00000
WS_Q   = 0x2000000
WS_K   = 0x3800000
WS_VO  = 0x5000000
WS_U   = 0x7000000
WS_Y   = 0xD000000
WS_FLG = 0x8000
WS_TKT = 0x7F00
F_U, F_K, F_Q, F_PA, F_PO, F_L2, F_L1, F_F1, F_VO = [WS_FLG + x for x in (0, 1024, 2048, 4096, 8192, 12288, 12544, 13312, 16384)]
class M: MEGA = False; TS = False; tpoll = None
def tstamp(a, idx_expr, atomic=None, core=False):
    if not M.TS: return
    a("s_memrealtime s[86:87]" if not core else "s_memtime s[86:87]"); a("s_waitcnt lgkmcnt(0)")
    a("v_mov_b32 v254, s86"); a("s_mov_b64 s[84:85], exec"); a("s_mov_b64 exec, 1")
    if atomic: a("buffer_atomic_umax v254, off, s[80:83], %s" % idx_expr)
    else: a("buffer_store_dword v254, off, s[80:83], %s" % idx_expr)
    a("s_mov_b64 exec, s[84:85]")
def ST(): return " sc1" if M.MEGA else ""
def kbegin(a, K, nwg):
    if M.MEGA: a.put(K + "_entry"); return
    kernel_begin(a, K)
    a("s_cmp_ge_u32 s2, %d" % nwg); a("s_cbranch_scc1 %s_end" % K)
def kend(a, K):
    if M.MEGA: a("s_branch task_done"); return
    a.put(K + "_end"); a("s_endpgm")
F_X = WS_FLG + 20480
WS_SIZE = 0x10000000
SRD3 = 0x00020000

def srd_from_ptr(a, sd, sp, nbytes, add=None):
    if add is None:
        a("s_mov_b32 s%d, s%d" % (sd, sp))
        a("s_mov_b32 s%d, s%d" % (sd + 1, sp + 1))
    else:
        a("s_add_u32 s%d, s%d, %s" % (sd, sp, add))
        a("s_addc_u32 s%d, s%d, 0" % (sd + 1, sp + 1))
    a("s_mov_b32 s%d, %s" % (sd + 2, hex(nbytes) if isinstance(nbytes, int) else nbytes))
    a("s_mov_b32 s%d, 0x00020000" % (sd + 3))

def wave_sum(a, v, tmp, vaddr, n=1):
    for m in (1, 2, 4, 8, 16, 32):
        a("v_xor_b32 v%d, %d, v%d" % (tmp[n], m * 4, vaddr))
        for i in range(n):
            a("ds_bpermute_b32 v%d, v%d, v%d" % (tmp[i], tmp[n], v[i]))
        a("s_waitcnt lgkmcnt(0)")
        for i in range(n):
            a("v_add_f32 v%d, v%d, v%d" % (v[i], v[i], tmp[i]))

def gen_prep(a, emb=False):
    K = "prep_kernel"
    NMOD = 120
    NCLR = 8 if emb else 40
    if not emb:
        kernel_begin(a, K)
        a("s_cmp_ge_u32 s2, %d" % (NMOD + NCLR))
        a("s_cbranch_scc1 prep_end")
    a("s_load_dwordx2 s[4:5], s[0:1], %d" % KA["ws"])
    a("s_load_dwordx4 s[8:11], s[0:1], %d" % KA["c"])
    a("s_load_dwordx2 s[12:13], s[0:1], %d" % KA["mem0"])
    a("s_waitcnt lgkmcnt(0)")
    a("s_cmp_ge_u32 s2, %d" % NMOD)
    a("s_cbranch_scc1 prep_clear")
    srd_from_ptr(a, 16, 8, 1280)
    srd_from_ptr(a, 20, 10, 640 * 7680)
    srd_from_ptr(a, 24, 4, 16384)
    for i in range(3):
        a("v_add_u32 v1, %d, v0" % (256 * i))
        a("v_lshlrev_b32 v2, 1, v1")
        a("buffer_load_ushort v%d, v2, s[16:19], 0 offen" % (3 + i))
    a("s_waitcnt vmcnt(0)")
    for i in range(3):
        v = 3 + i
        a("v_lshlrev_b32 v%d, 16, v%d" % (v, v))
        a("v_mul_f32 v6, 0xbfb8aa3b, v%d" % v)
        a("v_exp_f32 v6, v6")
        a("s_nop 0")
        a("v_add_f32 v6, 1.0, v6")
        a("v_rcp_f32 v6, v6")
        a("s_nop 0")
        a("v_mul_f32 v6, v%d, v6" % v)
        a("v_cvt_pk_bf16_f32 v6, v6, v6")
        a("v_lshlrev_b32 v6, 16, v6")
        a("v_add_u32 v1, %d, v0" % (256 * i))
        a("v_lshlrev_b32 v2, 2, v1")
        a("ds_write_b32 v2, v6")
    a("s_waitcnt lgkmcnt(0)")
    a("s_barrier")
    a("v_and_b32 v1, 15, v0")
    a("v_lshrrev_b32 v2, 4, v0")
    a("v_mul_u32_u24 v3, 7680, v2")
    a("v_lshlrev_b32 v4, 2, v1")
    a("v_add_u32 v3, v3, v4")
    a("s_lshl_b32 s3, s2, 6")
    a("v_add_u32 v3, s3, v3")
    a("v_lshlrev_b32 v5, 2, v2")
    a("v_mov_b32 v6, 0")
    a("v_mov_b32 v7, 0")
    for blk in range(5):
        for i in range(8):
            ii = blk * 8 + i
            a("s_mov_b32 s14, %d" % (ii * 16 * 7680))
            a("buffer_load_dword v%d, v3, s[20:23], s14 offen" % (16 + i))
            a("ds_read_b32 v%d, v5 offset:%d" % (24 + i, ii * 64))
        a("s_waitcnt vmcnt(0) lgkmcnt(0)")
        for i in range(8):
            a("v_lshlrev_b32 v8, 16, v%d" % (16 + i))
            a("v_and_b32 v9, 0xffff0000, v%d" % (16 + i))
            a("v_fmac_f32 v6, v8, v%d" % (24 + i))
            a("v_fmac_f32 v7, v9, v%d" % (24 + i))
    a("s_barrier")
    a("v_lshlrev_b32 v8, 7, v2")
    a("v_lshlrev_b32 v9, 3, v1")
    a("v_add_u32 v8, v8, v9")
    a("ds_write_b64 v8, v[6:7] offset:4096")
    a("s_waitcnt lgkmcnt(0)")
    a("s_barrier")
    a("v_cmp_gt_u32 vcc, 32, v0")
    a("s_and_saveexec_b64 s[14:15], vcc")
    a("s_cbranch_execz prep_end")
    a("v_lshlrev_b32 v8, 2, v0")
    for i in range(16):
        a("ds_read_b32 v%d, v8 offset:%d" % (16 + i, 4096 + i * 128))
    a("s_waitcnt lgkmcnt(0)")
    for st in (8, 4, 2, 1):
        for i in range(st):
            a("v_add_f32 v%d, v%d, v%d" % (16 + i, 16 + i, 16 + i + st))
    a("v_cvt_pk_bf16_f32 v16, v16, v16")
    a("v_lshlrev_b32 v16, 16, v16")
    a("s_lshl_b32 s3, s2, 7")
    a("v_add_u32 v8, s3, v8")
    a("buffer_store_dword v16, v8, s[24:27], 0 offen")
    a("s_branch prep_end")
    a.put("prep_clear")
    c0 = WS_MEM + 10240
    csz = WS_P + 65 * 20480 - c0
    srd_from_ptr(a, 16, 4, csz, add=hex(c0))
    a("s_sub_u32 s3, s2, %d" % NMOD)
    a("s_lshl_b32 s14, s3, 8")
    a("v_add_u32 v1, s14, v0")
    a("v_lshlrev_b32 v1, 4, v1")
    for r in range(4, 8):
        a("v_mov_b32 v%d, -1" % r)
    nch = (csz // 16 + NCLR * 256 - 1) // (NCLR * 256)
    for i in range(nch):
        a("s_mov_b32 s14, %d" % (i * NCLR * 256 * 16))
        a("buffer_store_dwordx4 v[4:7], v1, s[16:19], s14 offen")
    a("s_cmp_lg_u32 s3, 1")
    a("s_cbranch_scc1 prep_nf")
    srd_from_ptr(a, 28, 4, 0x10000)
    a("v_lshlrev_b32 v1, 4, v0")
    for i in range(8):
        a("s_mov_b32 s14, %d" % (WS_FLG + i * 4096))
        a("buffer_store_dwordx4 v[4:7], v1, s[28:31], s14 offen")
    for r in range(12, 16): a("v_mov_b32 v%d, 0" % r)
    a("v_cmp_gt_u32 vcc, 16, v0"); a("s_and_saveexec_b64 s[14:15], vcc"); a("s_cbranch_execz prep_end")
    a("s_mov_b32 s16, %d" % WS_TKT)
    a("buffer_store_dwordx4 v[12:15], v1, s[28:31], s16 offen")
    a("s_branch prep_end")
    a.put("prep_nf")
    a("s_cmp_lg_u32 s3, 0")
    a("s_cbranch_scc1 prep_end")
    srd_from_ptr(a, 20, 12, 10240)
    srd_from_ptr(a, 24, 4, 10240, add=hex(WS_MEM))
    for i in range(3):
        a("v_add_u32 v1, %d, v0" % (256 * i))
        a("v_mul_u32_u24 v2, 0x334, v1")
        a("v_lshrrev_b32 v2, 16, v2")
        a("v_mul_u32_u24 v3, 80, v2")
        a("v_sub_u32 v3, v1, v3")
        a("v_lshlrev_b32 v8, 4, v1")
        a("buffer_load_dwordx4 v[12:15], v8, s[20:23], 0 offen")
        a("v_lshlrev_b32 v9, 7, v3")
        a("v_lshlrev_b32 v10, 4, v2")
        a("v_add_u32 v9, v9, v10")
        a("v_mov_b32 v10, 0x7fffff00")
        a("v_cmp_gt_u32 vcc, 640, v1")
        a("s_nop 1")
        a("v_cndmask_b32 v9, v10, v9, vcc")
        a("s_waitcnt vmcnt(0)")
        a("buffer_store_dwordx4 v[12:15], v9, s[24:27], 0 offen")
        a("s_nop 1")
    a.put("prep_end")
    a("s_endpgm")
    return K, 64

def gen_ln_body(a, pfx, src_f32, s_src, s_ws, dst_off, shift_i, scale_i, wg_sgpr):
    a("v_and_b32 v1, 63, v0")
    a("v_lshrrev_b32 v2, 6, v0")
    a("s_lshl_b32 s3, s%d, 2" % wg_sgpr)
    a("v_add_u32 v2, s3, v2")
    a("v_lshlrev_b32 v3, 2, v1")
    if src_f32:
        a("v_mul_u32_u24 v4, 2560, v2")
        a("v_lshlrev_b32 v5, 3, v1")
        a("v_add_u32 v4, v4, v5")
        for j in range(5):
            a("buffer_load_dwordx2 v[%d:%d], v4, s[%d:%d], 0 offen offset:%d" % (10 + 2 * j, 11 + 2 * j, s_src, s_src + 3, j * 512))
    else:
        a("v_mul_u32_u24 v4, 1280, v2")
        a("v_add_u32 v4, v4, v3")
        for j in range(5):
            a("buffer_load_dword v%d, v4, s[%d:%d], 0 offen offset:%d" % (20 + j, s_src, s_src + 3, j * 256))
    a("v_lshlrev_b32 v5, 3, v1")
    for j in range(5):
        a("s_mov_b32 s14, %d" % (WS_MOD + scale_i * 2560 + j * 512))
        a("buffer_load_dwordx2 v[%d:%d], v5, s[%d:%d], s14 offen" % (30 + 2 * j, 31 + 2 * j, s_ws, s_ws + 3))
        a("s_mov_b32 s14, %d" % (WS_MOD + shift_i * 2560 + j * 512))
        a("buffer_load_dwordx2 v[%d:%d], v5, s[%d:%d], s14 offen" % (40 + 2 * j, 41 + 2 * j, s_ws, s_ws + 3))
    a("s_waitcnt vmcnt(0)")
    if not src_f32:
        for j in range(5):
            a("v_lshlrev_b32 v%d, 16, v%d" % (10 + 2 * j, 20 + j))
            a("v_and_b32 v%d, 0xffff0000, v%d" % (11 + 2 * j, 20 + j))
    a("v_add_f32 v6, v10, v11")
    for j in range(2, 10):
        a("v_add_f32 v6, v6, v%d" % (10 + j))
    wave_sum(a, [6], [7, 8], 3)
    a("v_mul_f32 v6, 0x3acccccd, v6")
    for j in range(10):
        a("v_sub_f32 v%d, v%d, v6" % (10 + j, 10 + j))
    a("v_mul_f32 v6, v10, v10")
    for j in range(1, 10):
        a("v_fmac_f32 v6, v%d, v%d" % (10 + j, 10 + j))
    wave_sum(a, [6], [7, 8], 3)
    a("v_mov_b32 v7, 0x3727c5ac")
    a("v_fmac_f32 v7, 0x3acccccd, v6")
    a("v_rsq_f32 v7, v7")
    a("s_nop 0")
    for j in range(10):
        a("v_mul_f32 v%d, v%d, v7" % (10 + j, 10 + j))
        a("v_add_f32 v%d, 1.0, v%d" % (30 + j, 30 + j))
        a("v_fma_f32 v%d, v%d, v%d, v%d" % (10 + j, 10 + j, 30 + j, 40 + j))
    a("v_lshrrev_b32 v4, 6, v2"); a("v_mul_u32_u24 v4, 81920, v4")
    a("v_bfe_u32 v5, v2, 5, 1"); a("v_bfe_u32 v6, v2, 2, 1"); a("v_lshl_add_u32 v5, v5, 1, v6"); a("v_mul_u32_u24 v5, 20480, v5"); a("v_add_u32 v4, v4, v5")
    a("v_bfe_u32 v5, v2, 3, 2"); a("v_and_b32 v6, 3, v2"); a("v_lshl_add_u32 v5, v5, 2, v6"); a("v_lshl_add_u32 v4, v5, 4, v4")
    a("v_lshrrev_b32 v5, 4, v1"); a("v_lshl_add_u32 v4, v5, 10, v4")
    a("v_bfe_u32 v5, v1, 2, 2"); a("v_lshl_add_u32 v4, v5, 8, v4")
    a("v_and_b32 v5, 3, v1"); a("v_lshl_add_u32 v4, v5, 2, v4")
    for j in range(5):
        a("v_cvt_pk_bf16_f32 v%d, v%d, v%d" % (20 + j, 10 + 2 * j, 11 + 2 * j))
        a("s_mov_b32 s14, %d" % (dst_off + j * 4096))
        a("buffer_store_dword v%d, v4, s[%d:%d], s14 offen%s" % (20 + j, s_ws, s_ws + 3, ST()))

SLOT = 40960
NSLOT = 4

class VMQ:
    def __init__(self, a):
        self.a = a; self.cnt = 0; self.marks = {}
    def op(self, n=1): self.cnt += n
    def mark(self, tag): self.marks[tag] = self.cnt
    def wait(self, tag, extra=""):
        n = min(63, self.cnt - self.marks[tag])
        assert 0 <= n <= 63, n
        self.a("s_waitcnt vmcnt(%d)%s" % (n, extra))

def fsw_lane_exprs():
    pass

class ASG:
    def __init__(self, a, nmt):
        self.a = a; self.nmt = nmt
        self.q = VMQ(a)
        self.slots = []
        self.issued = 0
    def add_slot(self, srd, voff, soff, rowstride, nrows):
        self.slots.append(dict(srd=srd, voff=voff, soff=soff, rs=rowstride, nrows=nrows))
        return len(self.slots) - 1
    def dma(self, i, s_wlds, s_tmp):
        if i >= len(self.slots): return
        a = self.a; sl = self.slots[i]
        base = (i % NSLOT) * SLOT
        n = sl["nrows"] // 32
        for j in range(n):
            a("s_add_u32 m0, s%d, %d" % (s_wlds, base + j * 4096))
            a("s_mov_b32 s%d, %d" % (s_tmp, sl["soff"] + j * 32 * sl["rs"]))
            a("buffer_load_dwordx4 v%d, s[%d:%d], s%d offen lds" % (sl["voff"], sl["srd"], sl["srd"] + 3, s_tmp))
            self.q.op()
        self.q.mark(("dma", i))

def lane_setup(a):
    a("v_and_b32 v1, 63, v0")
    a("v_lshrrev_b32 v2, 4, v1")
    a("v_and_b32 v3, 15, v0")
    a("v_lshrrev_b32 v4, 6, v0")
    a("s_nop 0")
    a("v_readfirstlane_b32 s20, v4")
    a("s_nop 3")
    a("s_lshl_b32 s21, s20, 10")

def dma_voff(a, vdst, rowstride, t0, t1, t2):
    a("v_lshrrev_b32 v%d, 3, v1" % t0)
    a("v_lshl_add_u32 v%d, v4, 3, v%d" % (t1, t0))
    a("v_bfe_u32 v%d, v%d, 1, 1" % (t2, t1))
    a("v_lshrrev_b32 v%d, 2, v%d" % (vdst, t1))
    a("v_lshrrev_b32 v%d, 3, v%d" % (t0, t1))
    a("v_xor_b32 v%d, v%d, v%d" % (vdst, vdst, t0))
    a("v_and_b32 v%d, 1, v%d" % (vdst, vdst))
    a("v_lshl_or_b32 v%d, v%d, 1, v%d" % (t2, vdst, t2))
    a("v_bfe_u32 v%d, v1, 1, 2" % t0)
    a("v_xor_b32 v%d, v%d, v%d" % (t2, t2, t0))
    a("v_and_b32 v%d, 1, v1" % t0)
    a("v_lshl_or_b32 v%d, v%d, 1, v%d" % (t2, t2, t0))
    a("v_lshlrev_b32 v%d, 4, v%d" % (t2, t2))
    a("s_mov_b32 s22, %d" % rowstride)
    a("v_mul_lo_u32 v%d, s22, v%d" % (vdst, t1))
    a("v_add_u32 v%d, v%d, v%d" % (vdst, vdst, t2))

def tr_addr_nat(a, vbase, t0, t1, t2):
    a("v_bfe_u32 v%d, v1, 2, 2" % t0)
    a("v_lshl_add_u32 v%d, v2, 3, v%d" % (t1, t0))
    a("v_lshlrev_b32 v%d, 7, v%d" % (t1, t1))
    a("v_and_b32 v%d, 3, v1" % t2)
    a("v_lshl_add_u32 v%d, v%d, 3, v%d" % (t1, t2, t1))
    a("v_lshrrev_b32 v%d, 1, v%d" % (t0, t0))
    a("v_and_b32 v%d, 1, v2" % t2)
    for half in range(2):
        fr = vbase + half * 4 + 3
        a("v_xor_b32 v%d, %d, v%d" % (fr, half, t2))
        a("v_lshl_or_b32 v%d, v%d, 1, v%d" % (fr, fr, t0))
        for nt in range(4):
            d = vbase + half * 4 + nt
            a("v_xor_b32 v%d, %d, v%d" % (d, nt, fr))
            a("v_lshl_add_u32 v%d, v%d, 5, v%d" % (d, d, t1))
            if half: a("v_add_u32 v%d, 512, v%d" % (d, d))

def tr_addr_pi(a, vbase, t0, t1, t2):
    a("v_bfe_u32 v%d, v1, 2, 2" % t0)
    a("v_lshl_add_u32 v%d, v2, 2, v%d" % (t1, t0))
    a("v_lshlrev_b32 v%d, 7, v%d" % (t1, t1))
    a("v_and_b32 v%d, 3, v1" % t2)
    a("v_lshl_add_u32 v%d, v%d, 3, v%d" % (t1, t2, t1))
    a("v_lshrrev_b32 v%d, 1, v%d" % (t0, t0))
    a("v_lshrrev_b32 v%d, 1, v2" % t2)
    a("v_xor_b32 v%d, v%d, v2" % (t2, t2))
    a("v_and_b32 v%d, 1, v%d" % (t2, t2))
    fr = vbase + 3
    a("v_lshl_or_b32 v%d, v%d, 1, v%d" % (fr, t2, t0))
    for nt in range(4):
        d = vbase + nt
        a("v_xor_b32 v%d, %d, v%d" % (d, nt, fr))
        a("v_lshl_add_u32 v%d, v%d, 5, v%d" % (d, d, t1))

def reg(r, n=4):
    return "%s[%d:%d]" % (r[0], r[1], r[1] + n - 1)

def stream_gemm(a, g, units, S, nmt, vaddr, vW, s_wlds, s_tmp, cur_slot_reg_state):
    pass
```

```python
from gen import *

class Stream:
    BUF = 20
    def __init__(self, a, nmt, acc, nslot=4, slot_bytes=SLOT):
        self.a = a; self.nmt = nmt; self.acc = acc
        self.q = VMQ(a); self.slots = []; self.units = []
        self.nslot = nslot; self.sb = slot_bytes
        self.base = dict(nat=0, pi=0)
    def accr(self, mt, nt): return self.acc + (mt * 4 + nt) * 4
    def add_slot(self, srd, voff, soff, rs, nrows, mp):
        self.slots.append(dict(srd=srd, voff=voff, soff=soff, rs=rs, nrows=nrows, mp=mp)); return len(self.slots) - 1
    def add_unit(self, slots, afr, swap, epi):
        self.units.append(dict(slots=slots, afr=afr, swap=swap, epi=epi))
    def dma(self, i):
        if i >= len(self.slots): return
        a = self.a; sl = self.slots[i]
        base = (i % self.nslot) * self.sb
        for j in range(sl["nrows"] // 32):
            a("s_add_u32 m0, s21, %d" % (base + j * 4096))
            a("s_mov_b32 s23, %d" % (sl["soff"] + j * 32 * sl["rs"]))
            a("buffer_load_dwordx4 v%d, s[%d:%d], s23 offen lds" % (sl["voff"], sl["srd"], sl["srd"] + 3))
            self.q.op()
        self.q.mark(("dma", i))
    def reads(self, si, ks, buf):
        a = self.a; sl = self.slots[si]; mp = sl["mp"]
        want = (si % self.nslot) * self.sb
        if self.base[mp] != want:
            d = want - self.base[mp]
            regs = range(8, 16) if mp == "nat" else range(16, 20)
            for r in regs:
                if d > 0: a("v_add_u32 v%d, %d, v%d" % (r, d, r))
                else: a("v_subrev_u32 v%d, %d, v%d" % (r, -d, r))
            self.base[mp] = want
        for nt in range(4):
            d = self.BUF + buf * 16 + nt * 4
            for half in range(2):
                if mp == "nat":
                    a("ds_read_b64_tr_b16 v[%d:%d], v%d offset:%d" % (d + 2 * half, d + 2 * half + 1, 8 + half * 4 + nt, ks * 4096))
                else:
                    a("ds_read_b64_tr_b16 v[%d:%d], v%d offset:%d" % (d + 2 * half, d + 2 * half + 1, 16 + nt, ks * 4096 + half * 2048))
    def run(self):
        a = self.a
        seq = []
        for u in self.units:
            k = 0
            tot = sum(self.slots[s]["nrows"] // 32 for s in u["slots"])
            for s in u["slots"]:
                for ks in range(self.slots[s]["nrows"] // 32):
                    seq.append((s, ks, u, k, k == tot - 1)); k += 1
        import gen3
        st = (lambda k: gen3.stamp(a, k)) if getattr(self, "dbg", False) else (lambda k: None)
        if getattr(self, "dbg", False): gen3.dbg_init(a)
        for i in range(self.nslot): self.dma(i)
        self.q.wait(("dma", 0)); a("s_barrier")
        st(0)
        self.reads(seq[0][0], seq[0][1], 0)
        for n, (s, ks, u, k, last) in enumerate(seq):
            a("s_waitcnt lgkmcnt(0)")
            if n + 1 < len(seq):
                s2, ks2 = seq[n + 1][0], seq[n + 1][1]
                if s2 != s:
                    st(1)
                    self.q.wait(("dma", s2)); a("s_barrier")
                    st(2)
                    self.dma(s + self.nslot)
                self.reads(s2, ks2, (n + 1) & 1)
            for nt in range(4):
                b = "v[%d:%d]" % (self.BUF + (n & 1) * 16 + nt * 4, self.BUF + (n & 1) * 16 + nt * 4 + 3)
                for mt in range(self.nmt):
                    d = self.accr(mt, nt); dd = "v[%d:%d]" % (d, d + 3)
                    f = reg(u["afr"](k, mt))
                    c = "0" if k == 0 else dd
                    if u["swap"]: a("v_mfma_f32_16x16x32_bf16 %s, %s, %s, %s" % (dd, b, f, c))
                    else: a("v_mfma_f32_16x16x32_bf16 %s, %s, %s, %s" % (dd, f, b, c))
            if last:
                a("s_nop 7"); a("s_nop 1")
                st(1)
                u["epi"]()
                a("s_nop 1")
                st(3)
        if getattr(self, "dbg", False): gen3.dbg_out(a, 5, 0)

def common_setup(a, s_nat=True, s_pi=True):
    lane_setup(a)
    if s_nat: tr_addr_nat(a, 8, 5, 6, 7)
    if s_pi: tr_addr_pi(a, 16, 5, 6, 7)

def tokbase(a, vd, vt):
    a("v_lshrrev_b32 v%d, 2, v3" % vd)
    a("v_and_b32 v%d, 3, v3" % vt)
    a("v_lshl_add_u32 v%d, v%d, 3, v%d" % (vd, vd, vt))
def mtrow(mt): return (mt >> 1) * 32 + (mt & 1) * 4

def pack_pi(a, S, mt, q):
    x = S.accr(mt, 2 * q); y = S.accr(mt, 2 * q + 1)
    a("v_cvt_pk_bf16_f32 v%d, v%d, v%d" % (x, x, x + 1))
    a("v_cvt_pk_bf16_f32 v%d, v%d, v%d" % (x + 1, x + 2, x + 3))
    a("v_cvt_pk_bf16_f32 v%d, v%d, v%d" % (x + 2, y, y + 1))
    a("v_cvt_pk_bf16_f32 v%d, v%d, v%d" % (x + 3, y + 2, y + 3))
    return x

def u_epilogue(a, S, q, vU, srd, u, mstride, cstride16):
    def epi():
        for m in range(S.nmt // 2):
            for nt in range(4):
                x = S.accr(2 * m, nt); y = S.accr(2 * m + 1, nt)
                a("v_cvt_pk_bf16_f32 v%d, v%d, v%d" % (x, x, x + 1))
                a("v_cvt_pk_bf16_f32 v%d, v%d, v%d" % (x + 1, x + 2, x + 3))
                a("v_cvt_pk_bf16_f32 v%d, v%d, v%d" % (x + 2, y, y + 1))
                a("v_cvt_pk_bf16_f32 v%d, v%d, v%d" % (x + 3, y + 2, y + 3))
                a("s_mov_b32 s23, %d" % (m * mstride + (u * 4 + nt) * cstride16))
                a("buffer_store_dwordx4 v[%d:%d], v%d, s[%d:%d], s23 offen%s" % (x, x + 3, vU, srd, srd + 3, ST()))
                q.op()
    return epi

def gen_qku(a, part="all"):
    K = "qku_kernel" if part == "all" else "qku%s_kernel" % part
    kbegin(a, K, 256)
    a("s_load_dwordx4 s[4:7], s[0:1], %d" % KA["Wq"])
    a("s_load_dwordx4 s[8:11], s[0:1], %d" % KA["Wv"])
    a("s_load_dwordx2 s[12:13], s[0:1], %d" % KA["ws"])
    common_setup(a)
    a("s_and_b32 s24, s2, 7"); a("s_lshl_b32 s24, s24, 2"); a("s_bfe_u32 s25, s2, 0x20003"); a("s_add_u32 s24, s24, s25")
    a("s_lshr_b32 s25, s2, 5")
    a("s_waitcnt lgkmcnt(0)")
    a("s_mul_i32 s26, s24, 384")
    WSZ = 640 * 12288
    a("s_sub_u32 s27, %d, s26" % WSZ)
    srd_from_ptr(a, 32, 4, "s27", add="s26"); srd_from_ptr(a, 36, 6, "s27", add="s26"); srd_from_ptr(a, 40, 8, "s27", add="s26")
    a("s_mul_i32 s28, s24, 245760")
    srd_from_ptr(a, 44, 10, 245760, add="s28")
    a("s_lshl_b32 s29, s25, 2"); a("s_add_u32 s29, s29, s20")
    a("s_mul_i32 s30, s29, %d" % (64 * 1280)); a("s_add_u32 s30, s30, %d" % WS_H)
    srd_from_ptr(a, 48, 12, 64 * 1280, add="s30")
    a("s_mul_i32 s30, s29, %d" % (64 * 12288)); a("s_add_u32 s30, s30, s26")
    a("s_add_u32 s31, s30, %d" % WS_Q); srd_from_ptr(a, 52, 12, 64 * 12288, add="s31")
    a("s_add_u32 s31, s30, %d" % WS_K); srd_from_ptr(a, 56, 12, 64 * 12288, add="s31")
    a("s_lshl_b32 s30, s29, 6"); a("s_add_u32 s30, s30, s24"); a("s_mul_i32 s30, s30, 40960"); a("s_add_u32 s30, s30, %d" % WS_U)
    srd_from_ptr(a, 60, 12, 33 * 40960, add="s30")
    dma_voff(a, 5, 12288, 244, 245, 246)
    dma_voff(a, 6, 1280, 244, 245, 246)
    tokbase(a, 244, 245)
    a("v_lshlrev_b32 v245, 4, v2")
    a("v_mul_u32_u24 v247, 1280, v244"); a("v_add_u32 v247, v247, v245")
    a("v_mul_u32_u24 v248, 12288, v244"); a("v_add_u32 v248, v248, v245")
    a("v_lshl_add_u32 v249, v3, 6, v245")
    S = Stream(a, 4, 52)
    S.dbg = True
    def hfr(k, mt):
        idx = mt * 20 + k
        return ("a", idx * 4) if idx < 64 else ("v", 116 + (idx - 64) * 4)
    for mt in range(4):
        for k in range(20):
            a("s_mov_b32 s23, %d" % (mtrow(mt) * 1280 + k * 64))
            a("buffer_load_dwordx4 %s, v247, s[48:51], s23 offen" % reg(hfr(k, mt))); S.q.op()
    def vfr(k, mt):
        u = k // 2
        if u < 2: return ("v", 180 + ((u * 4 + mt) * 2 + (k & 1)) * 4)
        return ("v", 116 + (mt * 2 + (k & 1)) * 4)
    mats = dict(all=(("k", 36), ("q", 32), ("v", 40)), T1=(("k", 36), ("q", 32)), T2=(("v", 40),))[part]
    for mat, srd in mats:
        for u in range(3):
            sl = [S.add_slot(srd, 5, u * 128 + hh * 320 * 12288, 12288, 320, "nat") for hh in range(2)]
            if mat != "v":
                def epi(u=u, srdo=(52 if mat == "q" else 56), mat=mat):
                    for mt in range(4):
                        for q in range(2):
                            x = pack_pi(a, S, mt, q)
                            a("s_mov_b32 s23, %d" % (mtrow(mt) * 12288 + u * 128 + q * 64))
                            a("buffer_store_dwordx4 v[%d:%d], v248, s[%d:%d], s23 offen%s" % (x, x + 3, srdo, srdo + 3, ST())); S.q.op()
                    if M.MEGA and mat == "k" and u == 2: M.signal_mid(a)
            else:
                def epi(u=u):
                    for mt in range(4):
                        for q in range(2):
                            x = S.accr(mt, 2 * q); y = S.accr(mt, 2 * q + 1); d = vfr(u * 2 + q, mt)[1]
                            a("v_cvt_pk_bf16_f32 v%d, v%d, v%d" % (d, x, x + 1))
                            a("v_cvt_pk_bf16_f32 v%d, v%d, v%d" % (d + 1, x + 2, x + 3))
                            a("v_cvt_pk_bf16_f32 v%d, v%d, v%d" % (d + 2, y, y + 1))
                            a("v_cvt_pk_bf16_f32 v%d, v%d, v%d" % (d + 3, y + 2, y + 3))
            S.add_unit(sl, hfr, True, epi)
    for u in range(10 if part != "T1" else 0):
        sl = [S.add_slot(44, 6, u * 128, 1280, 192, "pi")]
        S.add_unit(sl, vfr, False, u_epilogue(a, S, S.q, 249, 60, u, 32 * 40960, 1024))
    S.run()
    kend(a, K)
    return K, 512, 256

def gen_vo_ln(a, pv=False):
    K = "voln_kernel" if not pv else "pv_kernel"
    if M.MEGA: a.put("vo_kernel_entry")
    else:
        kernel_begin(a, K)
        a("s_cmp_ge_u32 s2, %d" % (256 if pv else 640)); a("s_cbranch_scc1 voln_end")
        a("s_cmp_ge_u32 s2, 128"); a("s_cbranch_scc1 voln_ln")
    a("s_load_dwordx4 s[8:11], s[0:1], %d" % KA["Wv"])
    a("s_load_dwordx2 s[12:13], s[0:1], %d" % KA["ws"])
    common_setup(a)
    a("s_and_b32 s24, s2, 31"); a("s_bfe_u32 s25, s2, 0x10005"); a("s_lshr_b32 s26, s2, 6")
    a("s_waitcnt lgkmcnt(0)")
    a("s_lshl_b32 s27, s25, 2"); a("s_add_u32 s27, s27, s20"); a("s_mul_i32 s27, s27, 80"); a("s_min_u32 s27, s27, 544")
    a("s_mul_i32 s28, s27, 12288"); a("s_mul_i32 s29, s24, 384"); a("s_add_u32 s28, s28, s29")
    a("s_sub_u32 s29, %d, s28" % (640 * 12288))
    srd_from_ptr(a, 32, 8, "s29", add="s28")
    a("s_mul_i32 s28, s24, 245760"); a("s_mul_i32 s29, s26, 640"); a("s_add_u32 s28, s28, s29")
    a("s_sub_u32 s29, %d, s28" % (32 * 245760))
    srd_from_ptr(a, 44, 10, "s29", add="s28")
    a("s_mul_i32 s28, s26, %d" % (40 * 32 * 10240)); a("s_mul_i32 s29, s24, 10240"); a("s_add_u32 s28, s28, s29")
    a("s_lshl_b32 s29, s27, 1"); a("s_add_u32 s28, s28, s29"); a("s_add_u32 s28, s28, %d" % WS_VO)
    srd_from_ptr(a, 60, 12, 40 * 32 * 10240, add="s28")
    dma_voff(a, 6, 1280, 244, 245, 246)
    tokbase(a, 244, 245)
    a("v_lshlrev_b32 v245, 4, v2")
    a("v_mul_u32_u24 v247, 12288, v244"); a("v_add_u32 v247, v247, v245")
    a("v_lshrrev_b32 v249, 3, v3"); a("v_mul_u32_u24 v249, 327680, v249")
    a("v_and_b32 v246, 7, v3"); a("v_mul_u32_u24 v246, 1280, v246"); a("v_add_u32 v249, v249, v246"); a("v_add_u32 v249, v249, v245")
    S = Stream(a, 6, 52)
    def hfr(k, mt): return ("a", (mt * 6 + k) * 4)
    for mt in range(6):
        for k in range(6):
            a("s_mov_b32 s23, %d" % (mtrow(mt) * 12288 + k * 64))
            a("buffer_load_dwordx4 %s, v247, s[32:35], s23 offen" % reg(hfr(k, mt))); S.q.op()
    for u in range(5):
        sl = [S.add_slot(44, 6, u * 128, 1280, 192, "nat")]
        S.add_unit(sl, hfr, False, u_epilogue(a, S, S.q, 249, 60, u, 64, 2 * 327680))
    S.run()
    if M.MEGA:
        a("s_branch task_done"); return
    a("s_endpgm")
    a.put("voln_ln")
    if pv:
        a("s_sub_u32 s2, s2, 128")
        gen_prep(a, emb=True)
        a.put("voln_end"); a("s_endpgm")
        return K, 400, 256
    a("s_load_dwordx2 s[12:13], s[0:1], %d" % KA["ws"])
    a("s_load_dwordx2 s[6:7], s[0:1], %d" % KA["x"])
    a("s_waitcnt lgkmcnt(0)")
    srd_from_ptr(a, 32, 6, 2048 * 1280)
    srd_from_ptr(a, 36, 12, 0x2000000)
    a("s_sub_u32 s24, s2, 128")
    gen_ln_body(a, "ln1", False, 32, 36, WS_H, 0, 1, 24)
    a.put("voln_end"); a("s_endpgm")
    return K, 400, 256

def gen_ln2(a):
    K = "ln2_kernel"
    kernel_begin(a, K)
    a("s_cmp_ge_u32 s2, 512"); a("s_cbranch_scc1 ln2_end")
    a("s_load_dwordx2 s[12:13], s[0:1], %d" % KA["ws"])
    a("s_waitcnt lgkmcnt(0)")
    srd_from_ptr(a, 32, 12, 2048 * 2560, add=hex(WS_X1))
    srd_from_ptr(a, 36, 12, 0x2000000)
    a("s_mov_b32 s24, s2")
    gen_ln_body(a, "ln2", True, 32, 36, WS_H2, 3, 4, 24)
    a.put("ln2_end"); a("s_endpgm")
    return K, 64, 64

def gen_ffn1(a):
    K = "ffn1_kernel"
    kbegin(a, K, 192)
    a("s_load_dwordx4 s[4:7], s[0:1], %d" % KA["w1"])
    a("s_load_dwordx2 s[12:13], s[0:1], %d" % KA["ws"])
    common_setup(a, s_pi=False)
    a("s_and_b32 s24, s2, 7"); a("s_lshr_b32 s25, s2, 3")
    a("s_waitcnt lgkmcnt(0)")
    a("s_lshl_b32 s26, s25, 7"); a("s_sub_u32 s27, %d, s26" % (640 * 3072))
    srd_from_ptr(a, 32, 4, "s27", add="s26")
    srd_from_ptr(a, 36, 6, 128, add="s26")
    a("s_lshl_b32 s29, s24, 2"); a("s_add_u32 s29, s29, s20")
    a("s_mul_i32 s30, s29, %d" % (64 * 1280)); a("s_add_u32 s30, s30, %d" % WS_H2)
    srd_from_ptr(a, 48, 12, 64 * 1280, add="s30")
    a("s_mul_i32 s30, s29, %d" % (64 * 3072)); a("s_lshl_b32 s31, s25, 11"); a("s_add_u32 s30, s30, s31"); a("s_add_u32 s30, s30, %d" % WS_F)
    srd_from_ptr(a, 52, 12, 3 * 48 * 1024 + 2048, add="s30")
    a("v_lshlrev_b32 v250, 4, v1")
    dma_voff(a, 5, 3072, 244, 245, 246)
    tokbase(a, 244, 245)
    a("v_lshlrev_b32 v245, 4, v2")
    a("v_mul_u32_u24 v247, 1280, v244"); a("v_add_u32 v247, v247, v245")
    a("v_mul_u32_u24 v248, 3072, v244"); a("v_add_u32 v248, v248, v245")
    S = Stream(a, 4, 52)
    a("v_lshlrev_b32 v246, 3, v2")
    for nt in range(4):
        a("buffer_load_dwordx2 v[%d:%d], v246, s[36:39], 0 offen offset:%d" % (180 + 2 * nt, 181 + 2 * nt, nt * 32)); S.q.op()
    def hfr(k, mt):
        idx = mt * 20 + k
        return ("a", idx * 4) if idx < 64 else ("v", 116 + (idx - 64) * 4)
    for mt in range(4):
        for k in range(20):
            a("s_mov_b32 s23, %d" % ((mt * 20 + k) * 1024))
            a("buffer_load_dwordx4 %s, v250, s[48:51], s23 offen" % reg(hfr(k, mt))); S.q.op()
    sl = [S.add_slot(32, 5, hh * 320 * 3072, 3072, 320, "nat") for hh in range(2)]
    def epi():
        for nt in range(4):
            for j in range(2):
                a("v_lshlrev_b32 v%d, 16, v%d" % (190 + nt * 4 + 2 * j, 180 + 2 * nt + j))
                a("v_and_b32 v%d, 0xffff0000, v%d" % (190 + nt * 4 + 2 * j + 1, 180 + 2 * nt + j))
        for mt in range(4):
            for nt in range(4):
                x = S.accr(mt, nt)
                for r in range(4):
                    a("v_add_f32 v%d, v%d, v%d" % (x + r, x + r, 190 + nt * 4 + r))
                    a("v_cvt_pk_bf16_f32 v%d, v%d, v%d" % (x + r, x + r, x + r))
                    a("v_lshlrev_b32 v%d, 16, v%d" % (x + r, x + r))
                    a("v_max_f32 v%d, 0, v%d" % (x + r, x + r))
                    a("v_mul_f32 v%d, v%d, v%d" % (x + r, x + r, x + r))
            for q in range(2):
                x = pack_pi(a, S, mt, q)
                a("s_mov_b32 s23, %d" % ((mt * 48 + q) * 1024))
                a("buffer_store_dwordx4 v[%d:%d], v250, s[52:55], s23 offen%s" % (x, x + 3, ST())); S.q.op()
    S.add_unit(sl, hfr, True, epi)
    S.run()
    kend(a, K)
    return K, 512, 256

def gen_ffn2(a):
    K = "ffn2_kernel"
    kbegin(a, K, 160)
    a("s_load_dwordx4 s[4:7], s[0:1], %d" % KA["w2"])
    a("s_load_dwordx4 s[8:11], s[0:1], %d" % KA["out"])
    a("s_load_dwordx2 s[12:13], s[0:1], %d" % KA["ws"])
    common_setup(a, s_nat=False)
    a("s_and_b32 s24, s2, 15"); a("s_lshr_b32 s25, s2, 4")
    a("s_waitcnt lgkmcnt(0)")
    a("s_lshl_b32 s26, s25, 7"); a("s_sub_u32 s27, %d, s26" % (1536 * 1280))
    srd_from_ptr(a, 32, 4, "s27", add="s26")
    srd_from_ptr(a, 36, 6, 128, add="s26")
    a("s_lshl_b32 s29, s24, 2"); a("s_add_u32 s29, s29, s20")
    a("s_mul_i32 s30, s29, %d" % (32 * 3072)); a("s_add_u32 s30, s30, %d" % WS_F)
    srd_from_ptr(a, 48, 12, 32 * 3072, add="s30")
    a("s_mul_i32 s30, s29, %d" % (32 * 2560)); a("s_lshl_b32 s31, s26, 1"); a("s_add_u32 s30, s30, s31"); a("s_add_u32 s30, s30, %d" % WS_X1)
    srd_from_ptr(a, 52, 12, 32 * 2560, add="s30")
    a("s_mul_i32 s30, s29, %d" % (32 * 1280)); a("s_add_u32 s30, s30, s26")
    srd_from_ptr(a, 56, 8, 32 * 1280, add="s30")
    a("s_add_u32 s30, s31, %d" % (WS_MOD + 5 * 2560))
    srd_from_ptr(a, 60, 12, 256, add="s30")
    dma_voff(a, 6, 1280, 244, 245, 246)
    tokbase(a, 244, 245)
    a("v_lshlrev_b32 v245, 4, v2")
    a("v_mul_u32_u24 v247, 3072, v244"); a("v_add_u32 v247, v247, v245")
    a("v_mul_u32_u24 v248, 2560, v244"); a("v_add_u32 v248, v248, v245")
    a("v_lshlrev_b32 v246, 3, v2")
    a("v_mul_u32_u24 v249, 1280, v244"); a("v_add_u32 v249, v249, v246")
    a("v_lshlrev_b32 v250, 4, v1")
    S = Stream(a, 2, 52)
    for nt in range(4):
        a("buffer_load_dwordx2 v[%d:%d], v246, s[36:39], 0 offen offset:%d" % (84 + 2 * nt, 85 + 2 * nt, nt * 32)); S.q.op()
        a("buffer_load_dwordx4 v[%d:%d], v245, s[60:63], 0 offen offset:%d" % (92 + 4 * nt, 95 + 4 * nt, nt * 64)); S.q.op()
    def hfr(k, mt):
        idx = mt * 48 + k
        return ("a", idx * 4) if idx < 64 else ("v", 116 + (idx - 64) * 4)
    for mt in range(2):
        for k in range(48):
            a("s_mov_b32 s23, %d" % ((mt * 48 + k) * 1024))
            a("buffer_load_dwordx4 %s, v250, s[48:51], s23 offen" % reg(hfr(k, mt))); S.q.op()
            if S.q.cnt % 48 == 47: pass
    sl = [S.add_slot(32, 6, hh * 256 * 1280, 1280, 256, "pi") for hh in range(6)]
    def epi():
        for mt in range(2):
            for nt in range(4):
                a("s_mov_b32 s23, %d" % (mtrow(mt) * 2560 + nt * 64))
                a("buffer_load_dwordx4 v[%d:%d], v248, s[52:55], s23 offen" % (116 + (mt * 4 + nt) * 4, 119 + (mt * 4 + nt) * 4)); S.q.op()
        for nt in range(4):
            for j in range(2):
                a("v_lshlrev_b32 v%d, 16, v%d" % (150 + nt * 4 + 2 * j, 84 + 2 * nt + j))
                a("v_and_b32 v%d, 0xffff0000, v%d" % (150 + nt * 4 + 2 * j + 1, 84 + 2 * nt + j))
        a("s_waitcnt vmcnt(0)")
        for mt in range(2):
            for nt in range(4):
                x = S.accr(mt, nt)
                for r in range(4):
                    a("v_add_f32 v%d, v%d, v%d" % (x + r, x + r, 150 + nt * 4 + r))
                    a("v_fma_f32 v%d, v%d, v%d, v%d" % (x + r, x + r, 92 + nt * 4 + r, 116 + (mt * 4 + nt) * 4 + r))
                a("v_cvt_pk_bf16_f32 v%d, v%d, v%d" % (x, x, x + 1))
                a("v_cvt_pk_bf16_f32 v%d, v%d, v%d" % (x + 1, x + 2, x + 3))
                a("s_mov_b32 s23, %d" % (mtrow(mt) * 1280 + nt * 32))
                a("buffer_store_dwordx2 v[%d:%d], v249, s[56:59], s23 offen" % (x, x + 1))
    S.add_unit(sl, hfr, True, epi)
    S.run()
    kend(a, K)
    return K, 512, 256
```

```python
from gen import *
from gen2 import *
import gen3
from gen3 import stamp, dbg_init, dbg_out, SPIN
import struct, os
HALF = os.environ.get('HALF', '1') == '1'
CFG = dict(S=3, gap=5, slpA=20, slpR=6, slpRm=8, slpA0=16)

def spoll(a, pfx, S, nl, issue, regs, succ, sleep, gap, vt=15):
    if sleep: a("s_sleep %d" % sleep)
    a("s_mov_b32 s60, 0")
    for k in range(S):
        issue(k)
        if k < S - 1 and gap: a("s_sleep %d" % gap)
    a.put(pfx + "_lp")
    for k in range(S):
        a("s_waitcnt vmcnt(%d)" % ((S - 1) * nl))
        r = regs(k)
        a("v_max3_u32 v%d, v%d, v%d, v%d" % (vt, r[0], r[1], r[2]))
        r = r[3:]
        while len(r) >= 2:
            a("v_max3_u32 v%d, v%d, v%d, v%d" % (vt, vt, r[0], r[1])); r = r[2:]
        if r: a("v_max_u32 v%d, v%d, v%d" % (vt, vt, r[0]))
        a("v_cmp_ne_u32 vcc, -1, v%d" % vt)
        a("s_nop 1")
        a("s_cmp_eq_u64 vcc, exec")
        a("s_cbranch_scc1 %s_ok%d" % (pfx, k))
        issue(k)
    a("s_add_u32 s60, s60, 1"); a("s_cmp_gt_u32 s60, %d" % SPIN); a("s_cbranch_scc1 chain_end")
    a("s_branch %s_lp" % pfx)
    for k in range(S):
        a.put("%s_ok%d" % (pfx, k))
        succ(k)
        if k < S - 1: a("s_branch %s_done" % pfx)
    a.put(pfx + "_done")

def gather_mem(a, pfx, sets, srd, s_off, vG, sleep):
    S = len(sets)
    def issue(k):
        for n in range(3):
            a("buffer_load_dwordx4 v[%d:%d], v%d, s[%d:%d], s%d offen sc1" % (sets[k] + 4 * n, sets[k] + 4 * n + 3, vG + n, srd, srd + 3, s_off))
    def succ(k):
        for n in range(3):
            a("ds_write_b128 v%d, v[%d:%d]" % (vG + n, sets[k] + 4 * n, sets[k] + 4 * n + 3))
    spoll(a, pfx, S, 3, issue, lambda k: list(range(sets[k], sets[k] + 12)), succ, sleep, CFG["gap"])
    a("s_waitcnt lgkmcnt(0)")
    a("s_barrier")

def gen_chain(a):
    K = "chain_kernel"
    S = CFG["S"]
    if M.MEGA: a.put("chain_entry")
    else:
        kernel_begin(a, K)
        a("s_cmp_ge_u32 s2, 112"); a("s_cbranch_scc1 chain_end")
    def fpoll(lab, voff, soff_expr):
        if not M.MEGA: return
        a("s_mov_b32 s60, 0")
        a.put(lab)
        if voff is None: a("buffer_load_dword v15, off, s[92:95], %s sc1" % soff_expr)
        else: a("buffer_load_dword v15, v%d, s[92:95], %s offen sc1" % (voff, soff_expr))
        a("s_waitcnt vmcnt(0)")
        a("v_cmp_ne_u32 vcc, -1, v15"); a("s_nop 1"); a("s_cmp_eq_u64 vcc, exec"); a("s_cbranch_scc1 %s_ok" % lab)
        a("s_sleep 8")
        a("s_add_u32 s60, s60, 1"); a("s_cmp_gt_u32 s60, %d" % SPIN); a("s_cbranch_scc1 chain_end")
        a("s_branch %s" % lab)
        a.put(lab + "_ok")
    a("s_load_dwordx4 s[4:7], s[0:1], %d" % KA["Wq"])
    a("s_load_dwordx2 s[12:13], s[0:1], %d" % KA["ws"])
    lane_setup(a)
    a("s_waitcnt lgkmcnt(0)")
    srd_from_ptr(a, 44, 12, 66 * 10240, add=hex(WS_MEM))
    srd_from_ptr(a, 48, 12, 65 * 20480, add=hex(WS_P))
    a("s_mul_i32 s22, s20, 2560")
    a("v_lshlrev_b32 v5, 4, v1"); a("v_add_u32 v5, s22, v5"); a("v_add_u32 v6, 1024, v5")
    a("v_and_b32 v7, 31, v1"); a("v_lshlrev_b32 v7, 4, v7"); a("v_add_u32 v7, s22, v7"); a("v_add_u32 v7, 2048, v7")
    a("v_and_b32 v9, 7, v3"); a("v_lshlrev_b32 v8, 7, v2"); a("v_lshl_add_u32 v8, v9, 4, v8")
    a("s_mov_b32 s40, 0"); a("s_mov_b32 s41, 0"); a("s_mov_b32 s42, 0")
    a("s_cmp_ge_u32 s2, 32"); a("s_cbranch_scc1 chain_R")
    a("s_mul_i32 s26, s2, 384"); a("s_sub_u32 s27, %d, s26" % (640 * 12288))
    srd_from_ptr(a, 32, 4, "s27", add="s26"); srd_from_ptr(a, 36, 6, "s27", add="s26")
    a("s_add_u32 s28, s26, %d" % WS_K); srd_from_ptr(a, 52, 12, 2048 * 12288, add="s28")
    a("s_mul_i32 s28, s2, 3072"); a("s_add_u32 s28, s28, %d" % WS_KM); srd_from_ptr(a, 56, 12, 64 * 32 * 3072, add="s28")
    dma_voff(a, 10, 12288, 16, 17, 18)
    a("v_bfe_u32 v16, v1, 2, 2"); a("v_lshl_add_u32 v17, v2, 3, v16"); a("v_lshlrev_b32 v17, 7, v17")
    a("v_and_b32 v18, 3, v1"); a("v_lshl_add_u32 v17, v18, 3, v17"); a("v_lshrrev_b32 v16, 1, v16"); a("v_and_b32 v18, 1, v2")
    for half in range(2):
        a("v_xor_b32 v19, %d, v18" % half); a("v_lshl_or_b32 v19, v19, 1, v16"); a("v_xor_b32 v19, v4, v19")
        a("v_lshl_add_u32 v%d, v19, 5, v17" % (11 + half))
        if half: a("v_add_u32 v12, 512, v12")
    SS = 20480
    PERS = 65536
    NL = 24
    a("s_mul_i32 s22, s20, %d" % (NL * 1024)); a("s_add_u32 s22, s22, %d" % PERS); a("v_lshlrev_b32 v13, 4, v1"); a("v_add_u32 v13, s22, v13")
    def wfr(t, ks):
        idx = t * 20 + ks
        if idx < 64: return ("a", idx * 4)
        if idx < 96: return ("v", 128 + (idx - 64) * 4)
        return ("l", idx - 96)
    slots = [(32 if m == 0 else 36, u, hh) for m in range(2) for u in range(3) for hh in range(4)]
    def dma(i):
        if i >= len(slots): return
        srd, u, hh = slots[i]
        for j in range(5):
            a("s_add_u32 m0, s21, %d" % ((i % 3) * SS + j * 4096))
            a("s_mov_b32 s23, %d" % (u * 128 + (hh * 160 + j * 32) * 12288))
            a("buffer_load_dwordx4 v10, s[%d:%d], s23 offen lds" % (srd, srd + 3))
    dma(0); dma(1); dma(2)
    for i in range(24):
        a("s_waitcnt vmcnt(%d)" % (10 if i < 22 else (5 if i == 22 else 0))); a("s_barrier")
        t = i // 4; hh = i % 4
        for k in range(5):
            ks = hh * 5 + k; f = wfr(t, ks)
            off = (i % 3) * SS + k * 4096
            d = 40 + k * 4 if f[0] != "v" else f[1]
            a("ds_read_b64_tr_b16 v[%d:%d], v11 offset:%d" % (d, d + 1, off)); a("ds_read_b64_tr_b16 v[%d:%d], v12 offset:%d" % (d + 2, d + 3, off))
        a("s_waitcnt lgkmcnt(0)")
        for k in range(5):
            ks = hh * 5 + k; f = wfr(t, ks); d = 40 + k * 4
            if f[0] == "l": a("ds_write_b128 v13, v[%d:%d] offset:%d" % (d, d + 3, f[1] * 1024))
            elif f[0] == "a":
                for r in range(4): a("v_accvgpr_write_b32 a%d, v%d" % (f[1] + r, d + r))
        a("s_waitcnt lgkmcnt(0)"); a("s_barrier")
        dma(i + 3)
    SETS = [52, 64, 76][:S]
    a("v_mul_u32_u24 v9, 12288, v3"); a("v_lshl_add_u32 v9, v2, 4, v9")
    a("s_lshr_b32 s22, s20, 1"); a("s_lshl_b32 s22, s22, 6"); a("s_and_b32 s23, s20, 1"); a("s_lshl_b32 s23, s23, 3"); a("s_add_u32 s22, s22, s23")
    a("v_add_u32 v9, s22, v9")
    a("v_mul_u32_u24 v10, 384, v3"); a("v_lshl_add_u32 v10, v2, 4, v10"); a("v_add_u32 v10, s22, v10")
    a("v_lshlrev_b32 v11, 4, v1")
    SCB = 16384
    a("v_lshrrev_b32 v12, 1, v2"); a("v_lshlrev_b32 v12, 8, v12"); a("v_lshl_add_u32 v12, v3, 5, v12"); a("v_and_b32 v14, 1, v2"); a("v_lshl_add_u32 v12, v14, 4, v12")
    a("s_mul_i32 s22, s20, 1280"); a("s_add_u32 s22, s22, %d" % SCB); a("v_add_u32 v12, s22, v12")
    a("v_lshlrev_b32 v14, 5, v1"); a("v_add_u32 v14, %d, v14" % SCB)
    a("s_mul_i32 s43, s2, 640")
    a("s_mov_b32 s61, 0"); a("s_mov_b32 s62, 0")
    def kseg_loads():
        for tt in range(2):
            for u in range(3):
                a("s_add_u32 s23, s61, %d" % (tt * 16 * 12288 + u * 128))
                a("buffer_load_dwordx2 v[%d:%d], v9, s[52:55], s23 offen" % (40 + (tt * 3 + u) * 2, 41 + (tt * 3 + u) * 2))
    def km_and_prefetch():
        a("s_mov_b32 exec_lo, 0x00ff00ff"); a("s_mov_b32 exec_hi, 0x00ff00ff")
        for u in range(3):
            a("buffer_store_dwordx2 v[%d:%d], v10, s[56:59], s62 offen offset:%d%s" % (16 + 4 * (3 + u), 17 + 4 * (3 + u), u * 128, ST()))
        a("s_mov_b64 exec, -1")
        a("s_add_u32 s61, s61, %d" % (32 * 12288)); a("s_add_u32 s62, s62, %d" % (32 * 3072))
        if M.MEGA:
            a("s_add_u32 s22, s40, 1"); a("s_and_b32 s23, s22, 7"); a("s_cmp_lg_u32 s23, 0"); a("s_cbranch_scc1 chA_fk_ok")
            a("s_cmp_ge_u32 s22, 64"); a("s_cbranch_scc1 chA_fk_ok")
            a("s_lshl_b32 s22, s22, 4"); a("s_lshl_b32 s23, s2, 2"); a("s_add_u32 s22, s22, s23"); a("s_add_u32 s22, s22, %d" % F_K)
            fpoll("chA_fk", None, "s22")
        kseg_loads()
    if M.MEGA:
        a("s_lshl_b32 s22, s2, 2"); a("s_add_u32 s22, s22, %d" % F_K)
        fpoll("chA_fk0", None, "s22")
        if HALF:
            a("s_lshl_b32 s22, s2, 2"); a("s_add_u32 s22, s22, %d" % (F_X + 128))
            fpoll("chA_fk1", None, "s22")
    kseg_loads()
    dbg_init(a)
    a("s_mov_b32 s63, 0")
    a.put("chA_loop")
    gather_mem(a, "chA", SETS, 44, 41, 5, 0)
    if M.TS:
        a("s_and_b32 s22, s40, 7"); a("s_or_b32 s22, s22, s2"); a("s_or_b32 s22, s22, s20"); a("s_cmp_lg_u32 s22, 0"); a("s_cbranch_scc1 chA_ts")
        a("s_lshr_b32 s23, s40, 1"); a("v_mov_b32 v15, v254"); tstamp(a, "s23"); a("s_add_u32 s23, s23, 48"); tstamp(a, "s23", core=True); a("v_mov_b32 v254, v15"); a.put("chA_ts")
    stamp(a, 0)
    ND = 4; NW = 6
    lf = [ks for ks in range(20)]
    uses = []
    for ks in range(20):
        for t in range(6):
            if wfr(t, ks)[0] == "l": uses.append((ks, t))
    wbuf = {u: 104 + (n % NW) * 4 for n, u in enumerate(uses)}
    issued = []
    def rd_m(ks): a("ds_read_b128 v[%d:%d], v8 offset:%d" % (88 + (ks % ND) * 4, 91 + (ks % ND) * 4, ks * 512)); issued.append(("m", ks))
    def rd_w(u): a("ds_read_b128 v[%d:%d], v13 offset:%d" % (wbuf[u], wbuf[u] + 3, wfr(u[1], u[0])[1] * 1024)); issued.append(("w", u))
    wi = 0
    def prefetch(upto_ks):
        nonlocal wi
        while len([x for x in issued if x[0] == "m"]) <= min(19, upto_ks):
            k = len([x for x in issued if x[0] == "m"])
            rd_m(k)
            while wi < len(uses) and uses[wi][0] <= k:
                rd_w(uses[wi]); wi += 1
    prefetch(ND - 2)
    for ks in range(20):
        lim = ks + ND - 1
        cons = len([u for u in uses if u[0] < ks])
        while lim > ks and len([u for u in uses if u[0] <= min(lim, 19)]) > cons + NW: lim -= 1
        prefetch(lim)
        need = max(i for i, x in enumerate(issued) if (x[0] == "m" and x[1] == ks) or (x[0] == "w" and x[1][0] == ks))
        a("s_waitcnt lgkmcnt(%d)" % min(15, len(issued) - 1 - need))
        mb = "v[%d:%d]" % (88 + (ks % ND) * 4, 91 + (ks % ND) * 4)
        for t in range(6):
            f = wfr(t, ks)
            if f[0] == "l": f = ("v", wbuf[(ks, t)])
            d = "v[%d:%d]" % (16 + 4 * t, 19 + 4 * t)
            a("v_mfma_f32_16x16x32_bf16 %s, %s, %s, %s" % (d, reg(f), mb, "0" if ks == 0 else d))
    a("s_waitcnt vmcnt(0)")
    a("s_nop 6"); a("s_nop 1")
    stamp(a, 1)
    for t in range(6):
        a("v_cvt_pk_bf16_f32 v%d, v%d, v%d" % (16 + 4 * t, 16 + 4 * t, 17 + 4 * t))
        a("v_cvt_pk_bf16_f32 v%d, v%d, v%d" % (17 + 4 * t, 18 + 4 * t, 19 + 4 * t))
    a("s_nop 1")
    SC = 88
    for u in range(3):
        for tile in range(3):
            d = "v[%d:%d]" % (SC + 4 * tile, SC + 3 + 4 * tile)
            A = (16 + 4 * (3 + u)) if tile == 0 else 40 + ((tile - 1) * 3 + u) * 2
            a("v_mfma_f32_16x16x16_bf16 %s, v[%d:%d], v[%d:%d], %s" % (d, A, A + 1, 16 + 4 * u, 17 + 4 * u, "0" if u == 0 else d))
    a("s_mov_b32 exec_lo, 0x00ff00ff"); a("s_mov_b32 exec_hi, 0x00ff00ff")
    a("s_nop 7"); a("s_nop 1")
    a("ds_write_b128 v12, v[%d:%d] offset:256" % (SC + 4, SC + 7))
    a("ds_write_b128 v12, v[%d:%d] offset:768" % (SC + 8, SC + 11))
    a("s_mov_b32 exec_hi, 0")
    a("ds_write_b128 v12, v[%d:%d]" % (SC, SC + 3))
    a("s_mov_b64 exec, -1")
    a("s_waitcnt lgkmcnt(0)"); a("s_barrier")
    stamp(a, 2)
    a("s_cmp_lg_u32 s20, 0"); a("s_cbranch_scc1 chA_rest")
    for w in range(4):
        for hf in range(2):
            a("ds_read_b128 v[%d:%d], v14 offset:%d" % (52 + (w * 2 + hf) * 4, 55 + (w * 2 + hf) * 4, w * 1280 + hf * 16))
    a("v_cmp_gt_u32 vcc, 40, v1")
    a("v_mov_b32 v88, 0xff800000")
    a("s_waitcnt lgkmcnt(4)")
    for j in range(8): a("v_add_f32 v%d, v%d, v%d" % (52 + j, 52 + j, 60 + j))
    a("s_waitcnt lgkmcnt(0)")
    for j in range(8): a("v_add_f32 v%d, v%d, v%d" % (68 + j, 68 + j, 76 + j))
    for j in range(8): a("v_add_f32 v%d, v%d, v%d" % (52 + j, 52 + j, 68 + j))
    V = 52; T = 89
    c = 192 ** -0.5 * 1.4426950408889634
    ch = struct.unpack("<I", struct.pack("<f", c))[0]
    a("v_max3_f32 v%d, v52, v53, v54" % T); a("v_max3_f32 v%d, v55, v56, v57" % (T + 1)); a("v_max3_f32 v%d, v%d, v58, v59" % (T, T)); a("v_max_f32 v%d, v%d, v%d" % (T, T, T + 1))
    a("v_cndmask_b32 v%d, v88, v%d, vcc" % (T, T))
    def xred(op):
        a("s_nop 1")
        a("%s_dpp v%d, v%d, v%d row_ror:8 row_mask:0xf bank_mask:0xf" % (op, T, T, T))
        for sw in ("v_permlane16_swap_b32", "v_permlane32_swap_b32"):
            a("v_mov_b32 v%d, v%d" % (T + 1, T)); a("s_nop 1")
            a("%s v%d, v%d" % (sw, T, T + 1)); a("s_nop 1")
            a("%s v%d, v%d, v%d" % (op, T, T, T + 1))
    xred("v_max_f32")
    a("v_mul_f32 v%d, 0x%08x, v%d" % (T, ch, T)); a("v_mov_b32 v%d, 0x%08x" % (T + 2, ch))
    for j in range(8): a("v_fma_f32 v%d, v%d, v%d, -v%d" % (V + j, V + j, T + 2, T))
    for j in range(8): a("v_exp_f32 v%d, v%d" % (V + j, V + j))
    a("v_mov_b32 v88, 0")
    a("v_add_f32 v%d, v52, v53" % T); a("v_add_f32 v%d, v54, v55" % (T + 1)); a("v_add_f32 v%d, v56, v57" % (T + 3)); a("v_add_f32 v%d, v58, v59" % (T + 4))
    a("v_add_f32 v%d, v%d, v%d" % (T, T, T + 1)); a("v_add_f32 v%d, v%d, v%d" % (T + 3, T + 3, T + 4)); a("v_add_f32 v%d, v%d, v%d" % (T, T, T + 3))
    a("v_cndmask_b32 v%d, v88, v%d, vcc" % (T, T))
    xred("v_add_f32")
    a("v_rcp_f32 v%d, v%d" % (T, T)); a("s_nop 0")
    for j in range(8): a("v_mul_f32 v%d, v%d, v%d" % (V + j, V + j, T))
    for j in range(4): a("v_cvt_pk_bf16_f32 v%d, v%d, v%d" % (60 + j, 52 + 2 * j, 53 + 2 * j))
    a("s_add_u32 s23, s42, s43")
    a("s_mov_b32 exec_hi, 0xff")
    a("buffer_store_dwordx4 v[60:63], v11, s[48:51], s23 offen sc1")
    a("s_mov_b64 exec, -1")
    stamp(a, 3)
    a.put("chA_rest")
    km_and_prefetch()
    a("s_add_u32 s40, s40, 1"); a("s_add_u32 s41, s41, 10240"); a("s_add_u32 s42, s42, 20480")
    a("s_cmp_ge_u32 s40, 64"); a("s_cbranch_scc1 chA_end")
    a("s_cmp_lg_u32 s20, 0"); a("s_cbranch_scc1 chA_slp")
    if CFG["slpA0"]: a("s_sleep %d" % CFG["slpA0"])
    a("s_branch chA_loop")
    a.put("chA_slp")
    if CFG["slpA"]: a("s_sleep %d" % CFG["slpA"])
    a("s_branch chA_loop")
    a.put("chA_end")
    if M.TS:
        a("s_or_b32 s22, s2, s20"); a("s_cmp_lg_u32 s22, 0"); a("s_cbranch_scc1 chA_ts2")
        a("s_mov_b32 s23, 32"); tstamp(a, "s23"); a.put("chA_ts2")
    dbg_out(a, 0, 0)
    if M.MEGA:
        a("s_waitcnt vmcnt(0)"); a("s_barrier")
        a("s_cmp_lg_u32 s20, 0"); a("s_cbranch_scc1 chain_fin")
        for r in range(60, 64): a("v_mov_b32 v%d, 0" % r)
        a("s_add_u32 s23, s42, s43")
        a("s_mov_b32 exec_hi, 0xff")
        a("buffer_store_dwordx4 v[60:63], v11, s[48:51], s23 offen sc1")
        a("s_mov_b64 exec, -1")
        a("s_branch chain_fin")
    a("s_branch chain_end")
    a.put("chain_R")
    a("s_sub_u32 s24, s2, 32")
    a("s_mul_i32 s26, s24, 327680"); a("s_mul_i32 s27, s20, 81920"); a("s_add_u32 s26, s26, s27"); a("s_add_u32 s26, s26, %d" % WS_VO)
    srd_from_ptr(a, 32, 12, 81920, add="s26")
    a("s_mul_i32 s26, s20, %d" % (8 * 640)); a("s_lshl_b32 s27, s24, 3"); a("s_add_u32 s26, s26, s27")
    a("s_lshl_b32 s27, s26, 6"); a("s_add_u32 s27, s27, %d" % WS_U); a("s_sub_u32 s28, %d, s27" % (WS_U + 64 * 32 * 40960))
    srd_from_ptr(a, 36, 12, "s28", add="s27")
    a("s_lshl_b32 s27, s26, 4"); a("s_add_u32 s27, s27, %d" % WS_Y); a("s_sub_u32 s28, %d, s27" % (WS_Y + 64 * 32 * 10240))
    srd_from_ptr(a, 52, 12, "s28", add="s27")
    a("v_mul_u32_u24 v9, 1280, v3"); a("v_lshl_add_u32 v9, v2, 4, v9")
    def vfr(tt, ks):
        idx = tt * 20 + ks
        return ("a", idx * 4) if idx < 64 else ("v", 192 + (idx - 64) * 4)
    if M.MEGA:
        a("v_lshlrev_b32 v30, 2, v1"); a("v_lshlrev_b32 v31, 2, v1"); a("v_add_u32 v31, 256, v31")
        a("s_mov_b32 s22, %d" % F_VO)
        fpoll("chR_vo0", 30, "s22"); fpoll("chR_vo1", 31, "s22")
    for tt in range(4):
        for ks in range(20):
            a("s_mov_b32 s23, %d" % (tt * 20480 + ks * 64))
            a("buffer_load_dwordx4 %s, v9, s[32:35], s23 offen" % reg(vfr(tt, ks)))
    YLB = 16384
    a("v_and_b32 v10, 7, v3")
    a("v_lshrrev_b32 v14, 3, v3"); a("v_lshl_add_u32 v14, v14, 2, v2")
    a("s_lshl_b32 s22, s20, 10"); a("s_add_u32 s22, s22, %d" % YLB)
    for m in range(5):
        a("v_add_u32 v11, %d, v14" % (8 * m))
        a("v_mul_u32_u24 v12, 52, v11"); a("v_lshrrev_b32 v12, 8, v12")
        a("v_mul_u32_u24 v13, 5, v12"); a("v_sub_u32 v13, v11, v13")
        a("v_max_u32 v13, 1, v13"); a("v_subrev_u32 v13, 1, v13")
        a("v_mul_u32_u24 v%d, 40960, v12" % (16 + m)); a("v_lshl_add_u32 v%d, v13, 4, v%d" % (16 + m, 16 + m))
        a("v_lshl_add_u32 v%d, v10, 6, v%d" % (16 + m, 16 + m))
        a("v_lshlrev_b32 v%d, 7, v12" % (184 + m)); a("v_lshl_add_u32 v%d, v10, 4, v%d" % (184 + m, 184 + m)); a("v_add_u32 v%d, s22, v%d" % (184 + m, 184 + m))
    a("s_mul_i32 s23, s20, 5120"); a("v_lshlrev_b32 v21, 7, v14"); a("v_lshl_add_u32 v21, v10, 4, v21"); a("v_add_u32 v21, s23, v21")
    a("v_lshlrev_b32 v22, 4, v3"); a("v_lshl_add_u32 v22, v2, 3, v22"); a("v_add_u32 v22, s22, v22")
    a("v_lshlrev_b32 v24, 4, v1"); a("v_add_u32 v24, s22, v24")
    a("v_lshrrev_b32 v25, 3, v1"); a("v_mul_u32_u24 v25, 10240, v25"); a("v_and_b32 v11, 7, v1"); a("v_lshl_add_u32 v25, v11, 4, v25")
    RB = 24576
    a("v_lshlrev_b32 v27, 4, v1"); a("v_add_u32 v27, %d, v27" % RB); a("s_lshl_b32 s22, s20, 10"); a("v_add_u32 v26, s22, v27")
    a("s_lshl_b32 s22, s24, 7"); a("v_lshlrev_b32 v28, 4, v3"); a("v_lshl_add_u32 v28, v2, 3, v28"); a("v_add_u32 v28, s22, v28")
    a("s_mov_b32 s61, 0"); a("s_mov_b32 s62, 0")
    MS = [32, 44, 56][:S]; PS = [120, 140, 160][:S]
    def u_loads():
        for m in range(5):
            a("buffer_load_dwordx4 v[%d:%d], v%d, s[36:39], s61 offen" % (100 + 4 * m, 103 + 4 * m, 16 + m))
    if M.MEGA:
        a("v_and_b32 v30, 31, v1"); a("v_lshlrev_b32 v30, 2, v30")
        a("s_mov_b32 s22, %d" % F_U)
        fpoll("chR_fu0", 30, "s22")
        if HALF:
            a("s_mov_b32 s22, %d" % F_X)
            fpoll("chR_fu1", 30, "s22")
    u_loads()
    dbg_init(a)
    a.put("chR_loop")
    gather_mem(a, "chR", MS, 44, 41, 5, 0)
    stamp(a, 0)
    def rd(ks): a("ds_read_b128 v[%d:%d], v8 offset:%d" % (84 + (ks % ND) * 4, 87 + (ks % ND) * 4, ks * 512))
    for ks in range(ND - 1): rd(ks)
    for ks in range(20):
        if ks + ND - 1 < 20: rd(ks + ND - 1)
        rem = min(19, ks + ND - 1) - ks
        a("s_waitcnt lgkmcnt(%d)" % rem)
        mb = "v[%d:%d]" % (84 + (ks % ND) * 4, 87 + (ks % ND) * 4)
        for tt in range(4):
            d = "v[%d:%d]" % (68 + 4 * tt, 71 + 4 * tt)
            a("v_mfma_f32_16x16x32_bf16 %s, %s, %s, %s" % (d, mb, reg(vfr(tt, ks)), "0" if ks == 0 else d))
    a("s_nop 7"); a("s_nop 1")
    for tt in range(4):
        a("v_cvt_pk_bf16_f32 v%d, v%d, v%d" % (68 + 4 * tt, 68 + 4 * tt, 69 + 4 * tt))
        a("v_cvt_pk_bf16_f32 v%d, v%d, v%d" % (69 + 4 * tt, 70 + 4 * tt, 71 + 4 * tt))
    a("s_mov_b32 exec_hi, 0")
    for tt in range(4):
        a("ds_write_b64 v22, v[%d:%d] offset:%d" % (68 + 4 * tt, 69 + 4 * tt, tt * 256))
    a("s_mov_b64 exec, -1")
    a("s_waitcnt vmcnt(0) lgkmcnt(0)")
    for m in range(5):
        mask = 0
        for n in range(16):
            for g in range(4):
                if (m * 8 + (n >> 3) * 4 + g) % 5 == 0: mask |= 1 << (g * 16 + n)
        a("s_mov_b32 exec_lo, 0x%x" % (mask & 0xffffffff)); a("s_mov_b32 exec_hi, 0x%x" % (mask >> 32))
        a("ds_read_b128 v[%d:%d], v%d" % (100 + 4 * m, 103 + 4 * m, 184 + m))
    a("s_mov_b64 exec, -1")
    a("ds_read_b128 v[84:87], v24")
    a("s_waitcnt lgkmcnt(0)")
    a("buffer_store_dwordx4 v[84:87], v25, s[52:55], s62 offen%s" % ST())
    stamp(a, 1)
    def issue(k):
        for m in range(5):
            if m < 4: a("buffer_load_dwordx4 v[%d:%d], v21, s[48:51], s42 offen offset:%d sc1" % (PS[k] + 4 * m, PS[k] + 4 * m + 3, m * 1024))
            else:
                a("buffer_load_dwordx4 v[%d:%d], v29, s[48:51], s42 offen sc1" % (PS[k] + 4 * m, PS[k] + 4 * m + 3))
    a("v_add_u32 v29, 4096, v21")
    def succ(k):
        stamp(a, 2)
        for m in range(5):
            d = "v[%d:%d]" % (68 + 4 * (m & 1), 71 + 4 * (m & 1))
            a("v_mfma_f32_16x16x32_bf16 %s, v[%d:%d], v[%d:%d], %s" % (d, 100 + 4 * m, 103 + 4 * m, PS[k] + 4 * m, PS[k] + 4 * m + 3, "0" if m < 2 else d))
    spoll(a, "chRp", S, 5, issue, lambda k: list(range(PS[k], PS[k] + 20)), succ, CFG["slpR"], CFG["gap"])
    a("s_nop 7"); a("s_nop 1")
    for r in range(4): a("v_add_f32 v%d, v%d, v%d" % (68 + r, 68 + r, 72 + r))
    a("ds_write_b128 v26, v[68:71]")
    a("s_waitcnt lgkmcnt(0)"); a("s_barrier")
    a("s_cmp_lg_u32 s20, 0"); a("s_cbranch_scc1 chR_next")
    for w in range(4):
        a("ds_read_b128 v[%d:%d], v27 offset:%d" % (68 + 8 * w, 71 + 8 * w, w * 1024))
        a("ds_read_b128 v[%d:%d], v27 offset:%d" % (72 + 8 * w, 75 + 8 * w, w * 1024 + 40 * 16))
    a("s_waitcnt lgkmcnt(0)")
    for st in (16, 8, 4):
        for r in range(st): a("v_add_f32 v%d, v%d, v%d" % (68 + r, 68 + r, 68 + st + r))
    a("v_cvt_pk_bf16_f32 v68, v68, v69"); a("v_cvt_pk_bf16_f32 v69, v70, v71")
    a("v_min_u32 v68, 0xfffffffe, v68"); a("v_min_u32 v69, 0xfffffffe, v69")
    a("s_add_u32 s23, s41, 10240")
    a("s_mov_b32 exec_lo, 0x00ff00ff"); a("s_mov_b32 exec_hi, 0")
    a("buffer_store_dwordx2 v[68:69], v28, s[44:47], s23 offen sc1")
    a("s_mov_b64 exec, -1")
    stamp(a, 3)
    a.put("chR_next")
    a("s_add_u32 s40, s40, 1"); a("s_add_u32 s41, s41, 10240"); a("s_add_u32 s42, s42, 20480"); a("s_add_u32 s61, s61, %d" % (32 * 40960)); a("s_add_u32 s62, s62, %d" % (32 * 10240))
    a("s_cmp_ge_u32 s40, 64"); a("s_cbranch_scc1 chR_end")
    if M.MEGA:
        a("s_and_b32 s23, s40, 7"); a("s_cmp_lg_u32 s23, 0"); a("s_cbranch_scc1 chR_fu_ok")
        a("s_lshl_b32 s22, s40, 4"); a("s_add_u32 s22, s22, %d" % F_U)
        fpoll("chR_fu", 30, "s22")
    u_loads()
    if CFG["slpRm"]: a("s_sleep %d" % CFG["slpRm"])
    a("s_branch chR_loop")
    a.put("chR_end")
    dbg_out(a, 32, 32)
    if M.MEGA:
        a("s_waitcnt vmcnt(0)")
        spoll(a, "chRz", 1, 5, issue, lambda k: list(range(PS[k], PS[k] + 20)), lambda k: None, 4, 0)
        a("s_barrier")
        a("s_cmp_lg_u32 s20, 0"); a("s_cbranch_scc1 chain_fin")
        a("v_mov_b32 v68, 0"); a("v_mov_b32 v69, 0")
        a("s_add_u32 s23, s41, 10240")
        a("s_mov_b32 exec_lo, 0x00ff00ff"); a("s_mov_b32 exec_hi, 0")
        a("buffer_store_dwordx2 v[68:69], v28, s[44:47], s23 offen sc1")
        a("s_mov_b64 exec, -1")
        a.put("chain_fin"); a("s_branch task_next")
        a.put("chain_end"); a("s_branch mega_exit")
        return K, 512, 256
    a.put("chain_end"); a("s_endpgm")
    return K, 512, 256
```

```python
from gen import *
from gen2 import *

import os
EXP = os.environ.get("EXP", "")
def reads(a, mp, ks, buf, BUF=20):
    if "noread" in EXP: return
    if "b128" in EXP:
        for nt in range(4):
            d = BUF + buf * 16 + nt * 4
            a("ds_read_b128 v[%d:%d], v1000 offset:%d" .replace("v1000", "v250") % (d, d + 3, ks * 4096 + nt * 1024))
        return
    for nt in range(4):
        d = BUF + buf * 16 + nt * 4
        for half in range(2):
            if mp == "nat": a("ds_read_b64_tr_b16 v[%d:%d], v%d offset:%d" % (d + 2 * half, d + 2 * half + 1, 8 + half * 4 + nt, ks * 4096))
            else: a("ds_read_b64_tr_b16 v[%d:%d], v%d offset:%d" % (d + 2 * half, d + 2 * half + 1, 16 + nt, ks * 4096 + half * 2048))

def adj(a, mp, val):
    for r in (range(8, 16) if mp == "nat" else range(16, 20)):
        a("v_add_u32 v%d, %s, v%d" % (r, val, r))

def loop_phase(a, name, S, nks, mp, afr, swap, joined, epi, dma, wait_n, stores, pre_iter=None, post_bar=None):
    a.put(name)
    if pre_iter: pre_iter()
    for half in range(2):
        st = list(stores) if (not joined or half == 0) else []
        if "nostore" in EXP: st = []
        per = (len(st) + nks - 2) // (nks - 1) if st else 0
        for ks in range(nks):
            a("s_waitcnt lgkmcnt(0)")
            if ks == nks - 1:
                if post_bar and half == 1: post_bar(0)
                a("s_waitcnt vmcnt(%d)" % wait_n); a("s_barrier")
                if post_bar and half == 1: post_bar(1)
                dma(half)
                adj(a, mp, str(SLOT) if half == 0 else "s65")
                reads(a, mp, 0, (ks + 1) & 1)
            else:
                reads(a, mp, ks + 1, (ks + 1) & 1)
            for nt in range(4):
                b = "v[%d:%d]" % (20 + (ks & 1) * 16 + nt * 4, 20 + (ks & 1) * 16 + nt * 4 + 3)
                for mt in range(S.nmt):
                    d = S.accr(mt, nt); dd = "v[%d:%d]" % (d, d + 3)
                    k = ks + (half * nks if joined else 0)
                    f = reg(afr(k, mt)); c = "0" if k == 0 else dd
                    if swap: a("v_mfma_f32_16x16x32_bf16 %s, %s, %s, %s" % (dd, b, f, c))
                    else: a("v_mfma_f32_16x16x32_bf16 %s, %s, %s, %s" % (dd, f, b, c))
                if nt == 1:
                    for _ in range(per):
                        if st: st.pop(0)()
        assert not st
        if not joined or half == 1:
            a("s_nop 7"); a("s_nop 1")
            epi(half)
    a("s_sub_u32 s65, %d, s65" % (-81920 & 0xffffffff))
    a("s_xor_b32 s66, s66, 81920")
    a("s_sub_u32 s64, s64, 1"); a("s_cmp_lg_u32 s64, 0"); a("s_cbranch_scc1 %s" % name)

def qku_setup(a, nmt=4):
    a("s_load_dwordx4 s[4:7], s[0:1], %d" % KA["Wq"])
    a("s_load_dwordx4 s[8:11], s[0:1], %d" % KA["Wv"])
    a("s_load_dwordx2 s[12:13], s[0:1], %d" % KA["ws"])
    common_setup(a)
    if not M.MEGA:
        a("s_and_b32 s24, s2, 7"); a("s_lshl_b32 s24, s24, 2"); a("s_bfe_u32 s25, s2, 0x20003"); a("s_add_u32 s24, s24, s25")
        a("s_bfe_u32 s25, s2, 0x30005")
    else:
        a("s_and_b32 s24, s2, 31"); a("s_lshr_b32 s25, s2, 5")
    a("s_waitcnt lgkmcnt(0)")
    a("s_mul_i32 s26, s24, 384")
    a("s_sub_u32 s27, %d, s26" % (640 * 12288))
    a("s_lshl_b32 s29, s25, 2"); a("s_add_u32 s29, s29, s20")
    a("s_mul_i32 s30, s29, %d" % (16 * nmt * 1280)); a("s_add_u32 s30, s30, %d" % WS_H)
    srd_from_ptr(a, 48, 12, 16 * nmt * 1280, add="s30")
    dma_voff(a, 5, 12288, 244, 245, 246)
    dma_voff(a, 6, 1280, 244, 245, 246)
    tokbase(a, 244, 245)
    a("v_lshlrev_b32 v245, 4, v2")
    a("v_mul_u32_u24 v247, 1280, v244"); a("v_add_u32 v247, v247, v245")
    a("v_mul_u32_u24 v248, 12288, v244"); a("v_add_u32 v248, v248, v245")
    a("v_lshl_add_u32 v249, v3, 6, v245")
    a("v_lshlrev_b32 v250, 4, v1")
def hfr(k, mt):
    idx = mt * 20 + k
    return ("a", idx * 4) if idx < 64 else ("v", 116 + (idx - 64) * 4)
def load_h(a, nmt=4):
    for mt in range(nmt):
        for k in range(20):
            a("s_mov_b32 s23, %d" % ((mt * 20 + k) * 1024))
            a("buffer_load_dwordx4 %s, v250, s[48:51], s23 offen" % reg(hfr(k, mt)))

def gen_t1(a, nmt=4):
    K = "t1_kernel" if nmt == 4 else "t1h_kernel"
    kbegin(a, K, 64 if "q64" in EXP else (144 if "q144" in EXP else 256))
    def stp(i):
        if "stamp" in EXP: a("s_memtime s[%d:%d]" % (80 + 2 * i, 81 + 2 * i)); a("s_waitcnt lgkmcnt(0)")
    stp(0)
    qku_setup(a, nmt)
    srd_from_ptr(a, 32, 4, "s27", add="s26"); srd_from_ptr(a, 36, 6, "s27", add="s26")
    a("s_mul_i32 s30, s29, %d" % (16 * nmt * 12288)); a("s_add_u32 s30, s30, s26"); a("s_add_u32 s30, s30, %d" % WS_Q)
    srd_from_ptr(a, 52, 12, (WS_K - WS_Q) + 16 * nmt * 12288, add="s30")
    S = Stream(a, nmt, 52)
    load_h(a, nmt)
    def dma_unit_static(n, half):
        srd = 36 if n < 3 else 32
        for j in range(10):
            a("s_add_u32 m0, s21, %d" % (((n & 1) * 2 + half) * SLOT + j * 4096))
            a("s_mov_b32 s23, %d" % ((n % 3) * 128 + (half * 320 + j * 32) * 12288))
            a("buffer_load_dwordx4 v5, s[%d:%d], s23 offen lds" % (srd, srd + 3))
    for n in range(2):
        for half in range(2): dma_unit_static(n, half)
    a("s_mov_b32 s64, 6"); a("s_mov_b32 s65, %d" % SLOT); a("s_mov_b32 s66, s21")
    a("s_mov_b32 s72, 2")
    a("s_mov_b32 s73, 0x7f000000")
    a("s_mov_b32 s74, 0")
    stp(1)
    a("s_waitcnt vmcnt(30)"); a("s_barrier")
    stp(2)
    reads(a, "nat", 0, 0)
    def pre_iter():
        a("s_min_u32 s23, s72, 5"); a("s_cmp_lt_u32 s23, 3")
        a("s_cselect_b32 s68, s36, s32"); a("s_cselect_b32 s69, s37, s33"); a("s_mov_b32 s70, s34"); a("s_mov_b32 s71, 0x00020000")
        a("s_cselect_b32 s22, 0, 3"); a("s_sub_u32 s67, s23, s22"); a("s_lshl_b32 s67, s67, 7")
        a("s_add_u32 s72, s72, 1")
    def dma(half):
        for j in range(10 if "nodma" not in EXP else 0):
            a("s_add_u32 m0, s66, %d" % (half * SLOT + j * 4096))
            a("s_add_u32 s23, s67, %d" % ((half * 320 + j * 32) * 12288))
            a("buffer_load_dwordx4 v5, s[68:71], s23 offen lds")
    def epi(half):
        for mt in range(nmt):
            for q in range(2):
                x = S.accr(mt, 2 * q); y = S.accr(mt, 2 * q + 1); d = 180 + (mt * 2 + q) * 4
                a("v_cvt_pk_bf16_f32 v%d, v%d, v%d" % (d, x, x + 1)); a("v_cvt_pk_bf16_f32 v%d, v%d, v%d" % (d + 1, x + 2, x + 3))
                a("v_cvt_pk_bf16_f32 v%d, v%d, v%d" % (d + 2, y, y + 1)); a("v_cvt_pk_bf16_f32 v%d, v%d, v%d" % (d + 3, y + 2, y + 3))
        a("s_cmp_lt_u32 s74, 3"); a("s_cselect_b32 s73, %d, 0" % (WS_K - WS_Q)); a("s_cselect_b32 s22, 0, 3"); a("s_sub_u32 s22, s74, s22")
        a("s_lshl_b32 s22, s22, 7"); a("s_add_u32 s73, s73, s22"); a("s_add_u32 s74, s74, 1")
    def mk(mt, q):
        def f():
            d = 180 + (mt * 2 + q) * 4
            a("s_add_u32 s23, s73, %d" % (mtrow(mt) * 12288 + q * 64))
            a("buffer_store_dwordx4 v[%d:%d], v248, s[52:55], s23 offen%s" % (d, d + 3, ST()))
        return f
    stores = [mk(mt, q) for mt in range(nmt) for q in range(2)]
    def post_bar(ph):
        if not M.MEGA: return
        lab = "%s_nosig%d" % (K, ph)
        a("s_cmp_lg_u32 s74, 3"); a("s_cbranch_scc1 %s" % lab)
        if ph == 0: a("s_waitcnt vmcnt(10)")
        else: M.signal_mid(a)
        a.put(lab)
    loop_phase(a, K + "_loop", S, 10, "nat", hfr, True, True, epi, dma, 20, stores, pre_iter, post_bar)
    stp(3)
    for f in stores: f()
    if "stamp" in EXP:
        a("s_waitcnt vmcnt(0)"); stp(4)
        a("s_load_dwordx2 s[4:5], s[0:1], 120"); a("s_waitcnt lgkmcnt(0)")
        a("s_cmp_lg_u32 s2, 77"); a("s_cbranch_scc1 t1_kernel_end")
        a("s_mov_b32 s92, s4"); a("s_mov_b32 s93, s5"); a("s_mov_b32 s94, 256"); a("s_mov_b32 s95, 0x00020000")
        for i in range(4):
            a("s_sub_u32 s23, s%d, s%d" % (82 + 2 * i, 80 + 2 * i)); a("v_mov_b32 v%d, s23" % (8 + i))
        a("v_mov_b32 v12, 0"); a("v_cmp_eq_u32 vcc, 0, v0"); a("s_and_saveexec_b64 s[22:23], vcc"); a("s_cbranch_execz t1_kernel_end")
        a("buffer_store_dwordx4 v[8:11], v12, s[92:95], 0 offen")
    kend(a, K)
    return K, 512, 256

def gen_t2(a, nmt=4):
    K = "t2_kernel" if nmt == 4 else "t2h_kernel"
    kbegin(a, K, 64 if "q64" in EXP else (144 if "q144" in EXP else 256))
    qku_setup(a, nmt)
    srd_from_ptr(a, 40, 8, "s27", add="s26")
    a("s_mul_i32 s28, s24, 245760"); srd_from_ptr(a, 44, 10, 245760, add="s28")
    a("s_lshl_b32 s30, s29, %d" % (6 if nmt == 4 else 5)); a("s_add_u32 s30, s30, s24"); a("s_mul_i32 s30, s30, 40960"); a("s_add_u32 s30, s30, %d" % WS_U)
    srd_from_ptr(a, 60, 12, (33 if nmt == 4 else 1) * 40960, add="s30")
    S = Stream(a, nmt, 52)
    load_h(a, nmt)
    def vfr(k, mt):
        u = k // 2
        if u < 2: return ("v", 180 + ((u * 4 + mt) * 2 + (k & 1)) * 4)
        return ("v", 116 + (mt * 2 + (k & 1)) * 4)
    def dma_static(i):
        if i < 6:
            for j in range(10):
                a("s_add_u32 m0, s21, %d" % ((i % 4) * SLOT + j * 4096))
                a("s_mov_b32 s23, %d" % ((i // 2) * 128 + ((i & 1) * 320 + j * 32) * 12288))
                a("buffer_load_dwordx4 v5, s[40:43], s23 offen lds")
        else:
            for j in range(6):
                a("s_add_u32 m0, s21, %d" % ((i % 4) * SLOT + j * 4096))
                a("s_mov_b32 s23, %d" % ((i - 6) * 128 + j * 32 * 1280))
                a("buffer_load_dwordx4 v6, s[44:47], s23 offen lds")
    for i in range(4): dma_static(i)
    a("s_waitcnt vmcnt(30)"); a("s_barrier")
    reads(a, "nat", 0, 0)
    base = 0
    for i in range(6):
        for ks in range(10):
            k = (i & 1) * 10 + ks
            a("s_waitcnt lgkmcnt(0)")
            if ks == 9:
                cnt = sum((10 if x < 6 else 6) for x in (i + 2, i + 3))
                a("s_waitcnt vmcnt(%d)" % cnt); a("s_barrier")
                dma_static(i + 4)
                if i < 5:
                    adj(a, "nat", str((((i + 1) % 4) - (i % 4)) * SLOT & 0xffffffff)); reads(a, "nat", 0, 0)
                else:
                    adj(a, "pi", str(2 * SLOT)); reads(a, "pi", 0, 0)
            else: reads(a, "nat", ks + 1, (ks + 1) & 1)
            for nt in range(4):
                b = "v[%d:%d]" % (20 + (ks & 1) * 16 + nt * 4, 20 + (ks & 1) * 16 + nt * 4 + 3)
                for mt in range(nmt):
                    d = S.accr(mt, nt); dd = "v[%d:%d]" % (d, d + 3)
                    a("v_mfma_f32_16x16x32_bf16 %s, %s, %s, %s" % (dd, b, reg(hfr(k, mt)), "0" if k == 0 else dd))
        if i & 1:
            u = i // 2
            a("s_nop 7"); a("s_nop 1")
            for mt in range(nmt):
                for q in range(2):
                    x = S.accr(mt, 2 * q); y = S.accr(mt, 2 * q + 1); d = vfr(u * 2 + q, mt)[1]
                    a("v_cvt_pk_bf16_f32 v%d, v%d, v%d" % (d, x, x + 1)); a("v_cvt_pk_bf16_f32 v%d, v%d, v%d" % (d + 1, x + 2, x + 3))
                    a("v_cvt_pk_bf16_f32 v%d, v%d, v%d" % (d + 2, y, y + 1)); a("v_cvt_pk_bf16_f32 v%d, v%d, v%d" % (d + 3, y + 2, y + 3))
            a("s_nop 1")
    a("s_mov_b32 s64, 5"); a("s_mov_b32 s65, %d" % (-122880 & 0xffffffff)); a("s_add_u32 s66, s21, 81920")
    a("s_mov_b32 s72, %d" % (4 * 128))
    a("s_mov_b32 s73, 0x7f000000"); a("s_mov_b32 s74, 0")
    def dma(half):
        a("s_min_u32 s22, s72, %d" % (8 * 128))
        for j in range(6):
            a("s_add_u32 m0, s66, %d" % (half * SLOT + j * 4096))
            a("s_add_u32 s23, s22, %d" % (half * 128 + j * 32 * 1280))
            a("buffer_load_dwordx4 v6, s[44:47], s23 offen lds")
        if half == 1: a("s_add_u32 s72, s72, 256")
    def epi(half):
        for m in range(nmt // 2):
            for nt in range(4):
                x = S.accr(2 * m, nt); y = S.accr(2 * m + 1, nt); d = 148 + (m * 4 + nt) * 4
                a("v_cvt_pk_bf16_f32 v%d, v%d, v%d" % (d, x, x + 1)); a("v_cvt_pk_bf16_f32 v%d, v%d, v%d" % (d + 1, x + 2, x + 3))
                a("v_cvt_pk_bf16_f32 v%d, v%d, v%d" % (d + 2, y, y + 1)); a("v_cvt_pk_bf16_f32 v%d, v%d, v%d" % (d + 3, y + 2, y + 3))
        a("s_mov_b32 s73, s74"); a("s_add_u32 s74, s74, 4096")
    def mk(m, nt):
        def f():
            d = 148 + (m * 4 + nt) * 4
            a("s_add_u32 s23, s73, %d" % (m * 32 * 40960 + nt * 1024))
            a("buffer_store_dwordx4 v[%d:%d], v249, s[60:63], s23 offen%s" % (d, d + 3, ST()))
        return f
    stores = [mk(m, nt) for m in range(nmt // 2) for nt in range(4)]
    loop_phase(a, K + "_loop", S, 6, "pi", vfr, False, False, epi, dma, 12, stores)
    for f in stores: f()
    kend(a, K)
    return K, 512, 256
```

```python
from gen import *
from gen2 import *
import gen3, gen4, gen5, os
from gen3 import SPIN
POST = True
NT0 = 512
HALF = os.environ.get("HALF", "1") == "1"

WSLP = 32

def signal_mid(a):
    a("v_mov_b32 v251, 0"); a("s_mov_b64 exec, 1")
    a("buffer_store_dword v251, off, s[92:95], s99 sc1")
    a("s_mov_b64 exec, -1")

def wpoll(a, lab, srd, s_off, cnt, shift, slp=None):
    n = (cnt + 63) // 64
    for j in range(n):
        a("v_and_b32 v250, 63, v0"); a("v_add_u32 v250, %d, v250" % (64 * j)); a("v_min_u32 v250, %d, v250" % (cnt - 1)); a("v_lshlrev_b32 v%d, %d, v250" % (252 + j, shift))
    a("s_mov_b32 s60, 0")
    a.put(lab)
    for j in range(n): a("buffer_load_dword v%d, v%d, s[%d:%d], %s offen sc1" % (250 + j, 252 + j, srd, srd + 3, s_off))
    a("s_waitcnt vmcnt(0)")
    if n == 2: a("v_max_u32 v250, v250, v251")
    a("v_cmp_ne_u32 vcc, -1, v250"); a("s_nop 1"); a("s_cmp_eq_u64 vcc, exec"); a("s_cbranch_scc1 %s_ok" % lab)
    a("s_sleep %d" % (slp or WSLP))
    a("s_add_u32 s60, s60, 1"); a("s_cmp_gt_u32 s60, %d" % SPIN); a("s_cbranch_scc1 mega_exit")
    a("s_branch %s" % lab)
    a.put(lab + "_ok")

def ticket(a, off, sdst):
    a("s_cmp_lg_u32 s100, 0"); lab = a.label("tk"); a("s_cbranch_scc1 %s" % lab)
    a("v_mov_b32 v251, 1"); a("s_mov_b32 s23, %d" % off); a("s_mov_b64 exec, 1")
    a("buffer_atomic_add v251, off, s[92:95], s23 sc0 sc1")
    a("s_waitcnt vmcnt(0)")
    a("v_mov_b32 v252, 0"); a("ds_write_b32 v252, v251"); a("s_waitcnt lgkmcnt(0)")
    a("s_mov_b64 exec, -1")
    a.put(lab)
    a("s_barrier")
    a("v_mov_b32 v252, 0"); a("ds_read_b32 v251, v252"); a("s_waitcnt lgkmcnt(0)"); a("s_nop 0")
    a("v_readfirstlane_b32 s%d, v251" % sdst); a("s_nop 3")
    a("s_barrier")

TSR = int(os.environ.get("TSR", "55"))
def wstamp(a, which):
    if not M.TS: return
    lab = a.label("ws")
    a("s_sub_u32 s22, s97, %d" % (64 + NT0 + (20 if NT0 == 512 else 28) * TSR)); a("s_cmp_ge_u32 s22, 20"); a("s_cbranch_scc1 %s" % lab)
    a("s_cmp_lg_u32 s100, 0"); a("s_cbranch_scc1 %s" % lab)
    a("s_lshl_b32 s23, s22, 3"); a("s_add_u32 s23, s23, %d" % (96 + 4 * which)); tstamp(a, "s23")
    a.put(lab)
def gen_ln2m(a):
    a.put("ln2_kernel_entry")
    a("s_load_dwordx2 s[12:13], s[0:1], %d" % KA["ws"])
    a("s_waitcnt lgkmcnt(0)")
    srd_from_ptr(a, 32, 12, 2048 * 2560, add=hex(WS_X1))
    srd_from_ptr(a, 36, 12, 0x2000000)
    a("s_mov_b32 s24, s2"); a("s_mov_b32 s25, 8")
    a.put("ln2_lp")
    gen_ln_body(a, "ln2", True, 32, 36, WS_H2, 3, 4, 24)
    a("s_add_u32 s24, s24, 1"); a("s_sub_u32 s25, s25, 1"); a("s_cmp_lg_u32 s25, 0"); a("s_cbranch_scc1 ln2_lp")
    a("s_branch task_done")

def gen_mega(a):
    K = "mega_kernel"
    M.MEGA = True; M.signal_mid = staticmethod(signal_mid)
    kernel_begin(a, K)
    a("s_cmp_ge_u32 s2, 256"); a("s_cbranch_scc1 mega_exit2")
    a("s_load_dwordx2 s[12:13], s[0:1], %d" % KA["ws"])
    a("v_lshrrev_b32 v4, 6, v0"); a("s_nop 0"); a("v_readfirstlane_b32 s100, v4")
    a("s_waitcnt lgkmcnt(0)")
    srd_from_ptr(a, 92, 12, 0x10000)
    srd_from_ptr(a, 88, 12, 66 * 10240, add=hex(WS_MEM))
    if M.TS:
        a("s_load_dwordx2 s[14:15], s[0:1], %d" % KA["dbg"]); a("s_waitcnt lgkmcnt(0)")
        srd_from_ptr(a, 80, 14, 256)
    if os.environ.get("ROLE", "static") == "static": a("s_mov_b32 s96, s2")
    elif os.environ.get("ROLE", "").startswith("m"):
        a("s_getreg_b32 s22, hwreg(HW_REG_XCC_ID)"); a("s_and_b32 s22, s22, 15"); a("s_lshr_b32 s22, %s, s22" % os.environ["ROLE"][1:]); a("s_and_b32 s22, s22, 1")
        a("s_mov_b32 s96, 1000"); a("s_cmp_eq_u32 s22, 0"); a("s_cbranch_scc1 role_skip")
        ticket(a, WS_TKT, 96)
        a.put("role_skip")
    else: ticket(a, WS_TKT, 96)
    a("s_mov_b32 s101, 0")
    if M.TS:
        a("s_cmp_lg_u32 s96, 0"); a("s_cbranch_scc1 ts_a"); a("s_mov_b32 s23, 36"); tstamp(a, "s23"); a.put("ts_a")
    if M.TS:
        a("s_cmp_lg_u32 s100, 0"); a("s_cbranch_scc1 ts_hw")
        a("s_getreg_b32 s22, hwreg(HW_REG_XCC_ID)"); a("s_getreg_b32 s23, hwreg(HW_REG_HW_ID)")
        a("v_mov_b32 v250, s22"); a("v_mov_b32 v251, s23"); a("s_lshl_b32 s22, s96, 3"); a("s_add_u32 s22, s22, 0x4000")
        a("s_mov_b64 exec, 1"); a("buffer_store_dwordx2 v[250:251], off, s[92:95], s22"); a("s_mov_b64 exec, -1")
        a.put("ts_hw")
    a("s_cmp_ge_u32 s96, 112"); a("s_cbranch_scc1 task_take")
    a("s_mov_b32 s2, s96"); a("s_lshl_b32 s98, s96, 2"); a("s_add_u32 s98, s98, %d" % F_VO); a("s_mov_b32 s101, 1"); a("s_mov_b32 s97, 0x7fffffff"); a("s_branch vo_kernel_entry")
    a.put("task_done")
    a("s_mov_b64 exec, -1")
    a("s_waitcnt vmcnt(0) lgkmcnt(0)"); a("s_barrier")
    wstamp(a, 1)
    a("s_cmp_lg_u32 s100, 0"); a("s_cbranch_scc1 task_take")
    a("v_mov_b32 v251, 0"); a("s_mov_b64 exec, 1")
    a("buffer_store_dword v251, off, s[92:95], s98 sc1")
    a("s_mov_b64 exec, -1")
    a("s_branch task_take")
    a.put("task_next")
    a("s_mov_b64 exec, -1")
    a("s_waitcnt vmcnt(0) lgkmcnt(0)"); a("s_barrier")
    a.put("task_take")
    a("s_cmp_eq_u32 s101, 0"); a("s_cbranch_scc1 task_take2")
    a("s_mov_b32 s101, 0"); a("s_mov_b32 s2, s96"); a("s_branch chain_entry")
    a.put("task_take2")
    ticket(a, WS_TKT + 128, 97)
    a("s_cmp_ge_u32 s97, 16"); a("s_cbranch_scc1 task_nv")
    a("s_add_u32 s2, s97, 112"); a("s_lshl_b32 s98, s2, 2"); a("s_add_u32 s98, s98, %d" % F_VO); a("s_branch vo_kernel_entry")
    a.put("task_nv")
    a("s_sub_u32 s97, s97, 16")
    RS = 20 if NT0 == 512 else 28
    if HALF:
        a("s_cmp_lt_u32 s97, 64"); a("s_cbranch_scc1 task_l1")
        a("s_sub_u32 s24, s97, 64"); a("s_cmp_ge_u32 s24, 128"); a("s_cbranch_scc1 task_nh")
        a("s_cmp_lg_u32 s100, 0"); a("s_cbranch_scc1 task_h_go")
        a("s_mov_b32 s22, %d" % F_L1)
        wpoll(a, "w_h", 92, "s22", 8, 2, 8)
        a.put("task_h_go"); a("s_barrier")
        a("s_lshr_b32 s2, s24, 1")
        a("s_and_b32 s22, s2, 31"); a("s_lshl_b32 s22, s22, 2"); a("s_cmp_ge_u32 s2, 32"); a("s_cbranch_scc1 task_h1")
        a("s_add_u32 s98, s22, %d" % F_U); a("s_add_u32 s99, s22, %d" % F_K); a("s_add_u32 s23, s22, %d" % F_Q); a("s_branch task_h2")
        a.put("task_h1")
        a("s_add_u32 s98, s22, %d" % F_X); a("s_add_u32 s99, s22, %d" % (F_X + 128)); a("s_add_u32 s23, s22, %d" % (F_X + 256))
        a.put("task_h2")
        a("s_bitcmp1_b32 s24, 0"); a("s_cbranch_scc0 t2h_kernel_entry")
        a("s_mov_b32 s98, s23"); a("s_branch t1h_kernel_entry")
        a.put("task_nh")
        a("s_sub_u32 s97, s97, 64")
    a("s_cmp_ge_u32 s97, %d" % (64 + NT0)); a("s_cbranch_scc1 task_post")
    a("s_sub_u32 s24, s97, 64")
    a("s_cmp_ge_u32 s97, 64"); a("s_cbranch_scc1 task_t")
    a.put("task_l1")
    a("s_mov_b32 s2, s97"); a("s_lshl_b32 s98, s97, 2"); a("s_add_u32 s98, s98, %d" % F_L1); a("s_branch ln1_kernel_entry")
    a.put("task_t")
    a("s_cmp_lg_u32 s100, 0"); a("s_cbranch_scc1 task_t_go")
    a("s_lshr_b32 s22, s24, 6"); a("s_lshl_b32 s22, s22, 5"); a("s_add_u32 s22, s22, %d" % F_L1)
    wpoll(a, "w_t", 92, "s22", 8, 2, 8)
    a.put("task_t_go"); a("s_barrier")
    a("s_lshr_b32 s22, s24, 6"); a("s_bfe_u32 s23, s24, 0x50001"); a("s_lshl_b32 s2, s22, 5"); a("s_add_u32 s2, s2, s23")
    a("s_lshl_b32 s22, s2, 2")
    a("s_bitcmp1_b32 s24, 0"); a("s_cbranch_scc1 task_t1")
    a("s_add_u32 s98, s22, %d" % F_U); a("s_branch t2_kernel_entry")
    a.put("task_t1")
    a("s_add_u32 s98, s22, %d" % F_Q); a("s_add_u32 s99, s22, %d" % F_K); a("s_branch t1_kernel_entry")
    a.put("task_post")
    if M.TS:
        a("s_cmp_lg_u32 s97, %d" % (64 + NT0)); a("s_cbranch_scc1 ts_b"); a("s_mov_b32 s23, 40"); tstamp(a, "s23"); a.put("ts_b")
    if not POST:
        a("s_branch mega_exit")
    else:
        a("s_sub_u32 s22, s97, %d" % (64 + NT0)); a("s_mul_i32 s24, s22, %d" % (3277 if RS == 20 else 2341)); a("s_lshr_b32 s24, s24, 16")
        a("s_mul_i32 s23, s24, %d" % RS); a("s_sub_u32 s25, s22, s23")
        a("s_cmp_ge_u32 s24, 74"); a("s_cbranch_scc1 mega_exit")
        if RS == 28:
            a("s_cmp_lt_u32 s25, 20"); a("s_cbranch_scc1 task_np")
            a("s_lshl_b32 s24, s24, 3"); a("s_add_u32 s24, s24, s25"); a("s_add_u32 s24, s24, %d" % (NT0 - 20))
            a("s_cmp_ge_u32 s24, 512"); a("s_cbranch_scc1 task_take")
            a("s_branch task_t")
            a.put("task_np")
        a("s_cmp_ge_u32 s25, 14"); a("s_cbranch_scc1 task_ffn")
        a("s_cmp_ge_u32 s25, 13"); a("s_cbranch_scc1 task_ln2")
        a("s_cmp_ge_u32 s25, 8"); a("s_cbranch_scc1 task_po")
        a("s_cmp_ge_u32 s24, 64"); a("s_cbranch_scc1 task_take")
        a("s_lshl_b32 s2, s24, 3"); a("s_add_u32 s2, s2, s25"); a("s_lshl_b32 s98, s2, 2"); a("s_add_u32 s98, s98, %d" % F_PA)
        a("s_cmp_lg_u32 s100, 0"); a("s_cbranch_scc1 task_pa_go")
        a("s_lshr_b32 s22, s24, 3"); a("s_lshl_b32 s22, s22, 7"); a("s_add_u32 s22, s22, %d" % F_Q)
        wpoll(a, "w_pa1", 92, "s22", 32, 2)
        if HALF:
            a("s_cmp_ge_u32 s24, 8"); a("s_cbranch_scc1 w_pa1x_ok")
            a("s_mov_b32 s22, %d" % (F_X + 256))
            wpoll(a, "w_pa1x", 92, "s22", 32, 2)
        a("s_add_u32 s22, s24, 2"); a("s_mul_i32 s22, s22, 10240")
        wpoll(a, "w_pa2", 88, "s22", 80, 7)
        a.put("task_pa_go"); wstamp(a, 0); a("s_barrier"); a("s_branch pattn_kernel_entry")
        a.put("task_po")
        a("s_sub_u32 s24, s24, 1"); a("s_cmp_ge_u32 s24, 64"); a("s_cbranch_scc1 task_take")
        a("s_sub_u32 s25, s25, 8"); a("s_mul_i32 s2, s24, 5"); a("s_add_u32 s2, s2, s25")
        a("s_lshl_b32 s98, s24, 5"); a("s_lshl_b32 s22, s25, 2"); a("s_add_u32 s98, s98, s22"); a("s_add_u32 s98, s98, %d" % F_PO)
        a("s_cmp_lg_u32 s100, 0"); a("s_cbranch_scc1 task_po_go")
        a("s_lshl_b32 s22, s24, 5"); a("s_add_u32 s22, s22, %d" % F_PA)
        wpoll(a, "w_po", 92, "s22", 8, 2)
        a.put("task_po_go"); wstamp(a, 0); a("s_barrier"); a("s_branch pout_kernel_entry")
        a.put("task_ln2")
        a("s_sub_u32 s24, s24, 2"); a("s_cmp_ge_u32 s24, 64"); a("s_cbranch_scc1 task_take")
        a("s_mov_b32 s2, s24"); a("s_lshl_b32 s98, s24, 2"); a("s_add_u32 s98, s98, %d" % F_L2)
        a("s_cmp_lg_u32 s100, 0"); a("s_cbranch_scc1 task_ln2_go")
        a("s_lshl_b32 s22, s24, 5"); a("s_add_u32 s22, s22, %d" % F_PO)
        wpoll(a, "w_ln2", 92, "s22", 5, 2)
        a.put("task_ln2_go"); wstamp(a, 0); a("s_barrier"); a("s_branch ln2_kernel_entry")
        a.put("task_ffn")
        a("s_cmp_lt_u32 s24, 10"); a("s_cbranch_scc1 task_take")
        a("s_sub_u32 s24, s24, 10"); a("s_mul_i32 s24, s24, 6"); a("s_add_u32 s24, s24, s25"); a("s_sub_u32 s24, s24, 14")
        a("s_mul_i32 s25, s24, 1366"); a("s_lshr_b32 s25, s25, 16")
        a("s_mul_i32 s22, s25, 48"); a("s_sub_u32 s24, s24, s22")
        a("s_cmp_ge_u32 s24, 44"); a("s_cbranch_scc1 task_take")
        a("s_cmp_ge_u32 s24, 24"); a("s_cbranch_scc1 task_f2")
        a("s_lshl_b32 s2, s24, 3"); a("s_add_u32 s2, s2, s25")
        a("s_lshl_b32 s98, s25, 7"); a("s_lshl_b32 s22, s24, 2"); a("s_add_u32 s98, s98, s22"); a("s_add_u32 s98, s98, %d" % F_F1)
        a("s_cmp_lg_u32 s100, 0"); a("s_cbranch_scc1 task_f1_go")
        a("s_lshl_b32 s22, s25, 5"); a("s_add_u32 s22, s22, %d" % F_L2)
        wpoll(a, "w_f1", 92, "s22", 8, 2)
        a.put("task_f1_go"); wstamp(a, 0); a("s_barrier"); a("s_branch ffn1_kernel_entry")
        a.put("task_f2")
        a("s_sub_u32 s24, s24, 24"); a("s_lshl_b32 s2, s25, 1")
        a("s_cmp_lt_u32 s24, 10"); a("s_cbranch_scc1 task_f2a")
        a("s_sub_u32 s24, s24, 10"); a("s_add_u32 s2, s2, 1")
        a.put("task_f2a")
        a("s_lshl_b32 s22, s24, 4"); a("s_add_u32 s2, s2, s22")
        a("s_mov_b32 s98, %d" % (F_F1 + 2048))
        a("s_cmp_lg_u32 s100, 0"); a("s_cbranch_scc1 task_f2_go")
        a("s_lshl_b32 s22, s25, 7"); a("s_add_u32 s22, s22, %d" % F_F1)
        wpoll(a, "w_f2", 92, "s22", 24, 2)
        a.put("task_f2_go"); wstamp(a, 0); a("s_barrier"); a("s_branch ffn2_kernel_entry")
    a.put("mega_exit")
    if M.TS:
        a("s_cmp_ge_u32 s2, 100000"); a("s_cbranch_scc1 ts_c")
        a("s_mov_b32 s23, 44"); tstamp(a, "s23", atomic=True); a.put("ts_c")
    a("s_endpgm")
    a.put("mega_exit2"); a("s_endpgm")
    gen4.gen_chain(a)
    gen5.gen_t2(a); gen5.gen_t1(a)
    if HALF: gen5.gen_t2(a, 2); gen5.gen_t1(a, 2)
    if POST:
        gen3.gen_pattn(a); gen3.gen_pout(a); gen_ln_seg(a, "ln2_kernel", True, "ws", WS_X1, 2048 * 2560, WS_H2, 3, 4); gen_ln_seg(a, "ln1_kernel", False, "x", 0, 2048 * 1280, WS_H, 0, 1); gen_vo_ln(a); gen_ffn1(a); gen_ffn2(a)
    M.MEGA = False
    return K, 512, 256

def gen_ln_seg(a, name, src_f32, src_ka, src_add, src_size, dst_off, shift_i, scale_i):
    NR = 8
    a.put(name + "_entry")
    a("s_load_dwordx2 s[12:13], s[0:1], %d" % KA["ws"])
    a("s_load_dwordx2 s[6:7], s[0:1], %d" % KA[src_ka])
    a("v_and_b32 v1, 63, v0"); a("v_lshlrev_b32 v3, 2, v1"); a("v_lshlrev_b32 v5, 3, v1")
    a("s_waitcnt lgkmcnt(0)")
    srd_from_ptr(a, 32, 6, src_size, add=(hex(src_add) if src_add else None))
    srd_from_ptr(a, 36, 12, 0x2000000)
    a("s_lshl_b32 s24, s2, 5"); a("s_lshl_b32 s25, s100, 3"); a("s_add_u32 s24, s24, s25")
    X = 20; T = 160
    rs = 2560 if src_f32 else 1280
    a("s_mul_i32 s26, s24, %d" % rs)
    for r in range(NR):
        a("s_add_u32 s23, s26, %d" % (r * rs))
        for j in range(5):
            if src_f32: a("buffer_load_dwordx2 v[%d:%d], v5, s[32:35], s23 offen offset:%d" % (X + r * 10 + 2 * j, X + r * 10 + 2 * j + 1, j * 512))
            else: a("buffer_load_dword v%d, v3, s[32:35], s23 offen offset:%d" % (100 + r * 5 + j, j * 256))
    for j in range(5):
        a("s_mov_b32 s14, %d" % (WS_MOD + scale_i * 2560 + j * 512))
        a("buffer_load_dwordx2 v[%d:%d], v5, s[36:39], s14 offen" % (140 + 2 * j, 141 + 2 * j))
        a("s_mov_b32 s14, %d" % (WS_MOD + shift_i * 2560 + j * 512))
        a("buffer_load_dwordx2 v[%d:%d], v5, s[36:39], s14 offen" % (150 + 2 * j, 151 + 2 * j))
    a("v_lshrrev_b32 v6, 4, v1"); a("v_lshlrev_b32 v4, 10, v6"); a("v_bfe_u32 v6, v1, 2, 2"); a("v_lshl_add_u32 v4, v6, 8, v4"); a("v_and_b32 v6, 3, v1"); a("v_lshl_add_u32 v4, v6, 2, v4")
    a("s_lshr_b32 s27, s2, 1"); a("s_mul_i32 s27, s27, 81920"); a("s_and_b32 s28, s2, 1"); a("s_mul_i32 s28, s28, 40960"); a("s_add_u32 s27, s27, s28")
    a("s_lshl_b32 s28, s100, 6"); a("v_add_u32 v4, s28, v4"); a("s_add_u32 s27, s27, %d" % dst_off)
    a("s_waitcnt vmcnt(0)")
    S = [168 + r for r in range(NR)]; TM = [T + i for i in range(NR)]
    TM = [176 + i for i in range(NR + 1)]
    for r in range(NR):
        x = X + r * 10
        if not src_f32:
            for j in range(5):
                a("v_lshlrev_b32 v%d, 16, v%d" % (x + 2 * j, 100 + r * 5 + j)); a("v_and_b32 v%d, 0xffff0000, v%d" % (x + 2 * j + 1, 100 + r * 5 + j))
        a("v_add_f32 v%d, v%d, v%d" % (S[r], x, x + 1))
        for j in range(2, 10): a("v_add_f32 v%d, v%d, v%d" % (S[r], S[r], x + j))
    wave_sum(a, S, TM, 3, NR)
    for r in range(NR):
        x = X + r * 10
        a("v_mul_f32 v%d, 0x3acccccd, v%d" % (S[r], S[r]))
        for j in range(10): a("v_sub_f32 v%d, v%d, v%d" % (x + j, x + j, S[r]))
        a("v_mul_f32 v%d, v%d, v%d" % (S[r], x, x))
        for j in range(1, 10): a("v_fmac_f32 v%d, v%d, v%d" % (S[r], x + j, x + j))
    wave_sum(a, S, TM, 3, NR)
    for j in range(10): a("v_add_f32 v%d, 1.0, v%d" % (140 + j, 140 + j))
    for r in range(NR):
        x = X + r * 10
        a("v_mov_b32 v7, 0x3727c5ac"); a("v_fmac_f32 v7, 0x3acccccd, v%d" % S[r]); a("v_rsq_f32 v7, v7"); a("s_nop 0")
        for j in range(10):
            a("v_mul_f32 v%d, v%d, v7" % (x + j, x + j)); a("v_fma_f32 v%d, v%d, v%d, v%d" % (x + j, x + j, 140 + j, 150 + j))
        for j in range(5):
            a("v_cvt_pk_bf16_f32 v%d, v%d, v%d" % (x + j, x + 2 * j, x + 2 * j + 1))
            a("ds_write_b32 v4, v%d offset:%d" % (x + j, (r >> 2) * 20480 + (r & 3) * 16 + j * 4096))
    a("s_waitcnt lgkmcnt(0)"); a("s_barrier")
    a("v_lshlrev_b32 v5, 4, v0")
    for j in range(10): a("ds_read_b128 v[%d:%d], v5 offset:%d" % (20 + 4 * j, 23 + 4 * j, j * 4096))
    for j in range(10):
        a("s_waitcnt lgkmcnt(%d)" % (9 - j))
        a("s_add_u32 s14, s27, %d" % (j * 4096))
        a("buffer_store_dwordx4 v[%d:%d], v5, s[36:39], s14 offen%s" % (20 + 4 * j, 23 + 4 * j, ST()))
    a("s_branch task_done")
```

```python
from gen import *

class Stream:
    BUF = 20
    def __init__(self, a, nmt, acc, nslot=4, slot_bytes=SLOT):
        self.a = a; self.nmt = nmt; self.acc = acc
        self.q = VMQ(a); self.slots = []; self.units = []
        self.nslot = nslot; self.sb = slot_bytes
        self.base = dict(nat=0, pi=0)
    def accr(self, mt, nt): return self.acc + (mt * 4 + nt) * 4
    def add_slot(self, srd, voff, soff, rs, nrows, mp):
        self.slots.append(dict(srd=srd, voff=voff, soff=soff, rs=rs, nrows=nrows, mp=mp)); return len(self.slots) - 1
    def add_unit(self, slots, afr, swap, epi):
        self.units.append(dict(slots=slots, afr=afr, swap=swap, epi=epi))
    def dma(self, i):
        if i >= len(self.slots): return
        a = self.a; sl = self.slots[i]
        base = (i % self.nslot) * self.sb
        for j in range(sl["nrows"] // 32):
            a("s_add_u32 m0, s21, %d" % (base + j * 4096))
            a("s_mov_b32 s23, %d" % (sl["soff"] + j * 32 * sl["rs"]))
            a("buffer_load_dwordx4 v%d, s[%d:%d], s23 offen lds" % (sl["voff"], sl["srd"], sl["srd"] + 3))
            self.q.op()
        self.q.mark(("dma", i))
    def reads(self, si, ks, buf):
        a = self.a; sl = self.slots[si]; mp = sl["mp"]
        want = (si % self.nslot) * self.sb
        if self.base[mp] != want:
            d = want - self.base[mp]
            regs = range(8, 16) if mp == "nat" else range(16, 20)
            for r in regs:
                if d > 0: a("v_add_u32 v%d, %d, v%d" % (r, d, r))
                else: a("v_subrev_u32 v%d, %d, v%d" % (r, -d, r))
            self.base[mp] = want
        for nt in range(4):
            d = self.BUF + buf * 16 + nt * 4
            for half in range(2):
                if mp == "nat":
                    a("ds_read_b64_tr_b16 v[%d:%d], v%d offset:%d" % (d + 2 * half, d + 2 * half + 1, 8 + half * 4 + nt, ks * 4096))
                else:
                    a("ds_read_b64_tr_b16 v[%d:%d], v%d offset:%d" % (d + 2 * half, d + 2 * half + 1, 16 + nt, ks * 4096 + half * 2048))
    def run(self):
        a = self.a
        seq = []
        for u in self.units:
            k = 0
            tot = sum(self.slots[s]["nrows"] // 32 for s in u["slots"])
            for s in u["slots"]:
                for ks in range(self.slots[s]["nrows"] // 32):
                    seq.append((s, ks, u, k, k == tot - 1)); k += 1
        import gen3
        st = (lambda k: gen3.stamp(a, k)) if getattr(self, "dbg", False) else (lambda k: None)
        if getattr(self, "dbg", False): gen3.dbg_init(a)
        for i in range(self.nslot): self.dma(i)
        if getattr(self, "pre", None):
            self.pre(); a("s_waitcnt vmcnt(0)"); a("s_barrier")
        else:
            self.q.wait(("dma", 0)); a("s_barrier")
        st(0)
        self.reads(seq[0][0], seq[0][1], 0)
        for n, (s, ks, u, k, last) in enumerate(seq):
            a("s_waitcnt lgkmcnt(0)")
            if n + 1 < len(seq):
                s2, ks2 = seq[n + 1][0], seq[n + 1][1]
                if s2 != s:
                    st(1)
                    self.q.wait(("dma", s2)); a("s_barrier")
                    st(2)
                    self.dma(s + self.nslot)
                self.reads(s2, ks2, (n + 1) & 1)
            for nt in range(4):
                b = "v[%d:%d]" % (self.BUF + (n & 1) * 16 + nt * 4, self.BUF + (n & 1) * 16 + nt * 4 + 3)
                for mt in range(self.nmt):
                    d = self.accr(mt, nt); dd = "v[%d:%d]" % (d, d + 3)
                    f = reg(u["afr"](k, mt))
                    c = "0" if k == 0 else dd
                    if u["swap"]: a("v_mfma_f32_16x16x32_bf16 %s, %s, %s, %s" % (dd, b, f, c))
                    else: a("v_mfma_f32_16x16x32_bf16 %s, %s, %s, %s" % (dd, f, b, c))
            if last:
                a("s_nop 7"); a("s_nop 1")
                st(1)
                u["epi"]()
                a("s_nop 1")
                st(3)
        if getattr(self, "dbg", False): gen3.dbg_out(a, 5, 0)

def common_setup(a, s_nat=True, s_pi=True):
    lane_setup(a)
    if s_nat: tr_addr_nat(a, 8, 5, 6, 7)
    if s_pi: tr_addr_pi(a, 16, 5, 6, 7)

def tokbase(a, vd, vt):
    a("v_lshrrev_b32 v%d, 2, v3" % vd)
    a("v_and_b32 v%d, 3, v3" % vt)
    a("v_lshl_add_u32 v%d, v%d, 3, v%d" % (vd, vd, vt))
def mtrow(mt): return (mt >> 1) * 32 + (mt & 1) * 4

def pack_pi(a, S, mt, q):
    x = S.accr(mt, 2 * q); y = S.accr(mt, 2 * q + 1)
    a("v_cvt_pk_bf16_f32 v%d, v%d, v%d" % (x, x, x + 1))
    a("v_cvt_pk_bf16_f32 v%d, v%d, v%d" % (x + 1, x + 2, x + 3))
    a("v_cvt_pk_bf16_f32 v%d, v%d, v%d" % (x + 2, y, y + 1))
    a("v_cvt_pk_bf16_f32 v%d, v%d, v%d" % (x + 3, y + 2, y + 3))
    return x

def u_epilogue(a, S, q, vU, srd, u, mstride, cstride16):
    def epi():
        for m in range(S.nmt // 2):
            for nt in range(4):
                x = S.accr(2 * m, nt); y = S.accr(2 * m + 1, nt)
                a("v_cvt_pk_bf16_f32 v%d, v%d, v%d" % (x, x, x + 1))
                a("v_cvt_pk_bf16_f32 v%d, v%d, v%d" % (x + 1, x + 2, x + 3))
                a("v_cvt_pk_bf16_f32 v%d, v%d, v%d" % (x + 2, y, y + 1))
                a("v_cvt_pk_bf16_f32 v%d, v%d, v%d" % (x + 3, y + 2, y + 3))
                a("s_mov_b32 s23, %d" % (m * mstride + (u * 4 + nt) * cstride16))
                a("buffer_store_dwordx4 v[%d:%d], v%d, s[%d:%d], s23 offen%s" % (x, x + 3, vU, srd, srd + 3, ST()))
                q.op()
    return epi

def gen_qku(a, part="all"):
    K = "qku_kernel" if part == "all" else "qku%s_kernel" % part
    kbegin(a, K, 256)
    a("s_load_dwordx4 s[4:7], s[0:1], %d" % KA["Wq"])
    a("s_load_dwordx4 s[8:11], s[0:1], %d" % KA["Wv"])
    a("s_load_dwordx2 s[12:13], s[0:1], %d" % KA["ws"])
    common_setup(a)
    a("s_and_b32 s24, s2, 7"); a("s_lshl_b32 s24, s24, 2"); a("s_bfe_u32 s25, s2, 0x20003"); a("s_add_u32 s24, s24, s25")
    a("s_lshr_b32 s25, s2, 5")
    a("s_waitcnt lgkmcnt(0)")
    a("s_mul_i32 s26, s24, 384")
    WSZ = 640 * 12288
    a("s_sub_u32 s27, %d, s26" % WSZ)
    srd_from_ptr(a, 32, 4, "s27", add="s26"); srd_from_ptr(a, 36, 6, "s27", add="s26"); srd_from_ptr(a, 40, 8, "s27", add="s26")
    a("s_mul_i32 s28, s24, 245760")
    srd_from_ptr(a, 44, 10, 245760, add="s28")
    a("s_lshl_b32 s29, s25, 2"); a("s_add_u32 s29, s29, s20")
    a("s_mul_i32 s30, s29, %d" % (64 * 1280)); a("s_add_u32 s30, s30, %d" % WS_H)
    srd_from_ptr(a, 48, 12, 64 * 1280, add="s30")
    a("s_mul_i32 s30, s29, %d" % (64 * 12288)); a("s_add_u32 s30, s30, s26")
    a("s_add_u32 s31, s30, %d" % WS_Q); srd_from_ptr(a, 52, 12, 64 * 12288, add="s31")
    a("s_add_u32 s31, s30, %d" % WS_K); srd_from_ptr(a, 56, 12, 64 * 12288, add="s31")
    a("s_lshl_b32 s30, s29, 6"); a("s_add_u32 s30, s30, s24"); a("s_mul_i32 s30, s30, 40960"); a("s_add_u32 s30, s30, %d" % WS_U)
    srd_from_ptr(a, 60, 12, 33 * 40960, add="s30")
    dma_voff(a, 5, 12288, 244, 245, 246)
    dma_voff(a, 6, 1280, 244, 245, 246)
    tokbase(a, 244, 245)
    a("v_lshlrev_b32 v245, 4, v2")
    a("v_mul_u32_u24 v247, 1280, v244"); a("v_add_u32 v247, v247, v245")
    a("v_mul_u32_u24 v248, 12288, v244"); a("v_add_u32 v248, v248, v245")
    a("v_lshl_add_u32 v249, v3, 6, v245")
    S = Stream(a, 4, 52)
    S.dbg = True
    def hfr(k, mt):
        idx = mt * 20 + k
        return ("a", idx * 4) if idx < 64 else ("v", 116 + (idx - 64) * 4)
    for mt in range(4):
        for k in range(20):
            a("s_mov_b32 s23, %d" % (mtrow(mt) * 1280 + k * 64))
            a("buffer_load_dwordx4 %s, v247, s[48:51], s23 offen" % reg(hfr(k, mt))); S.q.op()
    def vfr(k, mt):
        u = k // 2
        if u < 2: return ("v", 180 + ((u * 4 + mt) * 2 + (k & 1)) * 4)
        return ("v", 116 + (mt * 2 + (k & 1)) * 4)
    mats = dict(all=(("k", 36), ("q", 32), ("v", 40)), T1=(("k", 36), ("q", 32)), T2=(("v", 40),))[part]
    for mat, srd in mats:
        for u in range(3):
            sl = [S.add_slot(srd, 5, u * 128 + hh * 320 * 12288, 12288, 320, "nat") for hh in range(2)]
            if mat != "v":
                def epi(u=u, srdo=(52 if mat == "q" else 56), mat=mat):
                    for mt in range(4):
                        for q in range(2):
                            x = pack_pi(a, S, mt, q)
                            a("s_mov_b32 s23, %d" % (mtrow(mt) * 12288 + u * 128 + q * 64))
                            a("buffer_store_dwordx4 v[%d:%d], v248, s[%d:%d], s23 offen%s" % (x, x + 3, srdo, srdo + 3, ST())); S.q.op()
                    if M.MEGA and mat == "k" and u == 2: M.signal_mid(a)
            else:
                def epi(u=u):
                    for mt in range(4):
                        for q in range(2):
                            x = S.accr(mt, 2 * q); y = S.accr(mt, 2 * q + 1); d = vfr(u * 2 + q, mt)[1]
                            a("v_cvt_pk_bf16_f32 v%d, v%d, v%d" % (d, x, x + 1))
                            a("v_cvt_pk_bf16_f32 v%d, v%d, v%d" % (d + 1, x + 2, x + 3))
                            a("v_cvt_pk_bf16_f32 v%d, v%d, v%d" % (d + 2, y, y + 1))
                            a("v_cvt_pk_bf16_f32 v%d, v%d, v%d" % (d + 3, y + 2, y + 3))
            S.add_unit(sl, hfr, True, epi)
    for u in range(10 if part != "T1" else 0):
        sl = [S.add_slot(44, 6, u * 128, 1280, 192, "pi")]
        S.add_unit(sl, vfr, False, u_epilogue(a, S, S.q, 249, 60, u, 32 * 40960, 1024))
    S.run()
    kend(a, K)
    return K, 512, 256

def gen_vo_ln(a, pv=False):
    K = "voln_kernel" if not pv else "pv_kernel"
    if M.MEGA: a.put("vo_kernel_entry")
    else:
        kernel_begin(a, K)
        a("s_cmp_ge_u32 s2, %d" % (256 if pv else 640)); a("s_cbranch_scc1 voln_end")
        a("s_cmp_ge_u32 s2, 128"); a("s_cbranch_scc1 voln_ln")
    a("s_load_dwordx4 s[8:11], s[0:1], %d" % KA["Wv"])
    a("s_load_dwordx2 s[12:13], s[0:1], %d" % KA["ws"])
    common_setup(a)
    a("s_and_b32 s24, s2, 31"); a("s_bfe_u32 s25, s2, 0x10005"); a("s_lshr_b32 s26, s2, 6")
    a("s_waitcnt lgkmcnt(0)")
    a("s_lshl_b32 s27, s25, 2"); a("s_add_u32 s27, s27, s20"); a("s_mul_i32 s27, s27, 80"); a("s_min_u32 s27, s27, 544")
    a("s_mul_i32 s28, s27, 12288"); a("s_mul_i32 s29, s24, 384"); a("s_add_u32 s28, s28, s29")
    a("s_sub_u32 s29, %d, s28" % (640 * 12288))
    srd_from_ptr(a, 32, 8, "s29", add="s28")
    a("s_mul_i32 s28, s24, 245760"); a("s_mul_i32 s29, s26, 640"); a("s_add_u32 s28, s28, s29")
    a("s_sub_u32 s29, %d, s28" % (32 * 245760))
    srd_from_ptr(a, 44, 10, "s29", add="s28")
    a("s_mul_i32 s28, s26, %d" % (40 * 32 * 10240)); a("s_lshr_b32 s29, s24, 1"); a("s_mul_i32 s29, s29, 20480"); a("s_add_u32 s28, s28, s29")
    a("s_and_b32 s29, s24, 1"); a("s_lshl_b32 s29, s29, 7"); a("s_add_u32 s28, s28, s29")
    a("s_lshl_b32 s29, s27, 5"); a("s_add_u32 s28, s28, s29"); a("s_add_u32 s28, s28, %d" % WS_VO)
    srd_from_ptr(a, 60, 12, 40 * 32 * 10240, add="s28")
    dma_voff(a, 6, 1280, 244, 245, 246)
    tokbase(a, 244, 245)
    a("v_lshlrev_b32 v245, 4, v2")
    a("v_mul_u32_u24 v247, 12288, v244"); a("v_add_u32 v247, v247, v245")
    a("v_lshrrev_b32 v249, 3, v3"); a("v_mul_u32_u24 v249, 327680, v249")
    a("v_and_b32 v246, 7, v3"); a("v_lshlrev_b32 v246, 4, v246"); a("v_add_u32 v249, v249, v246"); a("v_lshl_add_u32 v249, v2, 8, v249")
    S = Stream(a, 6, 52)
    def hfr(k, mt): return ("a", (mt * 6 + k) * 4)
    for mt in range(6):
        for k in range(6):
            a("s_mov_b32 s23, %d" % (mtrow(mt) * 12288 + k * 64))
            a("buffer_load_dwordx4 %s, v247, s[32:35], s23 offen" % reg(hfr(k, mt))); S.q.op()
    for u in range(5):
        sl = [S.add_slot(44, 6, u * 128, 1280, 192, "nat")]
        S.add_unit(sl, hfr, False, u_epilogue(a, S, S.q, 249, 60, u, 1024, 2 * 327680))
    S.run()
    if M.MEGA:
        a("s_branch task_done"); return
    a("s_endpgm")
    a.put("voln_ln")
    if pv:
        a("s_sub_u32 s2, s2, 128")
        gen_prep(a, emb=True)
        a.put("voln_end"); a("s_endpgm")
        return K, 400, 256
    a("s_load_dwordx2 s[12:13], s[0:1], %d" % KA["ws"])
    a("s_load_dwordx2 s[6:7], s[0:1], %d" % KA["x"])
    a("s_waitcnt lgkmcnt(0)")
    srd_from_ptr(a, 32, 6, 2048 * 1280)
    srd_from_ptr(a, 36, 12, 0x2000000)
    a("s_sub_u32 s24, s2, 128")
    gen_ln_body(a, "ln1", False, 32, 36, WS_H, 0, 1, 24)
    a.put("voln_end"); a("s_endpgm")
    return K, 400, 256

def gen_ln2(a):
    K = "ln2_kernel"
    kernel_begin(a, K)
    a("s_cmp_ge_u32 s2, 512"); a("s_cbranch_scc1 ln2_end")
    a("s_load_dwordx2 s[12:13], s[0:1], %d" % KA["ws"])
    a("s_waitcnt lgkmcnt(0)")
    srd_from_ptr(a, 32, 12, 2048 * 2560, add=hex(WS_X1))
    srd_from_ptr(a, 36, 12, 0x2000000)
    a("s_mov_b32 s24, s2")
    gen_ln_body(a, "ln2", True, 32, 36, WS_H2, 3, 4, 24)
    a.put("ln2_end"); a("s_endpgm")
    return K, 64, 64

def gen_ffn1(a, nmt=4):
    K = "ffn1_kernel"
    kbegin(a, K, 192)
    a("s_load_dwordx4 s[4:7], s[0:1], %d" % KA["w1"])
    a("s_load_dwordx2 s[12:13], s[0:1], %d" % KA["ws"])
    common_setup(a, s_pi=False)
    if nmt == 4: a("s_and_b32 s24, s2, 7"); a("s_lshr_b32 s25, s2, 3")
    else: a("s_lshr_b32 s24, s2, 5"); a("s_and_b32 s25, s2, 31")
    a("s_waitcnt lgkmcnt(0)")
    a("s_lshl_b32 s26, s25, 7"); a("s_sub_u32 s27, %d, s26" % (640 * 3072))
    srd_from_ptr(a, 32, 4, "s27", add="s26")
    srd_from_ptr(a, 36, 6, 128, add="s26")
    a("s_lshl_b32 s29, s24, 2"); a("s_add_u32 s29, s29, s20")
    a("s_mul_i32 s30, s29, %d" % (16 * nmt * 1280)); a("s_add_u32 s30, s30, %d" % WS_H2)
    srd_from_ptr(a, 48, 12, 16 * nmt * 1280, add="s30")
    a("s_mul_i32 s30, s29, %d" % (16 * nmt * 3072)); a("s_lshl_b32 s31, s25, 11"); a("s_add_u32 s30, s30, s31"); a("s_add_u32 s30, s30, %d" % WS_F)
    srd_from_ptr(a, 52, 12, (nmt - 1) * 48 * 1024 + 2048, add="s30")
    a("v_lshlrev_b32 v250, 4, v1")
    dma_voff(a, 5, 3072, 244, 245, 246)
    tokbase(a, 244, 245)
    a("v_lshlrev_b32 v245, 4, v2")
    a("v_mul_u32_u24 v247, 1280, v244"); a("v_add_u32 v247, v247, v245")
    a("v_mul_u32_u24 v248, 3072, v244"); a("v_add_u32 v248, v248, v245")
    S = Stream(a, nmt, 52)
    a("v_lshlrev_b32 v246, 3, v2")
    for nt in range(4):
        a("buffer_load_dwordx2 v[%d:%d], v246, s[36:39], 0 offen offset:%d" % (180 + 2 * nt, 181 + 2 * nt, nt * 32)); S.q.op()
    def hfr(k, mt):
        idx = mt * 20 + k
        return ("a", idx * 4) if idx < 64 else ("v", 116 + (idx - 64) * 4)
    def loadA():
        if M.tpoll: M.tpoll(a, "tf1", 92, 2, 2, 200)
        for mt in range(nmt):
            for k in range(20):
                a("s_mov_b32 s23, %d" % ((mt * 20 + k) * 1024))
                a("buffer_load_dwordx4 %s, v250, s[48:51], s23 offen" % reg(hfr(k, mt))); S.q.op()
    if M.tpoll: S.pre = loadA
    else: loadA()
    sl = [S.add_slot(32, 5, hh * 320 * 3072, 3072, 320, "nat") for hh in range(2)]
    def epi():
        for nt in range(4):
            for j in range(2):
                a("v_lshlrev_b32 v%d, 16, v%d" % (190 + nt * 4 + 2 * j, 180 + 2 * nt + j))
                a("v_and_b32 v%d, 0xffff0000, v%d" % (190 + nt * 4 + 2 * j + 1, 180 + 2 * nt + j))
        for mt in range(nmt):
            for nt in range(4):
                x = S.accr(mt, nt)
                for r in range(4):
                    a("v_add_f32 v%d, v%d, v%d" % (x + r, x + r, 190 + nt * 4 + r))
                    a("v_cvt_pk_bf16_f32 v%d, v%d, v%d" % (x + r, x + r, x + r))
                    a("v_lshlrev_b32 v%d, 16, v%d" % (x + r, x + r))
                    a("v_max_f32 v%d, 0, v%d" % (x + r, x + r))
                    a("v_mul_f32 v%d, v%d, v%d" % (x + r, x + r, x + r))
            for q in range(2):
                x = pack_pi(a, S, mt, q)
                a("s_mov_b32 s23, %d" % ((mt * 48 + q) * 1024))
                a("buffer_store_dwordx4 v[%d:%d], v250, s[52:55], s23 offen%s" % (x, x + 3, ST())); S.q.op()
    S.add_unit(sl, hfr, True, epi)
    S.run()
    kend(a, K)
    return K, 512, 256

def gen_ffn2(a, nmt=2):
    K = "ffn2_kernel"
    kbegin(a, K, 160)
    a("s_load_dwordx4 s[4:7], s[0:1], %d" % KA["w2"])
    a("s_load_dwordx4 s[8:11], s[0:1], %d" % KA["out"])
    a("s_load_dwordx2 s[12:13], s[0:1], %d" % KA["ws"])
    common_setup(a, s_nat=False)
    if nmt == 2: a("s_and_b32 s24, s2, 15"); a("s_lshr_b32 s25, s2, 4")
    else: a("s_lshr_b32 s24, s2, 4"); a("s_and_b32 s25, s2, 15")
    a("s_waitcnt lgkmcnt(0)")
    a("s_lshl_b32 s26, s25, 7"); a("s_sub_u32 s27, %d, s26" % (1536 * 1280))
    srd_from_ptr(a, 32, 4, "s27", add="s26")
    srd_from_ptr(a, 36, 6, 128, add="s26")
    a("s_lshl_b32 s29, s24, 2"); a("s_add_u32 s29, s29, s20")
    a("s_mul_i32 s30, s29, %d" % (16 * nmt * 3072)); a("s_add_u32 s30, s30, %d" % WS_F)
    srd_from_ptr(a, 48, 12, 16 * nmt * 3072, add="s30")
    if nmt == 2: a("s_lshl_b32 s28, s29, 5"); NR = 32
    else:
        a("s_lshr_b32 s28, s29, 1"); a("s_lshl_b32 s28, s28, 5"); a("s_and_b32 s30, s29, 1"); a("s_lshl_b32 s30, s30, 2"); a("s_add_u32 s28, s28, s30"); NR = 28
    a("s_mul_i32 s30, s28, 2560"); a("s_lshl_b32 s31, s26, 1"); a("s_add_u32 s30, s30, s31"); a("s_add_u32 s30, s30, %d" % WS_X1)
    srd_from_ptr(a, 52, 12, NR * 2560, add="s30")
    a("s_mul_i32 s30, s28, 1280"); a("s_add_u32 s30, s30, s26")
    srd_from_ptr(a, 56, 8, NR * 1280, add="s30")
    a("s_add_u32 s30, s31, %d" % (WS_MOD + 5 * 2560))
    srd_from_ptr(a, 60, 12, 256, add="s30")
    dma_voff(a, 6, 1280, 244, 245, 246)
    tokbase(a, 244, 245)
    a("v_lshlrev_b32 v245, 4, v2")
    a("v_mul_u32_u24 v247, 3072, v244"); a("v_add_u32 v247, v247, v245")
    a("v_mul_u32_u24 v248, 2560, v244"); a("v_add_u32 v248, v248, v245")
    a("v_lshlrev_b32 v246, 3, v2")
    a("v_mul_u32_u24 v249, 1280, v244"); a("v_add_u32 v249, v249, v246")
    a("v_lshlrev_b32 v250, 4, v1")
    S = Stream(a, nmt, 52)
    for nt in range(4):
        a("buffer_load_dwordx2 v[%d:%d], v246, s[36:39], 0 offen offset:%d" % (84 + 2 * nt, 85 + 2 * nt, nt * 32)); S.q.op()
        a("buffer_load_dwordx4 v[%d:%d], v245, s[60:63], 0 offen offset:%d" % (92 + 4 * nt, 95 + 4 * nt, nt * 64)); S.q.op()
    def hfr(k, mt):
        idx = mt * 48 + k
        return ("a", idx * 4) if idx < 64 else ("v", 116 + (idx - 64) * 4)
    def loadA():
        if M.tpoll: M.tpoll(a, "tf2", 92, 24, 2, 200)
        for mt in range(nmt):
            for k in range(48):
                a("s_mov_b32 s23, %d" % ((mt * 48 + k) * 1024))
                a("buffer_load_dwordx4 %s, v250, s[48:51], s23 offen" % reg(hfr(k, mt))); S.q.op()
    if M.tpoll: S.pre = loadA
    else: loadA()
    sl = [S.add_slot(32, 6, hh * 256 * 1280, 1280, 256, "pi") for hh in range(6)]
    def epi():
        for mt in range(nmt):
            for nt in range(4):
                a("s_mov_b32 s23, %d" % (mtrow(mt) * 2560 + nt * 64))
                a("buffer_load_dwordx4 v[%d:%d], v248, s[52:55], s23 offen" % (116 + (mt * 4 + nt) * 4, 119 + (mt * 4 + nt) * 4)); S.q.op()
        for nt in range(4):
            for j in range(2):
                a("v_lshlrev_b32 v%d, 16, v%d" % (150 + nt * 4 + 2 * j, 84 + 2 * nt + j))
                a("v_and_b32 v%d, 0xffff0000, v%d" % (150 + nt * 4 + 2 * j + 1, 84 + 2 * nt + j))
        a("s_waitcnt vmcnt(0)")
        for mt in range(nmt):
            for nt in range(4):
                x = S.accr(mt, nt)
                for r in range(4):
                    a("v_add_f32 v%d, v%d, v%d" % (x + r, x + r, 150 + nt * 4 + r))
                    a("v_fma_f32 v%d, v%d, v%d, v%d" % (x + r, x + r, 92 + nt * 4 + r, 116 + (mt * 4 + nt) * 4 + r))
                a("v_cvt_pk_bf16_f32 v%d, v%d, v%d" % (x, x, x + 1))
                a("v_cvt_pk_bf16_f32 v%d, v%d, v%d" % (x + 1, x + 2, x + 3))
                a("s_mov_b32 s23, %d" % (mtrow(mt) * 1280 + nt * 32))
                a("buffer_store_dwordx2 v[%d:%d], v249, s[56:59], s23 offen" % (x, x + 1))
    S.add_unit(sl, hfr, True, epi)
    S.run()
    kend(a, K)
    return K, 512, 256
```

```python
from gen import *
from gen2 import *
SPIN = 400000

def poll_check(a, regs, vt, lab_poll, lab_fail, s_cnt):
    a("v_max3_u32 v%d, v%d, v%d, v%d" % (vt, regs[0], regs[1], regs[2]))
    r = regs[3:]
    while len(r) >= 2:
        a("v_max3_u32 v%d, v%d, v%d, v%d" % (vt, vt, r[0], r[1])); r = r[2:]
    if r: a("v_max_u32 v%d, v%d, v%d" % (vt, vt, r[0]))
    a("v_cmp_eq_u32 vcc, -1, v%d" % vt)
    a("s_add_u32 s%d, s%d, 1" % (s_cnt, s_cnt))
    a("s_cmp_gt_u32 s%d, %d" % (s_cnt, SPIN))
    a("s_cbranch_scc1 %s" % lab_fail)
    a("s_cbranch_vccnz %s" % lab_poll)

def gather_mem(a, pfx, G, srd, s_off, vG, vLw):
    a("s_mov_b32 s60, 0")
    a.put(pfx + "_pm")
    for n in range(3):
        a("buffer_load_dwordx4 v[%d:%d], v%d, s[%d:%d], s%d offen sc1" % (G + 4 * n, G + 4 * n + 3, vG + n, srd, srd + 3, s_off))
    a("s_waitcnt vmcnt(0)")
    poll_check(a, list(range(G, G + 12)), 15, pfx + "_pm", "chain_end", 60)
    for n in range(3):
        a("ds_write_b128 v%d, v[%d:%d]" % (vG + n, G + 4 * n, G + 4 * n + 3))
    a("s_waitcnt lgkmcnt(0)")
    a("s_barrier")

DBG = False
def stamp(a, k):
    if not DBG: return
    a("s_memtime s[66:67]"); a("s_waitcnt lgkmcnt(0)")
    a("s_sub_u32 s65, s66, s68"); a("s_add_u32 s%d, s%d, s65" % (70 + k, 70 + k)); a("s_mov_b32 s68, s66")
def dbg_init(a):
    if not DBG: return
    for k in range(8): a("s_mov_b32 s%d, 0" % (70 + k))
    a("s_memtime s[66:67]"); a("s_waitcnt lgkmcnt(0)"); a("s_mov_b32 s68, s66")
def dbg_out(a, wg, base):
    if not DBG: return
    lab = a.label("dbgo")
    a("s_cmp_lg_u32 s2, %d" % wg); a("s_cbranch_scc1 %s" % lab); a("s_cmp_lg_u32 s20, 0"); a("s_cbranch_scc1 %s" % lab)
    a("s_load_dwordx2 s[80:81], s[0:1], %d" % KA["dbg"]); a("s_waitcnt lgkmcnt(0)"); a("s_mov_b32 s82, 256"); a("s_mov_b32 s83, 0x00020000")
    a("v_mov_b32 v16, 0")
    for k in range(8):
        a("v_mov_b32 v17, s%d" % (70 + k)); a("buffer_store_dword v17, v16, s[80:83], 0 offen offset:%d" % (base + 4 * k))
    a.put(lab)

def gen_chain(a):
    K = "chain_kernel"
    kernel_begin(a, K)
    a("s_cmp_ge_u32 s2, 112"); a("s_cbranch_scc1 chain_end")
    a("s_load_dwordx4 s[4:7], s[0:1], %d" % KA["Wq"])
    a("s_load_dwordx2 s[12:13], s[0:1], %d" % KA["ws"])
    lane_setup(a)
    a("s_waitcnt lgkmcnt(0)")
    srd_from_ptr(a, 44, 12, 65 * 10240, add=hex(WS_MEM))
    srd_from_ptr(a, 48, 12, 64 * 20480, add=hex(WS_P))
    a("s_mul_i32 s22, s20, 2560")
    a("v_lshlrev_b32 v5, 4, v1"); a("v_add_u32 v5, s22, v5"); a("v_add_u32 v6, 1024, v5")
    a("v_and_b32 v7, 31, v1"); a("v_lshlrev_b32 v7, 4, v7"); a("v_add_u32 v7, s22, v7"); a("v_add_u32 v7, 2048, v7")
    a("v_and_b32 v9, 7, v3"); a("v_lshlrev_b32 v8, 7, v2"); a("v_lshl_add_u32 v8, v9, 4, v8")
    a("s_mov_b32 s40, 0")
    a("s_mov_b32 s41, 0")
    a("s_mov_b32 s42, 0")
    a("s_cmp_ge_u32 s2, 32"); a("s_cbranch_scc1 chain_R")
    h = 2
    a("s_mul_i32 s26, s2, 384"); a("s_sub_u32 s27, %d, s26" % (640 * 12288))
    srd_from_ptr(a, 32, 4, "s27", add="s26"); srd_from_ptr(a, 36, 6, "s27", add="s26")
    a("s_add_u32 s28, s26, %d" % WS_K); srd_from_ptr(a, 52, 12, 2048 * 12288, add="s28")
    a("s_mul_i32 s28, s2, 3072"); a("s_add_u32 s28, s28, %d" % WS_KM); srd_from_ptr(a, 56, 12, 64 * 32 * 3072, add="s28")
    dma_voff(a, 10, 12288, 16, 17, 18)
    a("v_bfe_u32 v16, v1, 2, 2"); a("v_lshl_add_u32 v17, v2, 3, v16"); a("v_lshlrev_b32 v17, 7, v17")
    a("v_and_b32 v18, 3, v1"); a("v_lshl_add_u32 v17, v18, 3, v17"); a("v_lshrrev_b32 v16, 1, v16"); a("v_and_b32 v18, 1, v2")
    for half in range(2):
        a("v_xor_b32 v19, %d, v18" % half); a("v_lshl_or_b32 v19, v19, 1, v16"); a("v_xor_b32 v19, v4, v19")
        a("v_lshl_add_u32 v%d, v19, 5, v17" % (11 + half))
        if half: a("v_add_u32 v12, 512, v12")
    a("v_add_u32 v14, %d, v11" % SLOT); a("v_add_u32 v15, %d, v12" % SLOT)
    a("s_mul_i32 s22, s20, 20480"); a("s_add_u32 s22, s22, 81920"); a("v_lshlrev_b32 v13, 4, v1"); a("v_add_u32 v13, s22, v13")
    def wfr(t, ks):
        idx = t * 20 + ks
        if idx < 64: return ("a", idx * 4)
        if idx < 100: return ("v", 112 + (idx - 64) * 4)
        return None
    slots = [(32 if m == 0 else 36, u, hh) for m in range(2) for u in range(3) for hh in range(2)]
    def dma(i):
        if i >= len(slots): return
        srd, u, hh = slots[i]
        for j in range(10):
            a("s_add_u32 m0, s21, %d" % ((i & 1) * SLOT + j * 4096))
            a("s_mov_b32 s23, %d" % (u * 128 + (hh * 320 + j * 32) * 12288))
            a("buffer_load_dwordx4 v10, s[%d:%d], s23 offen lds" % (srd, srd + 3))
    dma(0); dma(1)
    for i in range(12):
        a("s_waitcnt vmcnt(%d)" % (10 if i < 11 else 0)); a("s_barrier")
        t = i // 2; hh = i & 1
        for k in range(10):
            ks = hh * 10 + k; f = wfr(t, ks)
            off = k * 4096
            r0, r1 = (14, 15) if (i & 1) else (11, 12)
            d = 40 + k * 4 if (f is None or f[0] == "a") else f[1]
            a("ds_read_b64_tr_b16 v[%d:%d], v%d offset:%d" % (d, d + 1, r0, off)); a("ds_read_b64_tr_b16 v[%d:%d], v%d offset:%d" % (d + 2, d + 3, r1, off))
        a("s_waitcnt lgkmcnt(0)")
        for k in range(10):
            ks = hh * 10 + k; f = wfr(t, ks); d = 40 + k * 4
            if f is None: a("ds_write_b128 v13, v[%d:%d] offset:%d" % (d, d + 3, ks * 1024))
            elif f[0] == "a":
                for r in range(4): a("v_accvgpr_write_b32 a%d, v%d" % (f[1] + r, d + r))
        a("s_waitcnt lgkmcnt(0)"); a("s_barrier")
        dma(i + 2)
    a("v_mul_u32_u24 v9, 12288, v3"); a("v_lshl_add_u32 v9, v2, 4, v9")
    a("s_lshr_b32 s22, s20, 1"); a("s_lshl_b32 s22, s22, 6"); a("s_and_b32 s23, s20, 1"); a("s_lshl_b32 s23, s23, 3"); a("s_add_u32 s22, s22, s23")
    a("v_add_u32 v9, s22, v9")
    a("v_mul_u32_u24 v10, 384, v3"); a("v_lshl_add_u32 v10, v2, 4, v10"); a("v_add_u32 v10, s22, v10")
    a("v_lshrrev_b32 v11, 1, v2"); a("v_lshlrev_b32 v11, 7, v11"); a("v_lshl_add_u32 v11, v3, 4, v11"); a("v_and_b32 v12, 1, v2"); a("v_lshl_add_u32 v11, v12, 3, v11")
    a("v_lshlrev_b32 v14, 4, v1"); a("v_add_u32 v14, 16384, v14"); a("s_mul_i32 s22, s20, 3072"); a("v_add_u32 v12, s22, v14")
    a("s_mul_i32 s43, s2, 640")
    a("s_mov_b32 s61, 0")
    a("s_mov_b32 s62, 0")
    def kseg_loads():
        for tt in range(2):
            for u in range(3):
                a("s_add_u32 s23, s61, %d" % (tt * 16 * 12288 + u * 128))
                a("buffer_load_dwordx2 v[%d:%d], v9, s[52:55], s23 offen" % (40 + (tt * 3 + u) * 2, 41 + (tt * 3 + u) * 2))
    kseg_loads()
    dbg_init(a)
    a.put("chA_loop")
    gather_mem(a, "chA", 52, 44, 41, 5, None)
    stamp(a, 0)
    ND = 4
    def rd(ks):
        a("ds_read_b128 v[%d:%d], v8 offset:%d" % (64 + (ks % ND) * 4, 67 + (ks % ND) * 4, ks * 512))
        a("ds_read_b128 v[%d:%d], v13 offset:%d" % (80 + (ks % ND) * 4, 83 + (ks % ND) * 4, ks * 1024))
    for ks in range(ND - 1): rd(ks)
    for ks in range(20):
        if ks + ND - 1 < 20: rd(ks + ND - 1)
        rem = min(19, ks + ND - 1) - ks
        a("s_waitcnt lgkmcnt(%d)" % (2 * rem))
        mb = "v[%d:%d]" % (64 + (ks % ND) * 4, 67 + (ks % ND) * 4)
        for t in range(6):
            f = wfr(t, ks) or ("v", 80 + (ks % ND) * 4)
            d = "v[%d:%d]" % (16 + 4 * t, 19 + 4 * t)
            a("v_mfma_f32_16x16x32_bf16 %s, %s, %s, %s" % (d, reg(f), mb, "0" if ks == 0 else d))
    a("s_nop 7"); a("s_nop 1")
    stamp(a, 1)
    for t in range(6):
        a("v_cvt_pk_bf16_f32 v%d, v%d, v%d" % (16 + 4 * t, 16 + 4 * t, 17 + 4 * t))
        a("v_cvt_pk_bf16_f32 v%d, v%d, v%d" % (17 + 4 * t, 18 + 4 * t, 19 + 4 * t))
    a("s_nop 1")
    for tile in range(3):
        d = "v[%d:%d]" % (96 + 4 * tile, 99 + 4 * tile)
        for u in range(3):
            A = (16 + 4 * (3 + u)) if tile == 0 else 40 + ((tile - 1) * 3 + u) * 2
            a("v_mfma_f32_16x16x16_bf16 %s, v[%d:%d], v[%d:%d], %s" % (d, A, A + 1, 16 + 4 * u, 17 + 4 * u, "0" if u == 0 else d))
    a("s_nop 7"); a("s_nop 3")
    for tile in range(3):
        a("ds_write_b128 v12, v[%d:%d] offset:%d" % (96 + 4 * tile, 99 + 4 * tile, tile * 1024))
    a("s_mov_b32 exec_lo, 0x00ff00ff"); a("s_mov_b32 exec_hi, 0x00ff00ff")
    for u in range(3):
        a("buffer_store_dwordx2 v[%d:%d], v10, s[56:59], s62 offen offset:%d" % (16 + 4 * (3 + u), 17 + 4 * (3 + u), u * 128))
    a("s_mov_b64 exec, -1")
    a("s_add_u32 s61, s61, %d" % (32 * 12288)); a("s_add_u32 s62, s62, %d" % (32 * 3072))
    kseg_loads()
    a("s_waitcnt lgkmcnt(0)"); a("s_barrier")
    stamp(a, 2)
    a("s_cmp_lg_u32 s20, 0"); a("s_cbranch_scc1 chA_next")
    for w in range(4):
        for tile in range(3):
            a("ds_read_b128 v[%d:%d], v14 offset:%d" % (52 + (w * 3 + tile) * 4, 55 + (w * 3 + tile) * 4, w * 3072 + tile * 1024))
    a("s_waitcnt lgkmcnt(0)")
    for j in range(12):
        a("v_add_f32 v%d, v%d, v%d" % (52 + j, 52 + j, 64 + j)); a("v_add_f32 v%d, v%d, v%d" % (76 + j, 76 + j, 88 + j))
    for j in range(12): a("v_add_f32 v%d, v%d, v%d" % (52 + j, 52 + j, 76 + j))
    a("v_cmp_gt_u32 vcc, 2, v2"); a("v_mov_b32 v64, 0xff800000"); a("s_nop 1")
    for j in range(4): a("v_cndmask_b32 v%d, v64, v%d, vcc" % (52 + j, 52 + j))
    softmax12(a, 52, 64)
    for j in range(6): a("v_cvt_pk_bf16_f32 v%d, v%d, v%d" % (64 + j, 52 + 2 * j, 53 + 2 * j))
    a("s_add_u32 s23, s42, s43")
    a("s_mov_b32 exec_lo, 0x00ff00ff"); a("s_mov_b32 exec_hi, 0x00ff00ff")
    a("buffer_store_dwordx2 v[66:67], v11, s[48:51], s23 offen offset:128 sc1")
    a("buffer_store_dwordx2 v[68:69], v11, s[48:51], s23 offen offset:384 sc1")
    a("s_mov_b32 exec_hi, 0")
    a("buffer_store_dwordx2 v[64:65], v11, s[48:51], s23 offen sc1")
    a("s_mov_b64 exec, -1")
    stamp(a, 3)
    a.put("chA_next")
    a("s_add_u32 s40, s40, 1"); a("s_add_u32 s41, s41, 10240"); a("s_add_u32 s42, s42, 20480")
    a("s_cmp_lt_u32 s40, 64"); a("s_cbranch_scc1 chA_loop")
    dbg_out(a, 0, 0)
    a("s_branch chain_end")
    a.put("chain_R")
    a("s_sub_u32 s24, s2, 32")
    a("s_mul_i32 s26, s24, 327680"); a("s_mul_i32 s27, s20, 81920"); a("s_add_u32 s26, s26, s27"); a("s_add_u32 s26, s26, %d" % WS_VO)
    srd_from_ptr(a, 32, 12, 81920, add="s26")
    a("s_mul_i32 s26, s20, %d" % (8 * 51200)); a("s_mul_i32 s27, s24, 640"); a("s_add_u32 s26, s26, s27"); a("s_add_u32 s26, s26, %d" % WS_YU)
    a("s_sub_u32 s27, %d, s26" % (WS_YU + 64 * 32 * 51200))
    srd_from_ptr(a, 36, 12, "s27", add="s26")
    a("v_mul_u32_u24 v9, 1280, v3"); a("v_lshl_add_u32 v9, v2, 4, v9")
    def vfr(tt, ks):
        idx = tt * 20 + ks
        return ("a", idx * 4) if idx < 64 else ("v", 192 + (idx - 64) * 4)
    for tt in range(4):
        for ks in range(20):
            a("s_mov_b32 s23, %d" % (tt * 20480 + ks * 64))
            a("buffer_load_dwordx4 %s, v9, s[32:35], s23 offen" % reg(vfr(tt, ks)))
    a("v_and_b32 v10, 7, v3")
    for b in range(5):
        a("v_add_u32 v11, %d, v2" % (4 * b))
        a("v_mul_u32_u24 v12, 52, v11"); a("v_lshrrev_b32 v12, 8, v12")
        a("v_mul_u32_u24 v13, 5, v12"); a("v_sub_u32 v13, v11, v13")
        a("v_mul_u32_u24 v%d, 51200, v12" % (16 + b)); a("v_lshl_add_u32 v%d, v13, 4, v%d" % (16 + b, 16 + b))
        a("v_mul_u32_u24 v13, 80, v10"); a("v_add_u32 v%d, v%d, v13" % (16 + b, 16 + b))
    a("s_mul_i32 s22, s20, 5120"); a("v_lshlrev_b32 v21, 7, v2"); a("v_lshl_add_u32 v21, v10, 4, v21"); a("v_add_u32 v21, s22, v21")
    a("s_lshl_b32 s22, s20, 10"); a("s_add_u32 s22, s22, 16384")
    a("v_lshlrev_b32 v22, 4, v3"); a("v_lshl_add_u32 v22, v2, 3, v22"); a("v_add_u32 v22, s22, v22")
    a("v_lshlrev_b32 v23, 4, v10"); a("v_add_u32 v23, s22, v23")
    a("v_lshlrev_b32 v24, 4, v1"); a("v_add_u32 v24, s22, v24")
    a("v_lshrrev_b32 v25, 3, v1"); a("v_mul_u32_u24 v25, 51200, v25"); a("v_and_b32 v11, 7, v1"); a("v_mul_u32_u24 v11, 80, v11"); a("v_add_u32 v25, v25, v11")
    a("v_lshlrev_b32 v27, 4, v1"); a("v_add_u32 v27, 24576, v27"); a("s_lshl_b32 s22, s20, 10"); a("v_add_u32 v26, s22, v27")
    a("s_lshl_b32 s22, s24, 7"); a("v_lshlrev_b32 v28, 4, v3"); a("v_lshl_add_u32 v28, v2, 3, v28"); a("v_add_u32 v28, s22, v28")
    a("s_mov_b32 s61, 0")
    dbg_init(a)
    a.put("chR_loop")
    for ks in range(10):
        aa, b = divmod(ks, 5)
        a("s_add_u32 s23, s61, %d" % (aa * 4 * 51200))
        a("buffer_load_dwordx4 v[%d:%d], v%d, s[36:39], s23 offen" % (76 + 4 * ks, 79 + 4 * ks, 16 + b))
    gather_mem(a, "chR", 32, 44, 41, 5, None)
    stamp(a, 0)
    def rd(ks): a("ds_read_b128 v[%d:%d], v8 offset:%d" % (60 + (ks % ND) * 4, 63 + (ks % ND) * 4, ks * 512))
    for ks in range(ND - 1): rd(ks)
    for ks in range(20):
        if ks + ND - 1 < 20: rd(ks + ND - 1)
        rem = min(19, ks + ND - 1) - ks
        a("s_waitcnt lgkmcnt(%d)" % rem)
        mb = "v[%d:%d]" % (60 + (ks % ND) * 4, 63 + (ks % ND) * 4)
        for tt in range(4):
            d = "v[%d:%d]" % (44 + 4 * tt, 47 + 4 * tt)
            a("v_mfma_f32_16x16x32_bf16 %s, %s, %s, %s" % (d, mb, reg(vfr(tt, ks)), "0" if ks == 0 else d))
    a("s_nop 7"); a("s_nop 1")
    for tt in range(4):
        a("v_cvt_pk_bf16_f32 v%d, v%d, v%d" % (44 + 4 * tt, 44 + 4 * tt, 45 + 4 * tt))
        a("v_cvt_pk_bf16_f32 v%d, v%d, v%d" % (45 + 4 * tt, 46 + 4 * tt, 47 + 4 * tt))
    a("s_mov_b32 exec_hi, 0")
    for tt in range(4):
        a("ds_write_b64 v22, v[%d:%d] offset:%d" % (44 + 4 * tt, 45 + 4 * tt, tt * 256))
    a("s_mov_b64 exec, -1")
    a("s_waitcnt lgkmcnt(0)")
    for ks in range(10):
        for g0 in range(4):
            if (4 * ks + g0) % 5 == 0:
                hl = (4 * ks + g0) // 5
                lo = (0xffff << (16 * g0)) & 0xffffffff; hi = (0xffff << (16 * g0)) >> 32
                a("s_mov_b32 exec_lo, 0x%x" % lo); a("s_mov_b32 exec_hi, 0x%x" % hi)
                a("ds_read_b128 v[%d:%d], v23 offset:%d" % (76 + 4 * ks, 79 + 4 * ks, hl * 128))
    a("s_mov_b64 exec, -1")
    a("ds_read_b128 v[32:35], v24")
    a("s_waitcnt lgkmcnt(0)")
    a("buffer_store_dwordx4 v[32:35], v25, s[36:39], s61 offen")
    stamp(a, 1)
    a("s_mov_b32 s60, 0")
    a.put("chR_pp")
    for ks in range(10):
        if ks < 8: a("buffer_load_dwordx4 v[%d:%d], v21, s[48:51], s42 offen offset:%d sc1" % (116 + 4 * ks, 119 + 4 * ks, ks * 512))
        else:
            a("s_add_u32 s23, s42, %d" % (ks * 512))
            a("buffer_load_dwordx4 v[%d:%d], v21, s[48:51], s23 offen sc1" % (116 + 4 * ks, 119 + 4 * ks))
    a("s_waitcnt vmcnt(0)")
    poll_check(a, list(range(116, 156)), 15, "chR_pp", "chain_end", 60)
    stamp(a, 2)
    for ks in range(10):
        d = "v[%d:%d]" % (44 + 4 * (ks & 1), 47 + 4 * (ks & 1))
        a("v_mfma_f32_16x16x32_bf16 %s, v[%d:%d], v[%d:%d], %s" % (d, 76 + 4 * ks, 79 + 4 * ks, 116 + 4 * ks, 119 + 4 * ks, "0" if ks < 2 else d))
    a("s_nop 7"); a("s_nop 1")
    for r in range(4): a("v_add_f32 v%d, v%d, v%d" % (44 + r, 44 + r, 48 + r))
    a("ds_write_b128 v26, v[44:47]")
    a("s_waitcnt lgkmcnt(0)"); a("s_barrier")
    a("s_cmp_lg_u32 s20, 0"); a("s_cbranch_scc1 chR_next")
    for w in range(4): a("ds_read_b128 v[%d:%d], v27 offset:%d" % (44 + 4 * w, 47 + 4 * w, w * 1024))
    a("s_waitcnt lgkmcnt(0)")
    for r in range(4):
        a("v_add_f32 v%d, v%d, v%d" % (44 + r, 44 + r, 48 + r)); a("v_add_f32 v%d, v%d, v%d" % (52 + r, 52 + r, 56 + r))
    for r in range(4): a("v_add_f32 v%d, v%d, v%d" % (44 + r, 44 + r, 52 + r))
    a("v_cvt_pk_bf16_f32 v44, v44, v45"); a("v_cvt_pk_bf16_f32 v45, v46, v47")
    a("v_min_u32 v44, 0xfffffffe, v44"); a("v_min_u32 v45, 0xfffffffe, v45")
    a("s_add_u32 s23, s41, 10240")
    a("s_mov_b32 exec_lo, 0x00ff00ff"); a("s_mov_b32 exec_hi, 0")
    a("buffer_store_dwordx2 v[44:45], v28, s[44:47], s23 offen sc1")
    a("s_mov_b64 exec, -1")
    stamp(a, 3)
    a.put("chR_next")
    a("s_add_u32 s40, s40, 1"); a("s_add_u32 s41, s41, 10240"); a("s_add_u32 s42, s42, 20480"); a("s_add_u32 s61, s61, %d" % (32 * 51200))
    a("s_cmp_lt_u32 s40, 64"); a("s_cbranch_scc1 chR_loop")
    dbg_out(a, 32, 32)
    a.put("chain_end"); a("s_endpgm")
    return K, 512, 256

def softmax12(a, V, T, n=12):
    c = 192 ** -0.5 * 1.4426950408889634
    import struct
    ch = struct.unpack("<I", struct.pack("<f", c))[0]
    a("v_max3_f32 v%d, v%d, v%d, v%d" % (T, V, V + 1, V + 2))
    for j in range(3, n - 1, 2): a("v_max3_f32 v%d, v%d, v%d, v%d" % (T, T, V + j, V + j + 1))
    if (n - 3) % 2: a("v_max_f32 v%d, v%d, v%d" % (T, T, V + n - 1))
    for sw in ("v_permlane16_swap_b32", "v_permlane32_swap_b32"):
        a("v_mov_b32 v%d, v%d" % (T + 1, T)); a("s_nop 1")
        a("%s v%d, v%d" % (sw, T, T + 1)); a("s_nop 1")
        a("v_max_f32 v%d, v%d, v%d" % (T, T, T + 1))
    a("v_mul_f32 v%d, 0x%08x, v%d" % (T, ch, T))
    a("v_mov_b32 v%d, 0x%08x" % (T + 2, ch))
    for j in range(n):
        a("v_fma_f32 v%d, v%d, v%d, -v%d" % (V + j, V + j, T + 2, T))
    for j in range(n): a("v_exp_f32 v%d, v%d" % (V + j, V + j))
    a("s_nop 0")
    a("v_add_f32 v%d, v%d, v%d" % (T, V, V + 1))
    for j in range(2, n): a("v_add_f32 v%d, v%d, v%d" % (T, T, V + j))
    for sw in ("v_permlane16_swap_b32", "v_permlane32_swap_b32"):
        a("v_mov_b32 v%d, v%d" % (T + 1, T)); a("s_nop 1")
        a("%s v%d, v%d" % (sw, T, T + 1)); a("s_nop 1")
        a("v_add_f32 v%d, v%d, v%d" % (T, T, T + 1))
    a("v_rcp_f32 v%d, v%d" % (T, T)); a("s_nop 0")
    for j in range(n): a("v_mul_f32 v%d, v%d, v%d" % (V + j, V + j, T))

def gen_pattn(a):
    K = "pattn_kernel"
    kbegin(a, K, 512)
    a("s_load_dwordx2 s[12:13], s[0:1], %d" % KA["ws"])
    lane_setup(a)
    a("s_lshl_b32 s24, s2, 2"); a("s_add_u32 s24, s24, s20"); a("s_and_b32 s25, s24, 31"); a("s_lshr_b32 s26, s24, 5")
    a("s_waitcnt lgkmcnt(0)")
    a("s_mul_i32 s27, s26, %d" % (32 * 12288)); a("s_mul_i32 s28, s25, 384"); a("s_add_u32 s27, s27, s28")
    a("s_add_u32 s28, s27, %d" % WS_Q); srd_from_ptr(a, 32, 12, 32 * 12288, add="s28")
    a("s_add_u32 s28, s27, %d" % WS_K); srd_from_ptr(a, 36, 12, 32 * 12288, add="s28")
    a("s_mul_i32 s28, s24, 3072"); a("s_add_u32 s28, s28, %d" % WS_KM); srd_from_ptr(a, 40, 12, 3072, add="s28")
    a("s_mul_i32 s28, s26, %d" % (32 * 2560)); a("s_mul_i32 s29, s25, 80"); a("s_add_u32 s28, s28, s29"); a("s_add_u32 s28, s28, %d" % WS_PP)
    srd_from_ptr(a, 44, 12, 32 * 2560, add="s28")
    a("v_mul_u32_u24 v5, 12288, v3"); a("v_lshl_add_u32 v5, v2, 4, v5")
    a("v_and_b32 v7, 7, v3"); a("v_mul_u32_u24 v6, 384, v7"); a("v_lshl_add_u32 v6, v2, 4, v6")
    for ks in range(6):
        for t in range(2):
            a("s_mov_b32 s23, %d" % (t * 16 * 12288 + ks * 64))
            a("buffer_load_dwordx4 v[%d:%d], v5, s[32:35], s23 offen" % (16 + (t * 6 + ks) * 4, 19 + (t * 6 + ks) * 4))
            a("buffer_load_dwordx4 v[%d:%d], v5, s[36:39], s23 offen" % (64 + (t * 6 + ks) * 4, 67 + (t * 6 + ks) * 4))
    if M.tpoll: M.tpoll(a, "tpa", 88, 80, 7, 200)
    for ks in range(6):
        a("buffer_load_dwordx4 v[%d:%d], v6, s[40:43], 0 offen offset:%d" % (112 + ks * 4, 115 + ks * 4, ks * 64))
    a("s_waitcnt vmcnt(0)")
    for ks in range(6):
        for qt in range(2):
            for tile in range(3):
                A = 112 + ks * 4 if tile == 0 else 64 + ((tile - 1) * 6 + ks) * 4
                d = "v[%d:%d]" % (136 + (qt * 3 + tile) * 4, 139 + (qt * 3 + tile) * 4)
                a("v_mfma_f32_16x16x32_bf16 %s, v[%d:%d], v[%d:%d], %s" % (d, A, A + 3, 16 + (qt * 6 + ks) * 4, 19 + (qt * 6 + ks) * 4, "0" if ks == 0 else d))
    a("s_nop 7"); a("s_nop 1")
    a("v_mov_b32 v8, 0xff800000")
    a("v_lshlrev_b32 v9, 2, v2")
    a("v_mul_u32_u24 v10, 2560, v3"); a("v_lshl_add_u32 v10, v2, 3, v10")
    for qt in range(2):
        V = 136 + qt * 12
        a("v_cmp_gt_u32 vcc, 2, v2"); a("s_nop 1")
        for j in range(4): a("v_cndmask_b32 v%d, v8, v%d, vcc" % (V + j, V + j))
        for kt in range(2):
            for r in range(4):
                a("v_add_u32 v11, %d, v9" % (kt * 16 + r - qt * 16 + 64))
                a("v_add_u32 v12, 64, v3")
                a("v_cmp_le_u32 vcc, v11, v12"); a("s_nop 1")
                a("v_cndmask_b32 v%d, v8, v%d, vcc" % (V + 4 + kt * 4 + r, V + 4 + kt * 4 + r))
        softmax12(a, V, 13)
        for j in range(6): a("v_cvt_pk_bf16_f32 v%d, v%d, v%d" % (V + j, V + 2 * j, V + 2 * j + 1))
        a("s_mov_b32 s23, %d" % (qt * 16 * 2560))
        a("buffer_store_dwordx2 v[%d:%d], v10, s[44:47], s23 offen offset:16%s" % (V + 2, V + 3, ST()))
        a("buffer_store_dwordx2 v[%d:%d], v10, s[44:47], s23 offen offset:48%s" % (V + 4, V + 5, ST()))
        a("s_mov_b32 exec_hi, 0")
        a("buffer_store_dwordx2 v[%d:%d], v10, s[44:47], s23 offen%s" % (V, V + 1, ST()))
        a("s_mov_b64 exec, -1")
    kend(a, K)
    return K, 168

def gen_pout(a):
    K = "pout_kernel"
    kbegin(a, K, 320)
    a("s_load_dwordx2 s[12:13], s[0:1], %d" % KA["ws"])
    a("s_load_dwordx2 s[6:7], s[0:1], %d" % KA["x"])
    lane_setup(a)
    a("s_lshl_b32 s24, s2, 2"); a("s_add_u32 s24, s24, s20")
    a("s_mul_i32 s26, s24, 3277"); a("s_lshr_b32 s26, s26, 16")
    a("s_mul_i32 s25, s26, 20"); a("s_sub_u32 s25, s24, s25")
    a("s_waitcnt lgkmcnt(0)")
    a("s_mul_i32 s28, s26, %d" % (32 * 2560)); a("s_add_u32 s28, s28, %d" % WS_PP); srd_from_ptr(a, 32, 12, 32 * 2560, add="s28")
    srd_from_ptr(a, 36, 12, WS_SIZE)
    a("s_mul_i32 s28, s26, %d" % (32 * 1280)); a("s_lshl_b32 s29, s25, 6"); a("s_add_u32 s28, s28, s29"); srd_from_ptr(a, 40, 6, 32 * 1280, add="s28")
    a("s_mul_i32 s28, s26, %d" % (32 * 2560)); a("s_lshl_b32 s29, s25, 7"); a("s_add_u32 s28, s28, s29"); a("s_add_u32 s28, s28, %d" % WS_X1)
    srd_from_ptr(a, 44, 12, 32 * 2560, add="s28")
    a("s_add_u32 s28, s29, %d" % (WS_MOD + 2 * 2560)); srd_from_ptr(a, 48, 12, 128, add="s28")
    a("v_mul_u32_u24 v5, 2560, v3"); a("v_lshl_add_u32 v5, v2, 4, v5")
    a("s_mul_i32 s28, s26, %d" % (32 * 640)); a("s_sub_u32 s29, s25, s20"); a("s_lshl_b32 s29, s29, 5"); a("s_add_u32 s28, s28, s29")
    a("v_add_u32 v14, s28, v3")
    a("s_lshl_b32 s30, s20, 1")
    for b in range(5):
        a("v_add_u32 v11, %d, v2" % (4 * b))
        a("v_mul_u32_u24 v12, 52, v11"); a("v_lshrrev_b32 v12, 8, v12")
        a("v_mul_u32_u24 v13, 5, v12"); a("v_sub_u32 v13, v11, v13")
        a("v_mul_u32_u24 v12, 640, v12"); a("v_add_u32 v12, v12, v14")
        a("v_lshlrev_b32 v6, 4, v12"); a("v_add_u32 v6, %d, v6" % WS_Y)
        a("v_lshlrev_b32 v7, 6, v12"); a("v_lshl_add_u32 v7, v13, 4, v7"); a("v_add_u32 v7, %d, v7" % (WS_U - 16))
        a("v_cmp_eq_u32 vcc, 0, v13"); a("v_mov_b32 v8, %d" % (4 * 640 * 64)); a("v_mov_b32 v9, %d" % (4 * 640 * 16))
        a("v_cndmask_b32 v%d, v7, v6, vcc" % (216 + b))
        a("v_cndmask_b32 v%d, v8, v9, vcc" % (222 + b))
        a("v_mov_b32 v8, 1024"); a("v_mov_b32 v9, 256"); a("v_cndmask_b32 v%d, v8, v9, vcc" % (228 + b))
        a("v_mul_lo_u32 v8, s30, v%d" % (222 + b)); a("v_add_u32 v%d, v%d, v8" % (216 + b, 216 + b))
    a("s_mul_i32 s31, s20, 640")
    def fr(gr, b, j):
        i = gr * 50 + b * 10 + j
        if i < 64: return ("a", i * 4)
        return ("v", 80 + (i - 64) * 4) if i - 64 < 34 else ("v", 236 + (i - 98) * 4)
    assert fr(1, 4, 9) == ("v", 236 + 4)
    for gr in range(2):
        for b in range(5):
            for t in range(2):
                a("s_add_u32 s23, s31, %d" % (t * 16 * 2560 + (gr * 5 + b) * 64))
                a("buffer_load_dwordx4 %s, v5, s[32:35], s23 offen" % reg(fr(gr, b, t)))
            a("v_mov_b32 v6, v%d" % (216 + b))
            for nt in range(8):
                a("buffer_load_dwordx4 %s, v6, s[36:39], 0 offen" % reg(fr(gr, b, 2 + nt)))
                if nt < 7: a("v_add_u32 v6, v6, v%d" % (228 + b))
            if gr == 0: a("v_add_u32 v%d, v%d, v%d" % (216 + b, 216 + b, 222 + b))
    for gr in range(2):
        for b in range(5):
            a("s_waitcnt vmcnt(%d)" % (100 - (gr * 50 + b * 10 + 10) if 100 - (gr * 50 + b * 10 + 10) < 63 else 62))
            for mt in range(2):
                for nt in range(8):
                    d = "v[%d:%d]" % (16 + (mt * 8 + nt) * 4, 19 + (mt * 8 + nt) * 4)
                    a("v_mfma_f32_16x16x32_bf16 %s, %s, %s, %s" % (d, reg(fr(gr, b, 2 + nt)), reg(fr(gr, b, mt)), "0" if (gr == 0 and b == 0) else d))
    a("s_nop 7"); a("s_nop 1")
    a("v_lshlrev_b32 v6, 4, v1"); a("s_lshl_b32 s23, s20, 14"); a("v_add_u32 v7, s23, v6")
    for tl in range(16): a("ds_write_b128 v7, v[%d:%d] offset:%d" % (16 + tl * 4, 19 + tl * 4, tl * 1024))
    a("s_waitcnt lgkmcnt(0)"); a("s_barrier")
    a("s_lshl_b32 s23, s20, 11"); a("v_add_u32 v7, s23, v6")
    for w in range(4):
        for mt in range(2):
            for nt in range(2):
                r = 80 + (w * 4 + mt * 2 + nt) * 4
                a("ds_read_b128 v[%d:%d], v7 offset:%d" % (r, r + 3, w * 16384 + (mt * 8 + nt) * 1024))
    a("s_waitcnt lgkmcnt(0)")
    for tl in range(4):
        for r in range(4):
            d = 16 + tl * 4 + r
            a("v_add_f32 v%d, v%d, v%d" % (d, 80 + tl * 4 + r, 96 + tl * 4 + r)); a("v_add_f32 v6, v%d, v%d" % (112 + tl * 4 + r, 128 + tl * 4 + r)); a("v_add_f32 v%d, v%d, v6" % (d, d))
    a("v_mul_u32_u24 v12, 1280, v3"); a("v_lshl_add_u32 v12, v2, 3, v12"); a("v_lshlrev_b32 v13, 4, v2")
    for nt in range(2):
        a("buffer_load_dwordx4 v[%d:%d], v13, s[48:51], 0 offen offset:%d" % (32 + 4 * nt, 35 + 4 * nt, nt * 64))
        for mt in range(2):
            a("s_mov_b32 s23, %d" % (mt * 16 * 1280 + nt * 32))
            a("buffer_load_dwordx2 v[%d:%d], v12, s[40:43], s23 offen" % (40 + (mt * 2 + nt) * 2, 41 + (mt * 2 + nt) * 2))
    a("s_waitcnt vmcnt(0)")
    for mt in range(2):
        for nt in range(2):
            x = 40 + (mt * 2 + nt) * 2; d = 16 + (mt * 2 + nt) * 4
            for j in range(2):
                a("v_lshlrev_b32 v48, 16, v%d" % (x + j)); a("v_and_b32 v49, 0xffff0000, v%d" % (x + j))
                a("v_fma_f32 v%d, v%d, v%d, v48" % (d + 2 * j, d + 2 * j, 32 + 4 * nt + 2 * j))
                a("v_fma_f32 v%d, v%d, v%d, v49" % (d + 2 * j + 1, d + 2 * j + 1, 32 + 4 * nt + 2 * j + 1))
            a("s_mov_b32 s23, %d" % (mt * 16 * 2560 + nt * 64))
            a("buffer_store_dwordx4 v[%d:%d], v5, s[44:47], s23 offen%s" % (d, d + 3, ST()))
    kend(a, K)
    return K, 512, 256


def gen_pout_f(a):
    K = "pout_kernel"
    kbegin(a, K, 320)
    a("s_load_dwordx2 s[12:13], s[0:1], %d" % KA["ws"])
    a("s_load_dwordx2 s[6:7], s[0:1], %d" % KA["x"])
    lane_setup(a)
    a("s_lshr_b32 s26, s2, 5"); a("s_and_b32 s25, s2, 31")
    a("s_lshr_b32 s62, s20, 1"); a("s_and_b32 s63, s20, 1")
    a("s_waitcnt lgkmcnt(0)")
    a("s_mul_i32 s28, s26, %d" % (32 * 2560)); a("s_add_u32 s28, s28, %d" % WS_PP); srd_from_ptr(a, 32, 12, 32 * 2560, add="s28")
    srd_from_ptr(a, 36, 12, WS_SIZE)
    a("s_mul_i32 s28, s26, %d" % (32 * 1280)); a("s_lshl_b32 s29, s25, 6"); a("s_add_u32 s28, s28, s29"); srd_from_ptr(a, 40, 6, 32 * 1280, add="s28")
    a("s_mul_i32 s28, s26, %d" % (32 * 2560)); a("s_lshl_b32 s29, s25, 7"); a("s_add_u32 s28, s28, s29"); a("s_add_u32 s28, s28, %d" % WS_X1)
    srd_from_ptr(a, 44, 12, 32 * 2560, add="s28")
    a("s_add_u32 s28, s29, %d" % (WS_MOD + 2 * 2560)); srd_from_ptr(a, 48, 12, 128, add="s28")
    a("v_mul_u32_u24 v5, 2560, v3"); a("v_lshl_add_u32 v5, v2, 4, v5")
    a("s_mul_i32 s28, s26, %d" % (32 * 640)); a("s_lshl_b32 s29, s25, 5"); a("s_add_u32 s28, s28, s29")
    a("v_add_u32 v14, s28, v3")
    a("s_lshl_b32 s30, s20, 1")
    for b in range(5):
        a("v_add_u32 v11, %d, v2" % (4 * b))
        a("v_mul_u32_u24 v12, 52, v11"); a("v_lshrrev_b32 v12, 8, v12")
        a("v_mul_u32_u24 v13, 5, v12"); a("v_sub_u32 v13, v11, v13")
        a("v_mul_u32_u24 v12, 640, v12"); a("v_add_u32 v12, v12, v14")
        a("v_lshlrev_b32 v6, 4, v12"); a("v_add_u32 v6, %d, v6" % WS_Y)
        a("v_lshlrev_b32 v7, 6, v12"); a("v_lshl_add_u32 v7, v13, 4, v7"); a("v_add_u32 v7, %d, v7" % (WS_U - 16))
        a("v_cmp_eq_u32 vcc, 0, v13"); a("v_mov_b32 v8, %d" % (4 * 640 * 64)); a("v_mov_b32 v9, %d" % (4 * 640 * 16))
        a("v_cndmask_b32 v%d, v7, v6, vcc" % (216 + b))
        a("v_cndmask_b32 v%d, v8, v9, vcc" % (222 + b))
        a("v_mov_b32 v8, 1024"); a("v_mov_b32 v9, 256"); a("v_cndmask_b32 v%d, v8, v9, vcc" % (228 + b))
        a("v_mul_lo_u32 v8, s30, v%d" % (222 + b)); a("v_add_u32 v%d, v%d, v8" % (216 + b, 216 + b))
    a("s_mul_i32 s31, s20, 640")
    def fr(gr, b, j): return ("a", (gr * 20 + b * 4 + j) * 4)
    for gr in range(2):
        for b in range(5):
            a("buffer_load_dwordx4 %s, v%d, s[36:39], 0 offen" % (reg(fr(gr, b, 2)), 216 + b))
            a("v_add_u32 v6, v%d, v%d" % (216 + b, 228 + b))
            a("buffer_load_dwordx4 %s, v6, s[36:39], 0 offen" % reg(fr(gr, b, 3)))
            if gr == 0: a("v_add_u32 v%d, v%d, v%d" % (216 + b, 216 + b, 222 + b))
    a("v_mul_u32_u24 v12, 1280, v3"); a("v_lshl_add_u32 v12, v2, 3, v12"); a("v_lshlrev_b32 v13, 4, v2")
    a("s_lshl_b32 s23, s63, 6")
    a("buffer_load_dwordx4 v[32:35], v13, s[48:51], s23 offen")
    a("s_mul_i32 s23, s62, %d" % (16 * 1280)); a("s_lshl_b32 s22, s63, 5"); a("s_add_u32 s23, s23, s22")
    a("buffer_load_dwordx2 v[40:41], v12, s[40:43], s23 offen")
    M.tpoll(a, "tpo", 92, 8, 2, 200)
    for gr in range(2):
        for b in range(5):
            for t in range(2):
                a("s_add_u32 s23, s31, %d" % (t * 16 * 2560 + (gr * 5 + b) * 64))
                a("buffer_load_dwordx4 %s, v5, s[32:35], s23 offen" % reg(fr(gr, b, t)))
    for gr in range(2):
        for b in range(5):
            a("s_waitcnt vmcnt(%d)" % (20 - (gr * 10 + b * 2 + 2)))
            for mt in range(2):
                for nt in range(2):
                    d = "v[%d:%d]" % (16 + (mt * 2 + nt) * 4, 19 + (mt * 2 + nt) * 4)
                    a("v_mfma_f32_16x16x32_bf16 %s, %s, %s, %s" % (d, reg(fr(gr, b, 2 + nt)), reg(fr(gr, b, mt)), "0" if (gr == 0 and b == 0) else d))
    a("s_nop 7"); a("s_nop 1")
    a("v_lshlrev_b32 v6, 4, v1"); a("s_lshl_b32 s23, s20, 12"); a("v_add_u32 v7, s23, v6")
    for tl in range(4): a("ds_write_b128 v7, v[%d:%d] offset:%d" % (16 + tl * 4, 19 + tl * 4, tl * 1024))
    a("s_waitcnt lgkmcnt(0)"); a("s_barrier")
    a("s_lshl_b32 s23, s20, 10"); a("v_add_u32 v7, s23, v6")
    for w in range(4):
        a("ds_read_b128 v[%d:%d], v7 offset:%d" % (80 + w * 4, 83 + w * 4, w * 4096))
    a("s_waitcnt vmcnt(0) lgkmcnt(0)")
    for r in range(4):
        d = 16 + r
        a("v_add_f32 v%d, v%d, v%d" % (d, 80 + r, 84 + r)); a("v_add_f32 v6, v%d, v%d" % (88 + r, 92 + r)); a("v_add_f32 v%d, v%d, v6" % (d, d))
    for j in range(2):
        a("v_lshlrev_b32 v48, 16, v%d" % (40 + j)); a("v_and_b32 v49, 0xffff0000, v%d" % (40 + j))
        a("v_fma_f32 v%d, v%d, v%d, v48" % (16 + 2 * j, 16 + 2 * j, 32 + 2 * j))
        a("v_fma_f32 v%d, v%d, v%d, v49" % (16 + 2 * j + 1, 16 + 2 * j + 1, 32 + 2 * j + 1))
    a("s_mul_i32 s23, s62, %d" % (16 * 2560)); a("s_lshl_b32 s22, s63, 6"); a("s_add_u32 s23, s23, s22")
    a("buffer_store_dwordx4 v[16:19], v5, s[44:47], s23 offen%s" % ST())
    kend(a, K)
    return K, 512, 256
```

```python
from gen import *
from gen2 import *
import gen3
from gen3 import stamp, dbg_init, dbg_out, SPIN
import struct, os
HALF = os.environ.get('HALF', '1') == '1'
SM = os.environ.get('SM', '1') == '1'
CFG = dict(S=3, gap=5, slpA=20, slpR=6, slpRm=8, slpA0=16)

def spoll(a, pfx, S, nl, issue, regs, succ, sleep, gap, vt=15):
    if sleep: a("s_sleep %d" % sleep)
    a("s_mov_b32 s60, 0")
    for k in range(S):
        issue(k)
        if k < S - 1 and gap: a("s_sleep %d" % gap)
    a.put(pfx + "_lp")
    for k in range(S):
        a("s_waitcnt vmcnt(%d)" % ((S - 1) * nl))
        r = regs(k)
        a("v_max3_u32 v%d, v%d, v%d, v%d" % (vt, r[0], r[1], r[2]))
        r = r[3:]
        while len(r) >= 2:
            a("v_max3_u32 v%d, v%d, v%d, v%d" % (vt, vt, r[0], r[1])); r = r[2:]
        if r: a("v_max_u32 v%d, v%d, v%d" % (vt, vt, r[0]))
        a("v_cmp_ne_u32 vcc, -1, v%d" % vt)
        a("s_nop 1")
        a("s_cmp_eq_u64 vcc, exec")
        a("s_cbranch_scc1 %s_ok%d" % (pfx, k))
        issue(k)
    a("s_add_u32 s60, s60, 1"); a("s_cmp_gt_u32 s60, %d" % SPIN); a("s_cbranch_scc1 chain_end")
    a("s_branch %s_lp" % pfx)
    for k in range(S):
        a.put("%s_ok%d" % (pfx, k))
        succ(k)
        if k < S - 1: a("s_branch %s_done" % pfx)
    a.put(pfx + "_done")

def gather_mem(a, pfx, sets, srd, s_off, vG, sleep):
    S = len(sets)
    def issue(k):
        for n in range(3):
            a("buffer_load_dwordx4 v[%d:%d], v%d, s[%d:%d], s%d offen sc1" % (sets[k] + 4 * n, sets[k] + 4 * n + 3, vG + n, srd, srd + 3, s_off))
    def succ(k):
        for n in range(3):
            a("ds_write_b128 v%d, v[%d:%d]" % (vG + n, sets[k] + 4 * n, sets[k] + 4 * n + 3))
    spoll(a, pfx, S, 3, issue, lambda k: list(range(sets[k], sets[k] + 12)), succ, sleep, CFG["gap"])
    a("s_waitcnt lgkmcnt(0)")
    a("s_barrier")

def sst(a, slot, wg):
    if not M.TS: return
    lab = a.label("sst")
    a("s_xor_b32 s22, s2, %d" % wg); a("s_or_b32 s22, s22, s20"); a("s_cmp_lg_u32 s22, 0"); a("s_cbranch_scc1 %s" % lab)
    a("s_mov_b32 s23, %d" % (slot * 4)); a("v_mov_b32 v15, v254"); tstamp(a, "s23"); a("v_mov_b32 v254, v15"); a.put(lab)

def gen_chain(a):
    K = "chain_kernel"
    S = CFG["S"]
    if M.MEGA: a.put("chain_entry")
    else:
        kernel_begin(a, K)
        a("s_cmp_ge_u32 s2, 112"); a("s_cbranch_scc1 chain_end")
    def fpoll(lab, voff, soff_expr):
        if not M.MEGA: return
        a("s_mov_b32 s60, 0")
        a.put(lab)
        if voff is None: a("buffer_load_dword v15, off, s[92:95], %s sc1" % soff_expr)
        else: a("buffer_load_dword v15, v%d, s[92:95], %s offen sc1" % (voff, soff_expr))
        a("s_waitcnt vmcnt(0)")
        a("v_cmp_ne_u32 vcc, -1, v15"); a("s_nop 1"); a("s_cmp_eq_u64 vcc, exec"); a("s_cbranch_scc1 %s_ok" % lab)
        a("s_sleep 8")
        a("s_add_u32 s60, s60, 1"); a("s_cmp_gt_u32 s60, %d" % SPIN); a("s_cbranch_scc1 chain_end")
        a("s_branch %s" % lab)
        a.put(lab + "_ok")
    a("s_load_dwordx4 s[4:7], s[0:1], %d" % KA["Wq"])
    a("s_load_dwordx2 s[12:13], s[0:1], %d" % KA["ws"])
    lane_setup(a)
    a("s_waitcnt lgkmcnt(0)")
    srd_from_ptr(a, 44, 12, 66 * 10240, add=hex(WS_MEM))
    srd_from_ptr(a, 48, 12, 65 * 20480, add=hex(WS_P))
    a("s_mul_i32 s22, s20, 2560")
    a("v_lshlrev_b32 v5, 4, v1"); a("v_add_u32 v5, s22, v5"); a("v_add_u32 v6, 1024, v5")
    a("v_and_b32 v7, 31, v1"); a("v_lshlrev_b32 v7, 4, v7"); a("v_add_u32 v7, s22, v7"); a("v_add_u32 v7, 2048, v7")
    a("v_and_b32 v9, 7, v3"); a("v_lshlrev_b32 v8, 7, v2"); a("v_lshl_add_u32 v8, v9, 4, v8")
    a("s_mov_b32 s40, 0"); a("s_mov_b32 s41, 0"); a("s_mov_b32 s42, 0")
    sst(a, 24, 0); sst(a, 30, 32)
    a("s_cmp_ge_u32 s2, 32"); a("s_cbranch_scc1 chain_R")
    a("s_mul_i32 s26, s2, 384"); a("s_sub_u32 s27, %d, s26" % (640 * 12288))
    srd_from_ptr(a, 32, 4, "s27", add="s26"); srd_from_ptr(a, 36, 6, "s27", add="s26")
    a("s_add_u32 s28, s26, %d" % WS_K); srd_from_ptr(a, 52, 12, 2048 * 12288, add="s28")
    a("s_mul_i32 s28, s2, 3072"); a("s_add_u32 s28, s28, %d" % WS_KM); srd_from_ptr(a, 56, 12, 64 * 32 * 3072, add="s28")
    dma_voff(a, 10, 12288, 16, 17, 18)
    if SM:
        a("v_bfe_u32 v16, v1, 2, 2"); a("v_lshl_add_u32 v17, v2, 2, v16"); a("v_lshlrev_b32 v17, 7, v17")
        a("v_and_b32 v18, 3, v1"); a("v_lshl_add_u32 v17, v18, 3, v17"); a("v_lshrrev_b32 v16, 1, v16")
        a("v_lshrrev_b32 v18, 1, v2"); a("v_xor_b32 v18, v18, v2"); a("v_and_b32 v18, 1, v18")
        a("v_lshl_or_b32 v19, v18, 1, v16"); a("v_xor_b32 v19, v4, v19")
        a("v_lshl_add_u32 v11, v19, 5, v17"); a("v_add_u32 v12, 2048, v11")
    else:
        a("v_bfe_u32 v16, v1, 2, 2"); a("v_lshl_add_u32 v17, v2, 3, v16"); a("v_lshlrev_b32 v17, 7, v17")
        a("v_and_b32 v18, 3, v1"); a("v_lshl_add_u32 v17, v18, 3, v17"); a("v_lshrrev_b32 v16, 1, v16"); a("v_and_b32 v18, 1, v2")
        for half in range(2):
            a("v_xor_b32 v19, %d, v18" % half); a("v_lshl_or_b32 v19, v19, 1, v16"); a("v_xor_b32 v19, v4, v19")
            a("v_lshl_add_u32 v%d, v19, 5, v17" % (11 + half))
            if half: a("v_add_u32 v12, 512, v12")
    SS = 20480
    PERS = 65536
    NL = 24
    a("s_mul_i32 s22, s20, %d" % (NL * 1024)); a("s_add_u32 s22, s22, %d" % PERS); a("v_lshlrev_b32 v13, 4, v1"); a("v_add_u32 v13, s22, v13")
    def wfr(t, ks):
        idx = t * 20 + ks
        if idx < 64: return ("a", idx * 4)
        if idx < 96: return ("v", 128 + (idx - 64) * 4)
        return ("l", idx - 96)
    def wop(t, tau):
        if t == 5: return ("l", 2 + tau)
        if t == 4 and tau >= 8: return ("l", tau - 8)
        idx = t * 10 + tau
        if idx < 32: return ("a", idx * 8)
        return ("v", 128 + (idx - 32) * 8)
    slots = [(32 if m == 0 else 36, u, hh) for m in range(2) for u in range(3) for hh in range(4)]
    def dma(i):
        if i >= len(slots): return
        srd, u, hh = slots[i]
        for j in range(5):
            a("s_add_u32 m0, s21, %d" % ((i % 3) * SS + j * 4096))
            a("s_mov_b32 s23, %d" % (u * 128 + (hh * 160 + j * 32) * 12288))
            a("buffer_load_dwordx4 v10, s[%d:%d], s23 offen lds" % (srd, srd + 3))
    dma(0); dma(1); dma(2)
    for i in range(24):
        a("s_waitcnt vmcnt(%d)" % (10 if i < 22 else (5 if i == 22 else 0))); a("s_barrier")
        t = i // 4; hh = i % 4
        for k in range(5):
            ks = hh * 5 + k; f = wfr(t, ks)
            off = (i % 3) * SS + k * 4096
            d = 40 + k * 4 if (f[0] != "v" or SM) else f[1]
            a("ds_read_b64_tr_b16 v[%d:%d], v11 offset:%d" % (d, d + 1, off)); a("ds_read_b64_tr_b16 v[%d:%d], v12 offset:%d" % (d + 2, d + 3, off))
        a("s_waitcnt lgkmcnt(0)")
        for k in range(5):
            ks = hh * 5 + k; f = wfr(t, ks); d = 40 + k * 4
            if SM:
                o = wop(t, ks >> 1); ty = ks & 1
                for hb in range(2):
                    for a1 in range(2):
                        src = d + hb * 2 + a1; ri = hb * 4 + 2 * a1 + ty
                        if o[0] == "l": a("ds_write_b32 v13, v%d offset:%d" % (src, (o[1] * 2 + hb) * 1024 + (2 * a1 + ty) * 4))
                        elif o[0] == "a": a("v_accvgpr_write_b32 a%d, v%d" % (o[1] + ri, src))
                        else: a("v_mov_b32 v%d, v%d" % (o[1] + ri, src))
            elif f[0] == "l": a("ds_write_b128 v13, v[%d:%d] offset:%d" % (d, d + 3, f[1] * 1024))
            elif f[0] == "a":
                for r in range(4): a("v_accvgpr_write_b32 a%d, v%d" % (f[1] + r, d + r))
        a("s_waitcnt lgkmcnt(0)"); a("s_barrier")
        dma(i + 3)
    SETS = [52, 64, 76][:S]
    a("v_mul_u32_u24 v9, 12288, v3"); a("v_lshl_add_u32 v9, v2, 4, v9")
    a("s_lshr_b32 s22, s20, 1"); a("s_lshl_b32 s22, s22, 6"); a("s_and_b32 s23, s20, 1"); a("s_lshl_b32 s23, s23, 3"); a("s_add_u32 s22, s22, s23")
    a("v_add_u32 v9, s22, v9")
    a("v_mul_u32_u24 v10, 384, v3"); a("v_lshl_add_u32 v10, v2, 4, v10"); a("v_add_u32 v10, s22, v10")
    a("v_lshlrev_b32 v11, 4, v1")
    SCB = 16384
    a("v_lshrrev_b32 v12, 1, v2"); a("v_lshlrev_b32 v12, 8, v12"); a("v_lshl_add_u32 v12, v3, 5, v12"); a("v_and_b32 v14, 1, v2"); a("v_lshl_add_u32 v12, v14, 4, v12")
    a("s_mul_i32 s22, s20, 1280"); a("s_add_u32 s22, s22, %d" % SCB); a("v_add_u32 v12, s22, v12")
    a("v_lshlrev_b32 v14, 5, v1"); a("v_add_u32 v14, %d, v14" % SCB)
    a("s_mul_i32 s43, s2, 640")
    a("s_mov_b32 s61, 0"); a("s_mov_b32 s62, 0")
    def kseg_loads():
        for tt in range(2):
            for u in range(3):
                a("s_add_u32 s23, s61, %d" % (tt * 16 * 12288 + u * 128))
                a("buffer_load_dwordx2 v[%d:%d], v9, s[52:55], s23 offen" % (40 + (tt * 3 + u) * 2, 41 + (tt * 3 + u) * 2))
    def km_and_prefetch():
        a("s_mov_b32 exec_lo, 0x00ff00ff"); a("s_mov_b32 exec_hi, 0x00ff00ff")
        for u in range(3):
            a("buffer_store_dwordx2 v[%d:%d], v10, s[56:59], s62 offen offset:%d%s" % (16 + 4 * (3 + u), 17 + 4 * (3 + u), u * 128, ST()))
        a("s_mov_b64 exec, -1")
        a("s_add_u32 s61, s61, %d" % (32 * 12288)); a("s_add_u32 s62, s62, %d" % (32 * 3072))
        if M.MEGA:
            if HALF:
                a("s_cmp_lg_u32 s40, 3"); a("s_cbranch_scc1 chA_fk1_ok")
                a("s_lshl_b32 s22, s2, 2"); a("s_add_u32 s22, s22, %d" % (F_X + 128))
                fpoll("chA_fk1", None, "s22")
            a("s_add_u32 s22, s40, 1"); a("s_and_b32 s23, s22, 7"); a("s_cmp_lg_u32 s23, 0"); a("s_cbranch_scc1 chA_fk_ok")
            a("s_cmp_ge_u32 s22, 64"); a("s_cbranch_scc1 chA_fk_ok")
            a("s_lshl_b32 s22, s22, 4"); a("s_lshl_b32 s23, s2, 2"); a("s_add_u32 s22, s22, s23"); a("s_add_u32 s22, s22, %d" % F_K)
            fpoll("chA_fk", None, "s22")
        kseg_loads()
    sst(a, 26, 0)
    if M.MEGA:
        a("s_lshl_b32 s22, s2, 2"); a("s_add_u32 s22, s22, %d" % F_K)
        fpoll("chA_fk0", None, "s22")

    sst(a, 28, 0)
    kseg_loads()
    dbg_init(a)
    a("s_mov_b32 s63, 0")
    if SM:
        a("v_lshrrev_b32 v8, 2, v3"); a("v_and_b32 v100, 1, v3"); a("v_lshl_add_u32 v8, v8, 1, v100"); a("v_lshlrev_b32 v8, 4, v8")
        a("v_lshl_add_u32 v8, v2, 7, v8"); a("v_bfe_u32 v100, v3, 1, 1"); a("v_lshl_add_u32 v8, v100, 9, v8")
        a("v_mul_u32_u24 v100, 0xaaaaaa, v100"); a("v_lshlrev_b32 v101, 8, v100"); a("v_and_b32 v102, 0xff, v100"); a("v_or_b32 v100, v101, v102")
        a("v_add_u32 v100, 0x44444444, v100")
        TB = 24576
        a("s_mul_i32 s22, s20, 1536"); a("s_add_u32 s22, s22, %d" % TB)
        a("v_lshlrev_b32 v101, 4, v3"); a("v_lshl_add_u32 v101, v2, 2, v101"); a("v_add_u32 v101, s22, v101")
        a("v_lshrrev_b32 v102, 2, v3"); a("v_lshl_add_u32 v102, v2, 2, v102"); a("v_lshlrev_b32 v102, 4, v102")
        a("v_and_b32 v103, 1, v3"); a("v_lshl_add_u32 v102, v103, 3, v102"); a("v_add_u32 v102, s22, v102")
        suses = [(tau, t) for tau in range(10) for t in range(6) if wop(t, tau)[0] == "l"]
        swbuf = {u: 104 + (n % 3) * 8 for n, u in enumerate(suses)}
        def srd_w(u, issued):
            o = wop(u[1], u[0])[1]
            for hb in range(2):
                a("ds_read_b128 v[%d:%d], v13 offset:%d" % (swbuf[u] + 4 * hb, swbuf[u] + 4 * hb + 3, (o * 2 + hb) * 1024))
            issued.append(("x", u)); issued.append(("w", u))
    a.put("chA_loop")
    if SM:
        pre_issued = []
        for r in range(16, 40): a("v_mov_b32 v%d, 0" % r)
        for n in range(3): srd_w(suses[n], pre_issued)
        pre_issued = []
    gather_mem(a, "chA", SETS, 44, 41, 5, 0)
    if M.TS:
        a("s_and_b32 s22, s40, 7"); a("s_or_b32 s22, s22, s2"); a("s_or_b32 s22, s22, s20"); a("s_cmp_lg_u32 s22, 0"); a("s_cbranch_scc1 chA_ts")
        a("s_lshr_b32 s23, s40, 1"); a("v_mov_b32 v15, v254"); tstamp(a, "s23"); a("s_add_u32 s23, s23, 48"); tstamp(a, "s23", core=True); a("v_mov_b32 v254, v15"); a.put("chA_ts")
    stamp(a, 0)
    ND = 4
    if SM:
        issued = list(pre_issued)
        def rd_m(tau): a("ds_read_b128 v[%d:%d], v8 offset:%d" % (88 + (tau % 3) * 4, 91 + (tau % 3) * 4, tau * 1024)); issued.append(("m", tau))
        for tau in range(3): rd_m(tau)
        for tau in range(10):
            need = max(i for i, x in enumerate(issued) if (x[0] == "m" and x[1] == tau) or (x[0] == "w" and x[1][0] == tau))
            a("s_waitcnt lgkmcnt(%d)" % min(15, len(issued) - 1 - need))
            mb = "v[%d:%d]" % (88 + (tau % 3) * 4, 91 + (tau % 3) * 4)
            for t in range(6):
                f = wop(t, tau)
                if f[0] == "l": f = ("v", swbuf[(tau, t)])
                a("v_smfmac_f32_16x16x64_bf16 v[%d:%d], %s, %s, v100" % (16 + 4 * t, 19 + 4 * t, mb, reg(f, 8)))
                if (tau, t) in suses:
                    n = suses.index((tau, t))
                    if n + 3 < len(suses): srd_w(suses[n + 3], issued)
            if tau + 3 < 10: rd_m(tau + 3)
        a("s_waitcnt vmcnt(0)")
        a("s_nop 6"); a("s_nop 1")
        stamp(a, 1)
        order = [0, 3, 1, 4, 2, 5]
        for t in order:
            x = 16 + 4 * t
            a("v_add_f32 v%d, v%d, v%d" % (x, x, x + 2)); a("v_add_f32 v%d, v%d, v%d" % (x + 1, x + 1, x + 3))
        for t in order:
            x = 16 + 4 * t
            a("v_cvt_pk_bf16_f32 v%d, v%d, v%d" % (x, x, x + 1))
        for t in order:
            a("ds_write_b32 v101, v%d offset:%d" % (16 + 4 * t, t * 256))
        for t in order:
            a("ds_read_b64_tr_b16 v[%d:%d], v102 offset:%d" % (16 + 4 * t, 17 + 4 * t, t * 256))
        a("s_waitcnt lgkmcnt(0)")
    else:
        NW = 6
        lf = [ks for ks in range(20)]
        uses = []
        for ks in range(20):
            for t in range(6):
                if wfr(t, ks)[0] == "l": uses.append((ks, t))
        wbuf = {u: 104 + (n % NW) * 4 for n, u in enumerate(uses)}
        issued = []
        def rd_m(ks): a("ds_read_b128 v[%d:%d], v8 offset:%d" % (88 + (ks % ND) * 4, 91 + (ks % ND) * 4, ks * 512)); issued.append(("m", ks))
        def rd_w(u): a("ds_read_b128 v[%d:%d], v13 offset:%d" % (wbuf[u], wbuf[u] + 3, wfr(u[1], u[0])[1] * 1024)); issued.append(("w", u))
        wi = 0
        def prefetch(upto_ks):
            nonlocal wi
            while len([x for x in issued if x[0] == "m"]) <= min(19, upto_ks):
                k = len([x for x in issued if x[0] == "m"])
                rd_m(k)
                while wi < len(uses) and uses[wi][0] <= k:
                    rd_w(uses[wi]); wi += 1
        prefetch(ND - 2)
        for ks in range(20):
            lim = ks + ND - 1
            cons = len([u for u in uses if u[0] < ks])
            while lim > ks and len([u for u in uses if u[0] <= min(lim, 19)]) > cons + NW: lim -= 1
            prefetch(lim)
            need = max(i for i, x in enumerate(issued) if (x[0] == "m" and x[1] == ks) or (x[0] == "w" and x[1][0] == ks))
            a("s_waitcnt lgkmcnt(%d)" % min(15, len(issued) - 1 - need))
            mb = "v[%d:%d]" % (88 + (ks % ND) * 4, 91 + (ks % ND) * 4)
            for t in range(6):
                f = wfr(t, ks)
                if f[0] == "l": f = ("v", wbuf[(ks, t)])
                d = "v[%d:%d]" % (16 + 4 * t, 19 + 4 * t)
                a("v_mfma_f32_16x16x32_bf16 %s, %s, %s, %s" % (d, reg(f), mb, "0" if ks == 0 else d))
        a("s_waitcnt vmcnt(0)")
        a("s_nop 6"); a("s_nop 1")
        stamp(a, 1)
        for t in range(6):
            a("v_cvt_pk_bf16_f32 v%d, v%d, v%d" % (16 + 4 * t, 16 + 4 * t, 17 + 4 * t))
            a("v_cvt_pk_bf16_f32 v%d, v%d, v%d" % (17 + 4 * t, 18 + 4 * t, 19 + 4 * t))
        a("s_nop 1")
    SC = 88
    for u in range(3):
        for tile in range(3):
            d = "v[%d:%d]" % (SC + 4 * tile, SC + 3 + 4 * tile)
            A = (16 + 4 * (3 + u)) if tile == 0 else 40 + ((tile - 1) * 3 + u) * 2
            a("v_mfma_f32_16x16x16_bf16 %s, v[%d:%d], v[%d:%d], %s" % (d, A, A + 1, 16 + 4 * u, 17 + 4 * u, "0" if u == 0 else d))
    a("s_mov_b32 exec_lo, 0x00ff00ff"); a("s_mov_b32 exec_hi, 0x00ff00ff")
    a("s_nop 7"); a("s_nop 1")
    a("ds_write_b128 v12, v[%d:%d] offset:256" % (SC + 4, SC + 7))
    a("ds_write_b128 v12, v[%d:%d] offset:768" % (SC + 8, SC + 11))
    a("s_mov_b32 exec_hi, 0")
    a("ds_write_b128 v12, v[%d:%d]" % (SC, SC + 3))
    a("s_mov_b64 exec, -1")
    a("s_waitcnt lgkmcnt(0)"); a("s_barrier")
    stamp(a, 2)
    a("s_cmp_lg_u32 s20, 0"); a("s_cbranch_scc1 chA_rest")
    for w in range(4):
        for hf in range(2):
            a("ds_read_b128 v[%d:%d], v14 offset:%d" % (52 + (w * 2 + hf) * 4, 55 + (w * 2 + hf) * 4, w * 1280 + hf * 16))
    a("v_cmp_gt_u32 vcc, 40, v1")
    a("v_mov_b32 v88, 0xff800000")
    a("s_waitcnt lgkmcnt(4)")
    for j in range(8): a("v_add_f32 v%d, v%d, v%d" % (52 + j, 52 + j, 60 + j))
    a("s_waitcnt lgkmcnt(0)")
    for j in range(8): a("v_add_f32 v%d, v%d, v%d" % (68 + j, 68 + j, 76 + j))
    for j in range(8): a("v_add_f32 v%d, v%d, v%d" % (52 + j, 52 + j, 68 + j))
    V = 52; T = 89
    c = 192 ** -0.5 * 1.4426950408889634
    ch = struct.unpack("<I", struct.pack("<f", c))[0]
    a("v_max3_f32 v%d, v52, v53, v54" % T); a("v_max3_f32 v%d, v55, v56, v57" % (T + 1)); a("v_max3_f32 v%d, v%d, v58, v59" % (T, T)); a("v_max_f32 v%d, v%d, v%d" % (T, T, T + 1))
    a("v_cndmask_b32 v%d, v88, v%d, vcc" % (T, T))
    def xred(op):
        a("s_nop 1")
        a("%s_dpp v%d, v%d, v%d row_ror:8 row_mask:0xf bank_mask:0xf" % (op, T, T, T))
        for sw in ("v_permlane16_swap_b32", "v_permlane32_swap_b32"):
            a("v_mov_b32 v%d, v%d" % (T + 1, T)); a("s_nop 1")
            a("%s v%d, v%d" % (sw, T, T + 1)); a("s_nop 1")
            a("%s v%d, v%d, v%d" % (op, T, T, T + 1))
    xred("v_max_f32")
    a("v_mul_f32 v%d, 0x%08x, v%d" % (T, ch, T)); a("v_mov_b32 v%d, 0x%08x" % (T + 2, ch))
    for j in range(8): a("v_fma_f32 v%d, v%d, v%d, -v%d" % (V + j, V + j, T + 2, T))
    for j in range(8): a("v_exp_f32 v%d, v%d" % (V + j, V + j))
    a("v_mov_b32 v88, 0")
    a("v_add_f32 v%d, v52, v53" % T); a("v_add_f32 v%d, v54, v55" % (T + 1)); a("v_add_f32 v%d, v56, v57" % (T + 3)); a("v_add_f32 v%d, v58, v59" % (T + 4))
    a("v_add_f32 v%d, v%d, v%d" % (T, T, T + 1)); a("v_add_f32 v%d, v%d, v%d" % (T + 3, T + 3, T + 4)); a("v_add_f32 v%d, v%d, v%d" % (T, T, T + 3))
    a("v_cndmask_b32 v%d, v88, v%d, vcc" % (T, T))
    xred("v_add_f32")
    a("v_rcp_f32 v%d, v%d" % (T, T)); a("s_nop 0")
    for j in range(8): a("v_mul_f32 v%d, v%d, v%d" % (V + j, V + j, T))
    for j in range(4): a("v_cvt_pk_bf16_f32 v%d, v%d, v%d" % (60 + j, 52 + 2 * j, 53 + 2 * j))
    a("s_add_u32 s23, s42, s43")
    a("s_mov_b32 exec_hi, 0xff")
    a("buffer_store_dwordx4 v[60:63], v11, s[48:51], s23 offen sc1")
    a("s_mov_b64 exec, -1")
    stamp(a, 3)
    a.put("chA_rest")
    km_and_prefetch()
    a("s_add_u32 s40, s40, 1"); a("s_add_u32 s41, s41, 10240"); a("s_add_u32 s42, s42, 20480")
    a("s_cmp_ge_u32 s40, 64"); a("s_cbranch_scc1 chA_end")
    a("s_cmp_lg_u32 s20, 0"); a("s_cbranch_scc1 chA_slp")
    if CFG["slpA0"]: a("s_sleep %d" % CFG["slpA0"])
    a("s_branch chA_loop")
    a.put("chA_slp")
    if CFG["slpA"]: a("s_sleep %d" % CFG["slpA"])
    a("s_branch chA_loop")
    a.put("chA_end")
    if M.TS:
        a("s_or_b32 s22, s2, s20"); a("s_cmp_lg_u32 s22, 0"); a("s_cbranch_scc1 chA_ts2")
        a("s_mov_b32 s23, 32"); tstamp(a, "s23"); a.put("chA_ts2")
    dbg_out(a, 0, 0)
    if M.MEGA:
        a("s_waitcnt vmcnt(0)"); a("s_barrier")
        a("s_cmp_lg_u32 s20, 0"); a("s_cbranch_scc1 chain_fin")
        for r in range(60, 64): a("v_mov_b32 v%d, 0" % r)
        a("s_add_u32 s23, s42, s43")
        a("s_mov_b32 exec_hi, 0xff")
        a("buffer_store_dwordx4 v[60:63], v11, s[48:51], s23 offen sc1")
        a("s_mov_b64 exec, -1")
        a("s_branch chain_fin")
    a("s_branch chain_end")
    a.put("chain_R")
    a("s_sub_u32 s24, s2, 32")
    a("s_mul_i32 s26, s24, 327680"); a("s_mul_i32 s27, s20, 81920"); a("s_add_u32 s26, s26, s27"); a("s_add_u32 s26, s26, %d" % WS_VO)
    srd_from_ptr(a, 32, 12, 81920, add="s26")
    a("s_mul_i32 s26, s20, %d" % (8 * 640)); a("s_lshl_b32 s27, s24, 3"); a("s_add_u32 s26, s26, s27")
    a("s_lshl_b32 s27, s26, 6"); a("s_add_u32 s27, s27, %d" % WS_U); a("s_sub_u32 s28, %d, s27" % (WS_U + 64 * 32 * 40960))
    srd_from_ptr(a, 36, 12, "s28", add="s27")
    a("s_lshl_b32 s27, s26, 4"); a("s_add_u32 s27, s27, %d" % WS_Y); a("s_sub_u32 s28, %d, s27" % (WS_Y + 64 * 32 * 10240))
    srd_from_ptr(a, 52, 12, "s28", add="s27")
    a("v_lshlrev_b32 v9, 4, v1")
    def vfr(tt, ks):
        idx = tt * 20 + ks
        return ("a", idx * 4) if idx < 64 else ("v", 192 + (idx - 64) * 4)
    if M.MEGA:
        a("v_lshlrev_b32 v30, 2, v1"); a("v_lshlrev_b32 v31, 2, v1"); a("v_add_u32 v31, 256, v31")
        a("s_mov_b32 s22, %d" % F_VO)
        fpoll("chR_vo0", 30, "s22"); fpoll("chR_vo1", 31, "s22")
    sst(a, 32, 32)
    for tt in range(4):
        for ks in range(20):
            a("s_mov_b32 s23, %d" % (tt * 20480 + ks * 1024))
            a("buffer_load_dwordx4 %s, v9, s[32:35], s23 offen" % reg(vfr(tt, ks)))
    YLB = 16384
    a("v_and_b32 v10, 7, v3")
    a("v_lshrrev_b32 v14, 3, v3"); a("v_lshl_add_u32 v14, v14, 2, v2")
    a("s_lshl_b32 s22, s20, 10"); a("s_add_u32 s22, s22, %d" % YLB)
    for m in range(5):
        a("v_add_u32 v11, %d, v14" % (8 * m))
        a("v_mul_u32_u24 v12, 52, v11"); a("v_lshrrev_b32 v12, 8, v12")
        a("v_mul_u32_u24 v13, 5, v12"); a("v_sub_u32 v13, v11, v13")
        a("v_max_u32 v13, 1, v13"); a("v_subrev_u32 v13, 1, v13")
        a("v_mul_u32_u24 v%d, 40960, v12" % (16 + m)); a("v_lshl_add_u32 v%d, v13, 4, v%d" % (16 + m, 16 + m))
        a("v_lshl_add_u32 v%d, v10, 6, v%d" % (16 + m, 16 + m))
        a("v_lshlrev_b32 v%d, 7, v12" % (184 + m)); a("v_lshl_add_u32 v%d, v10, 4, v%d" % (184 + m, 184 + m)); a("v_add_u32 v%d, s22, v%d" % (184 + m, 184 + m))
    a("s_mul_i32 s23, s20, 5120"); a("v_lshlrev_b32 v21, 7, v14"); a("v_lshl_add_u32 v21, v10, 4, v21"); a("v_add_u32 v21, s23, v21")
    a("v_lshlrev_b32 v22, 4, v3"); a("v_lshl_add_u32 v22, v2, 3, v22"); a("v_add_u32 v22, s22, v22")
    a("v_lshlrev_b32 v24, 4, v1"); a("v_add_u32 v24, s22, v24")
    a("v_lshrrev_b32 v25, 3, v1"); a("v_mul_u32_u24 v25, 10240, v25"); a("v_and_b32 v11, 7, v1"); a("v_lshl_add_u32 v25, v11, 4, v25")
    RB = 24576
    a("v_lshlrev_b32 v27, 4, v1"); a("v_add_u32 v27, %d, v27" % RB); a("s_lshl_b32 s22, s20, 10"); a("v_add_u32 v26, s22, v27")
    a("s_lshl_b32 s22, s24, 7"); a("v_lshlrev_b32 v28, 4, v3"); a("v_lshl_add_u32 v28, v2, 3, v28"); a("v_add_u32 v28, s22, v28")
    a("s_mov_b32 s61, 0"); a("s_mov_b32 s62, 0")
    MS = [32, 44, 56][:S]; PS = [120, 140, 160][:S]
    def u_loads():
        for m in range(5):
            a("buffer_load_dwordx4 v[%d:%d], v%d, s[36:39], s61 offen" % (100 + 4 * m, 103 + 4 * m, 16 + m))
    if M.TS: a("s_waitcnt vmcnt(0)")
    sst(a, 34, 32)
    if M.MEGA:
        a("v_and_b32 v30, 31, v1"); a("v_lshlrev_b32 v30, 2, v30")
        a("s_mov_b32 s22, %d" % F_U)
        fpoll("chR_fu0", 30, "s22")

    sst(a, 36, 32)
    u_loads()
    dbg_init(a)
    a.put("chR_loop")
    gather_mem(a, "chR", MS, 44, 41, 5, 0)
    stamp(a, 0)
    def rd(ks): a("ds_read_b128 v[%d:%d], v8 offset:%d" % (84 + (ks % ND) * 4, 87 + (ks % ND) * 4, ks * 512))
    for ks in range(ND - 1): rd(ks)
    for ks in range(20):
        if ks + ND - 1 < 20: rd(ks + ND - 1)
        rem = min(19, ks + ND - 1) - ks
        a("s_waitcnt lgkmcnt(%d)" % rem)
        mb = "v[%d:%d]" % (84 + (ks % ND) * 4, 87 + (ks % ND) * 4)
        for tt in range(4):
            d = "v[%d:%d]" % (68 + 4 * tt, 71 + 4 * tt)
            a("v_mfma_f32_16x16x32_bf16 %s, %s, %s, %s" % (d, mb, reg(vfr(tt, ks)), "0" if ks == 0 else d))
    a("s_nop 7"); a("s_nop 1")
    for tt in range(4):
        a("v_cvt_pk_bf16_f32 v%d, v%d, v%d" % (68 + 4 * tt, 68 + 4 * tt, 69 + 4 * tt))
        a("v_cvt_pk_bf16_f32 v%d, v%d, v%d" % (69 + 4 * tt, 70 + 4 * tt, 71 + 4 * tt))
    a("s_mov_b32 exec_hi, 0")
    for tt in range(4):
        a("ds_write_b64 v22, v[%d:%d] offset:%d" % (68 + 4 * tt, 69 + 4 * tt, tt * 256))
    a("s_mov_b64 exec, -1")
    a("s_waitcnt vmcnt(0) lgkmcnt(0)")
    for m in range(5):
        mask = 0
        for n in range(16):
            for g in range(4):
                if (m * 8 + (n >> 3) * 4 + g) % 5 == 0: mask |= 1 << (g * 16 + n)
        a("s_mov_b32 exec_lo, 0x%x" % (mask & 0xffffffff)); a("s_mov_b32 exec_hi, 0x%x" % (mask >> 32))
        a("ds_read_b128 v[%d:%d], v%d" % (100 + 4 * m, 103 + 4 * m, 184 + m))
    a("s_mov_b64 exec, -1")
    a("ds_read_b128 v[84:87], v24")
    a("s_waitcnt lgkmcnt(0)")
    a("buffer_store_dwordx4 v[84:87], v25, s[52:55], s62 offen%s" % ST())
    stamp(a, 1)
    def issue(k):
        for m in range(5):
            if m < 4: a("buffer_load_dwordx4 v[%d:%d], v21, s[48:51], s42 offen offset:%d sc1" % (PS[k] + 4 * m, PS[k] + 4 * m + 3, m * 1024))
            else:
                a("buffer_load_dwordx4 v[%d:%d], v29, s[48:51], s42 offen sc1" % (PS[k] + 4 * m, PS[k] + 4 * m + 3))
    a("v_add_u32 v29, 4096, v21")
    def succ(k):
        stamp(a, 2)
        for m in range(5):
            d = "v[%d:%d]" % (68 + 4 * (m & 1), 71 + 4 * (m & 1))
            a("v_mfma_f32_16x16x32_bf16 %s, v[%d:%d], v[%d:%d], %s" % (d, 100 + 4 * m, 103 + 4 * m, PS[k] + 4 * m, PS[k] + 4 * m + 3, "0" if m < 2 else d))
    spoll(a, "chRp", S, 5, issue, lambda k: list(range(PS[k], PS[k] + 20)), succ, CFG["slpR"], CFG["gap"])
    a("s_nop 7"); a("s_nop 1")
    for r in range(4): a("v_add_f32 v%d, v%d, v%d" % (68 + r, 68 + r, 72 + r))
    a("ds_write_b128 v26, v[68:71]")
    a("s_waitcnt lgkmcnt(0)"); a("s_barrier")
    a("s_cmp_lg_u32 s20, 0"); a("s_cbranch_scc1 chR_next")
    for w in range(4):
        a("ds_read_b128 v[%d:%d], v27 offset:%d" % (68 + 8 * w, 71 + 8 * w, w * 1024))
        a("ds_read_b128 v[%d:%d], v27 offset:%d" % (72 + 8 * w, 75 + 8 * w, w * 1024 + 40 * 16))
    a("s_waitcnt lgkmcnt(0)")
    for st in (16, 8, 4):
        for r in range(st): a("v_add_f32 v%d, v%d, v%d" % (68 + r, 68 + r, 68 + st + r))
    a("v_cvt_pk_bf16_f32 v68, v68, v69"); a("v_cvt_pk_bf16_f32 v69, v70, v71")
    a("v_min_u32 v68, 0xfffffffe, v68"); a("v_min_u32 v69, 0xfffffffe, v69")
    a("s_add_u32 s23, s41, 10240")
    a("s_mov_b32 exec_lo, 0x00ff00ff"); a("s_mov_b32 exec_hi, 0")
    a("buffer_store_dwordx2 v[68:69], v28, s[44:47], s23 offen sc1")
    a("s_mov_b64 exec, -1")
    stamp(a, 3)
    a.put("chR_next")
    a("s_add_u32 s40, s40, 1"); a("s_add_u32 s41, s41, 10240"); a("s_add_u32 s42, s42, 20480"); a("s_add_u32 s61, s61, %d" % (32 * 40960)); a("s_add_u32 s62, s62, %d" % (32 * 10240))
    a("s_cmp_ge_u32 s40, 64"); a("s_cbranch_scc1 chR_end")
    if M.MEGA:
        if HALF:
            a("s_cmp_lg_u32 s40, 4"); a("s_cbranch_scc1 chR_fu1_ok")
            a("s_mov_b32 s22, %d" % F_X)
            fpoll("chR_fu1", 30, "s22")
        a("s_and_b32 s23, s40, 7"); a("s_cmp_lg_u32 s23, 0"); a("s_cbranch_scc1 chR_fu_ok")
        a("s_lshl_b32 s22, s40, 4"); a("s_add_u32 s22, s22, %d" % F_U)
        fpoll("chR_fu", 30, "s22")
    u_loads()
    if CFG["slpRm"]: a("s_sleep %d" % CFG["slpRm"])
    a("s_branch chR_loop")
    a.put("chR_end")
    dbg_out(a, 32, 32)
    if M.MEGA:
        a("s_waitcnt vmcnt(0)")
        spoll(a, "chRz", 1, 5, issue, lambda k: list(range(PS[k], PS[k] + 20)), lambda k: None, 4, 0)
        a("s_barrier")
        a("s_cmp_lg_u32 s20, 0"); a("s_cbranch_scc1 chain_fin")
        a("v_mov_b32 v68, 0"); a("v_mov_b32 v69, 0")
        a("s_add_u32 s23, s41, 10240")
        a("s_mov_b32 exec_lo, 0x00ff00ff"); a("s_mov_b32 exec_hi, 0")
        a("buffer_store_dwordx2 v[68:69], v28, s[44:47], s23 offen sc1")
        a("s_mov_b64 exec, -1")
        a.put("chain_fin"); a("s_branch task_next")
        a.put("chain_end"); a("s_branch mega_exit")
        return K, 512, 256
    a.put("chain_end"); a("s_endpgm")
    return K, 512, 256
```

```python
from gen import *
from gen2 import *
import gen3, gen4, gen5, os
from gen3 import SPIN
POST = True
NT0 = 512
HALF = os.environ.get("HALF", "1") == "1"
FINE = os.environ.get("FINE", "1") == "1"
XQ = os.environ.get("XQ", "1") == "1"
LAG = [int(x) for x in os.environ.get("LAG", "2,3,6,8").split(",")]

WSLP = int(os.environ.get('WSLP', '32'))
PAP = os.environ.get('PAP', '0') == '1'

def signal_mid(a):
    a("v_mov_b32 v251, 0"); a("s_mov_b64 exec, 1")
    a("buffer_store_dword v251, off, s[92:95], s99 sc1")
    a("s_mov_b64 exec, -1")

def wpoll(a, lab, srd, s_off, cnt, shift, slp=None, vb=250):
    n = (cnt + 63) // 64
    for j in range(n):
        a("v_and_b32 v%d, 63, v0" % vb); a("v_add_u32 v%d, %d, v%d" % (vb, 64 * j, vb)); a("v_min_u32 v%d, %d, v%d" % (vb, cnt - 1, vb)); a(("v_lshlrev_b32 v%d, %d, v%d" % (vb + 2 + j, shift, vb)) if shift < 32 else ("v_mul_u32_u24 v%d, %d, v%d" % (vb + 2 + j, shift, vb)))
    a("s_mov_b32 s60, 0")
    a.put(lab)
    for j in range(n): a("buffer_load_dword v%d, v%d, s[%d:%d], %s offen sc1" % (vb + j, vb + 2 + j, srd, srd + 3, s_off))
    a("s_waitcnt vmcnt(0)")
    if n == 2: a("v_max_u32 v%d, v%d, v%d" % (vb, vb, vb + 1))
    a("v_cmp_ne_u32 vcc, -1, v%d" % vb); a("s_nop 1"); a("s_cmp_eq_u64 vcc, exec"); a("s_cbranch_scc1 %s_ok" % lab)
    a("s_sleep %d" % (slp or WSLP))
    a("s_add_u32 s60, s60, 1"); a("s_cmp_gt_u32 s60, %d" % SPIN); a("s_cbranch_scc1 mega_exit")
    a("s_branch %s" % lab)
    a.put(lab + "_ok")

def tpoll(a, lab, srd, cnt, shift, vb):
    a("s_cmp_lg_u32 s100, 0"); a("s_cbranch_scc1 %s_skip" % lab)
    wpoll(a, lab, srd, "s99", cnt, shift, None, vb)
    a.put(lab + "_skip"); a("s_barrier")

def ticket(a, off, sdst):
    a("s_cmp_lg_u32 s100, 0"); lab = a.label("tk"); a("s_cbranch_scc1 %s" % lab)
    a("v_mov_b32 v251, 1"); a("s_mov_b32 s23, %s" % off); a("s_mov_b64 exec, 1")
    a("buffer_atomic_add v251, off, s[92:95], s23 sc0 sc1")
    a("s_waitcnt vmcnt(0)")
    a("v_mov_b32 v252, 0"); a("ds_write_b32 v252, v251"); a("s_waitcnt lgkmcnt(0)")
    a("s_mov_b64 exec, -1")
    a.put(lab)
    a("s_barrier")
    a("v_mov_b32 v252, 0"); a("ds_read_b32 v251, v252"); a("s_waitcnt lgkmcnt(0)"); a("s_nop 0")
    a("v_readfirstlane_b32 s%d, v251" % sdst); a("s_nop 3")
    a("s_barrier")

TSR = int(os.environ.get("TSR", "55"))
def wstamp(a, which):
    if not M.TS: return
    lab = a.label("ws")
    a("s_sub_u32 s22, s97, %d" % (64 + NT0 + (46 if FINE else 20) * TSR)); a("s_cmp_ge_u32 s22, %d" % (46 if FINE else 20)); a("s_cbranch_scc1 %s" % lab)
    a("s_cmp_lg_u32 s100, 0"); a("s_cbranch_scc1 %s" % lab)
    if FINE: a("s_mul_i32 s22, s22, 28"); a("s_lshr_b32 s22, s22, 6")
    a("s_lshl_b32 s23, s22, 3"); a("s_add_u32 s23, s23, %d" % (96 + 4 * which)); tstamp(a, "s23")
    a.put(lab)
def gen_ln2m(a):
    a.put("ln2_kernel_entry")
    a("s_load_dwordx2 s[12:13], s[0:1], %d" % KA["ws"])
    a("s_waitcnt lgkmcnt(0)")
    srd_from_ptr(a, 32, 12, 2048 * 2560, add=hex(WS_X1))
    srd_from_ptr(a, 36, 12, 0x2000000)
    a("s_mov_b32 s24, s2"); a("s_mov_b32 s25, 8")
    a.put("ln2_lp")
    gen_ln_body(a, "ln2", True, 32, 36, WS_H2, 3, 4, 24)
    a("s_add_u32 s24, s24, 1"); a("s_sub_u32 s25, s25, 1"); a("s_cmp_lg_u32 s25, 0"); a("s_cbranch_scc1 ln2_lp")
    a("s_branch task_done")

def gen_mega(a):
    K = "mega_kernel"
    M.MEGA = True; M.signal_mid = staticmethod(signal_mid); M.tpoll = staticmethod(tpoll)
    kernel_begin(a, K)
    a("s_cmp_ge_u32 s2, 256"); a("s_cbranch_scc1 mega_exit2")
    a("s_load_dwordx2 s[12:13], s[0:1], %d" % KA["ws"])
    a("v_lshrrev_b32 v4, 6, v0"); a("s_nop 0"); a("v_readfirstlane_b32 s100, v4")
    a("s_waitcnt lgkmcnt(0)")
    srd_from_ptr(a, 92, 12, 0x10000)
    srd_from_ptr(a, 88, 12, (WS_P + 65 * 20480 - WS_MEM) if PAP else 66 * 10240, add=hex(WS_MEM))
    if M.TS:
        a("s_load_dwordx2 s[14:15], s[0:1], %d" % KA["dbg"]); a("s_waitcnt lgkmcnt(0)")
        srd_from_ptr(a, 80, 14, 256)
    if os.environ.get("ROLE", "static") == "static": a("s_mov_b32 s96, s2")
    elif os.environ.get("ROLE", "").startswith("m"):
        a("s_getreg_b32 s22, hwreg(HW_REG_XCC_ID)"); a("s_and_b32 s22, s22, 15"); a("s_lshr_b32 s22, %s, s22" % os.environ["ROLE"][1:]); a("s_and_b32 s22, s22, 1")
        a("s_mov_b32 s96, 1000"); a("s_cmp_eq_u32 s22, 0"); a("s_cbranch_scc1 role_skip")
        ticket(a, WS_TKT, 96)
        a.put("role_skip")
    else: ticket(a, WS_TKT, 96)
    a("s_mov_b32 s101, 0")
    if M.TS:
        a("s_cmp_lg_u32 s96, 0"); a("s_cbranch_scc1 ts_a"); a("s_mov_b32 s23, 36"); tstamp(a, "s23"); a.put("ts_a")
    if M.TS:
        a("s_cmp_lg_u32 s100, 0"); a("s_cbranch_scc1 ts_hw")
        a("s_getreg_b32 s22, hwreg(HW_REG_XCC_ID)"); a("s_getreg_b32 s23, hwreg(HW_REG_HW_ID)")
        a("v_mov_b32 v250, s22"); a("v_mov_b32 v251, s23"); a("s_lshl_b32 s22, s96, 3"); a("s_add_u32 s22, s22, 0x4000")
        a("s_mov_b64 exec, 1"); a("buffer_store_dwordx2 v[250:251], off, s[92:95], s22"); a("s_mov_b64 exec, -1")
        a.put("ts_hw")
    if XQ:
        a("s_mov_b32 s2, s96"); a("s_mov_b32 s97, 0x7fffffff")
        a("s_cmp_lt_u32 s96, 32"); a("s_cbranch_scc1 chain_entry")
        a("s_cmp_ge_u32 s96, 160"); a("s_cbranch_scc1 task_take")
        a("s_cmp_lt_u32 s96, 112"); a("s_cselect_b32 s101, 1, 0")
        a("s_sub_u32 s2, s96, 32"); a("s_lshl_b32 s98, s2, 2"); a("s_add_u32 s98, s98, %d" % F_VO); a("s_branch vo_kernel_entry")
    else:
        a("s_cmp_ge_u32 s96, 112"); a("s_cbranch_scc1 task_take")
        a("s_mov_b32 s2, s96"); a("s_mov_b32 s97, 0x7fffffff")
        a("s_cmp_lt_u32 s96, 32"); a("s_cbranch_scc1 chain_entry")
        a("s_sub_u32 s2, s96, 32"); a("s_lshl_b32 s98, s2, 2"); a("s_add_u32 s98, s98, %d" % F_VO); a("s_mov_b32 s101, 1"); a("s_branch vo_kernel_entry")
    a.put("task_done")
    a("s_mov_b64 exec, -1")
    a("s_waitcnt vmcnt(0) lgkmcnt(0)"); a("s_barrier")
    wstamp(a, 1)
    a("s_cmp_lg_u32 s100, 0"); a("s_cbranch_scc1 task_take")
    a("v_mov_b32 v251, 0"); a("s_mov_b64 exec, 1")
    a("buffer_store_dword v251, off, s[92:95], s98 sc1")
    a("s_mov_b64 exec, -1")
    a("s_branch task_take")
    a.put("task_next")
    a("s_mov_b64 exec, -1")
    a("s_waitcnt vmcnt(0) lgkmcnt(0)"); a("s_barrier")
    a.put("task_take")
    a("s_cmp_eq_u32 s101, 0"); a("s_cbranch_scc1 task_take2")
    a("s_mov_b32 s101, 0"); a("s_mov_b32 s2, s96"); a("s_branch chain_entry")
    a.put("task_take2")
    if XQ:
        assert HALF
        a("s_cmp_lt_u32 s96, 112"); a("s_cbranch_scc1 tq_post")
        a("s_cmp_ge_u32 s96, 1000"); a("s_cbranch_scc1 tq_x")
        ticket(a, WS_TKT + 128, 97)
        a("s_cmp_lt_u32 s97, 64"); a("s_cbranch_scc1 task_l1")
        a("s_mov_b32 s96, 1000")
        a.put("tq_x")
        a("s_cmp_ge_u32 s96, 1008"); a("s_cbranch_scc1 tq_post")
        a("s_getreg_b32 s22, hwreg(HW_REG_XCC_ID)"); a("s_add_u32 s22, s22, s96"); a("s_and_b32 s61, s22, 7")
        a("s_lshl_b32 s62, s61, 2"); a("s_add_u32 s62, s62, %d" % WS_TKT)
        ticket(a, "s62", 97)
        a("s_cmp_lt_u32 s97, 72"); a("s_cbranch_scc1 tq_go")
        a("s_add_u32 s96, s96, 1"); a("s_branch tq_x")
        a.put("tq_go")
        a("s_mov_b32 s22, s97"); a("s_lshr_b32 s62, s22, 3")
        a("s_bfe_u32 s23, s22, 0x20001"); a("s_lshl_b32 s23, s23, 3"); a("s_add_u32 s23, s23, s61")
        a("s_lshl_b32 s23, s23, 1"); a("s_and_b32 s22, s22, 1"); a("s_add_u32 s23, s23, s22")
        a("s_mov_b32 s97, 100")
        a("s_cmp_ge_u32 s62, 2"); a("s_cbranch_scc1 tq_full")
        a("s_lshl_b32 s24, s62, 6"); a("s_add_u32 s24, s24, s23"); a("s_branch task_h_in")
        a.put("tq_full")
        a("s_sub_u32 s62, s62, 1"); a("s_lshl_b32 s24, s62, 6"); a("s_add_u32 s24, s24, s23"); a("s_branch task_t")
        a.put("tq_post")
        ticket(a, WS_TKT + 64, 97)
        a("s_add_u32 s97, s97, %d" % (64 + NT0)); a("s_branch task_post")
    ticket(a, WS_TKT + 128, 97)
    a("s_cmp_lt_u32 s97, 8"); a("s_cbranch_scc1 task_l1")
    a("s_cmp_ge_u32 s97, 56"); a("s_cbranch_scc1 task_nv")
    a("s_add_u32 s2, s97, 72"); a("s_lshl_b32 s98, s2, 2"); a("s_add_u32 s98, s98, %d" % F_VO); a("s_branch vo_kernel_entry")
    a.put("task_nv")
    a("s_sub_u32 s97, s97, 48")
    RS = 20 if NT0 == 512 else 28
    if FINE: RS = 46
    if HALF:
        a("s_cmp_lt_u32 s97, 64"); a("s_cbranch_scc1 task_l1")
        a("s_sub_u32 s24, s97, 64"); a("s_cmp_ge_u32 s24, 128"); a("s_cbranch_scc1 task_nh")
        a.put("task_h_in")
        a("s_cmp_lg_u32 s100, 0"); a("s_cbranch_scc1 task_h_go")
        a("s_mov_b32 s22, %d" % F_L1)
        wpoll(a, "w_h", 92, "s22", 8, 2, 8)
        a.put("task_h_go"); a("s_barrier")
        a("s_lshr_b32 s2, s24, 1")
        a("s_and_b32 s22, s2, 31"); a("s_lshl_b32 s22, s22, 2"); a("s_cmp_ge_u32 s2, 32"); a("s_cbranch_scc1 task_h1")
        a("s_add_u32 s98, s22, %d" % F_U); a("s_add_u32 s99, s22, %d" % F_K); a("s_add_u32 s23, s22, %d" % F_Q); a("s_branch task_h2")
        a.put("task_h1")
        a("s_add_u32 s98, s22, %d" % F_X); a("s_add_u32 s99, s22, %d" % (F_X + 128)); a("s_add_u32 s23, s22, %d" % (F_X + 256))
        a.put("task_h2")
        a("s_bitcmp1_b32 s24, 0"); a("s_cbranch_scc0 t2h_kernel_entry")
        a("s_mov_b32 s98, s23"); a("s_branch t1h_kernel_entry")
        a.put("task_nh")
        a("s_sub_u32 s97, s97, 64")
    a("s_cmp_ge_u32 s97, %d" % (64 + NT0)); a("s_cbranch_scc1 task_post")
    a("s_sub_u32 s24, s97, 64")
    a("s_cmp_ge_u32 s97, 64"); a("s_cbranch_scc1 task_t")
    a.put("task_l1")
    a("s_mov_b32 s2, s97"); a("s_lshl_b32 s98, s97, 2"); a("s_add_u32 s98, s98, %d" % F_L1); a("s_branch ln1_kernel_entry")
    a.put("task_t")
    a("s_cmp_lg_u32 s100, 0"); a("s_cbranch_scc1 task_t_go")
    a("s_lshr_b32 s22, s24, 6"); a("s_lshl_b32 s22, s22, 5"); a("s_add_u32 s22, s22, %d" % F_L1)
    wpoll(a, "w_t", 92, "s22", 8, 2, 8)
    a.put("task_t_go"); a("s_barrier")
    a("s_lshr_b32 s22, s24, 6"); a("s_bfe_u32 s23, s24, 0x50001"); a("s_lshl_b32 s2, s22, 5"); a("s_add_u32 s2, s2, s23")
    a("s_lshl_b32 s22, s2, 2")
    a("s_bitcmp1_b32 s24, 0"); a("s_cbranch_scc1 task_t1")
    a("s_add_u32 s98, s22, %d" % F_U); a("s_branch t2_kernel_entry")
    a.put("task_t1")
    a("s_add_u32 s98, s22, %d" % F_Q); a("s_add_u32 s99, s22, %d" % F_K); a("s_branch t1_kernel_entry")
    a.put("task_post")
    if M.TS:
        a("s_cmp_lg_u32 s97, %d" % (64 + NT0)); a("s_cbranch_scc1 ts_b"); a("s_mov_b32 s23, 40"); tstamp(a, "s23"); a.put("ts_b")
    if not POST:
        a("s_branch mega_exit")
    elif FINE:
        FPO = WS_FLG + 24576; FF1 = WS_FLG + 8192; FDUM = WS_FLG + 13312
        a("s_sub_u32 s22, s97, %d" % (64 + NT0)); a("s_mul_i32 s24, s22, 1425"); a("s_lshr_b32 s24, s24, 16")
        a("s_mul_i32 s23, s24, 46"); a("s_sub_u32 s25, s22, s23")
        a("s_cmp_ge_u32 s24, %d" % (64 + LAG[3])); a("s_cbranch_scc1 mega_exit")
        a("s_cmp_ge_u32 s25, 41"); a("s_cbranch_scc1 task_f2")
        a("s_cmp_ge_u32 s25, 29"); a("s_cbranch_scc1 task_f1")
        a("s_cmp_ge_u32 s25, 28"); a("s_cbranch_scc1 task_ln2")
        a("s_cmp_ge_u32 s25, 8"); a("s_cbranch_scc1 task_po")
        a("s_cmp_ge_u32 s24, 64"); a("s_cbranch_scc1 task_take")
        a("s_lshl_b32 s2, s24, 3"); a("s_add_u32 s2, s2, s25"); a("s_lshl_b32 s98, s2, 2"); a("s_add_u32 s98, s98, %d" % F_PA)
        a("s_cmp_lg_u32 s100, 0"); a("s_cbranch_scc1 task_pa_go")
        a("s_lshr_b32 s22, s24, 3"); a("s_lshl_b32 s22, s22, 7"); a("s_add_u32 s22, s22, %d" % F_Q)
        wpoll(a, "w_pa1", 92, "s22", 32, 2)
        if HALF:
            a("s_cmp_ge_u32 s24, 8"); a("s_cbranch_scc1 w_pa1x_ok")
            a("s_mov_b32 s22, %d" % (F_X + 256))
            wpoll(a, "w_pa1x", 92, "s22", 32, 2)
        a.put("task_pa_go"); a("s_add_u32 s99, s24, 2"); a("s_mul_i32 s99, s99, 10240"); wstamp(a, 0); a("s_barrier"); a("s_branch pattn_kernel_entry")
        a.put("task_po")
        a("s_sub_u32 s24, s24, %d" % LAG[0]); a("s_cmp_ge_u32 s24, 64"); a("s_cbranch_scc1 task_take")
        a("s_sub_u32 s25, s25, 8"); a("s_lshl_b32 s2, s24, 5"); a("s_add_u32 s2, s2, s25")
        a("s_lshl_b32 s98, s2, 2"); a("s_add_u32 s98, s98, %d" % FPO)
        a("s_cmp_lg_u32 s100, 0"); a("s_cbranch_scc1 task_po_go")
        a("s_add_u32 s22, s24, 2"); a("s_mul_i32 s22, s22, 10240")
        wpoll(a, "w_po", 88, "s22", 80, 7)
        a.put("task_po_go"); a("s_lshl_b32 s99, s24, 5"); a("s_add_u32 s99, s99, %d" % F_PA); wstamp(a, 0); a("s_barrier"); a("s_branch pout_kernel_entry")
        a.put("task_ln2")
        a("s_sub_u32 s24, s24, %d" % LAG[1]); a("s_cmp_ge_u32 s24, 64"); a("s_cbranch_scc1 task_take")
        a("s_mov_b32 s2, s24"); a("s_lshl_b32 s98, s24, 2"); a("s_add_u32 s98, s98, %d" % F_L2)
        a("s_cmp_lg_u32 s100, 0"); a("s_cbranch_scc1 task_ln2_go")
        a("s_lshl_b32 s22, s24, 7"); a("s_add_u32 s22, s22, %d" % FPO)
        wpoll(a, "w_ln2", 92, "s22", 20, 2)
        a.put("task_ln2_go"); wstamp(a, 0); a("s_barrier"); a("s_branch ln2_kernel_entry")
        a.put("task_f1")
        a("s_sub_u32 s24, s24, %d" % LAG[2]); a("s_cmp_ge_u32 s24, 64"); a("s_cbranch_scc1 task_take")
        a("s_sub_u32 s25, s25, 29"); a("s_and_b32 s22, s24, 1"); a("s_mul_i32 s22, s22, 12"); a("s_add_u32 s25, s25, s22")
        a("s_lshr_b32 s24, s24, 1"); a("s_lshl_b32 s2, s24, 5"); a("s_add_u32 s2, s2, s25")
        a("s_lshl_b32 s98, s2, 2"); a("s_add_u32 s98, s98, %d" % FF1)
        a("s_lshl_b32 s99, s24, 3"); a("s_add_u32 s99, s99, %d" % F_L2)
        a.put("task_f1_go"); wstamp(a, 0); a("s_barrier"); a("s_branch ffn1_kernel_entry")
        a.put("task_f2")
        a("s_sub_u32 s24, s24, %d" % LAG[3]); a("s_cmp_ge_u32 s24, 64"); a("s_cbranch_scc1 task_take")
        a("s_sub_u32 s25, s25, 41"); a("s_and_b32 s22, s24, 1"); a("s_mul_i32 s22, s22, 5"); a("s_add_u32 s25, s25, s22")
        a("s_lshr_b32 s24, s24, 1"); a("s_lshl_b32 s2, s24, 4"); a("s_add_u32 s2, s2, s25")
        a("s_mov_b32 s98, %d" % FDUM)
        a("s_lshl_b32 s99, s24, 7"); a("s_add_u32 s99, s99, %d" % FF1)
        a.put("task_f2_go"); wstamp(a, 0); a("s_barrier"); a("s_branch ffn2_kernel_entry")
    else:
        a("s_sub_u32 s22, s97, %d" % (64 + NT0)); a("s_mul_i32 s24, s22, %d" % (3277 if RS == 20 else 2341)); a("s_lshr_b32 s24, s24, 16")
        a("s_mul_i32 s23, s24, %d" % RS); a("s_sub_u32 s25, s22, s23")
        a("s_cmp_ge_u32 s24, 74"); a("s_cbranch_scc1 mega_exit")
        if RS == 28:
            a("s_cmp_lt_u32 s25, 20"); a("s_cbranch_scc1 task_np")
            a("s_lshl_b32 s24, s24, 3"); a("s_add_u32 s24, s24, s25"); a("s_add_u32 s24, s24, %d" % (NT0 - 20))
            a("s_cmp_ge_u32 s24, 512"); a("s_cbranch_scc1 task_take")
            a("s_branch task_t")
            a.put("task_np")
        a("s_cmp_ge_u32 s25, 14"); a("s_cbranch_scc1 task_ffn")
        a("s_cmp_ge_u32 s25, 13"); a("s_cbranch_scc1 task_ln2")
        a("s_cmp_ge_u32 s25, 8"); a("s_cbranch_scc1 task_po")
        a("s_cmp_ge_u32 s24, 64"); a("s_cbranch_scc1 task_take")
        a("s_lshl_b32 s2, s24, 3"); a("s_add_u32 s2, s2, s25"); a("s_lshl_b32 s98, s2, 2"); a("s_add_u32 s98, s98, %d" % F_PA)
        a("s_cmp_lg_u32 s100, 0"); a("s_cbranch_scc1 task_pa_go")
        a("s_lshr_b32 s22, s24, 3"); a("s_lshl_b32 s22, s22, 7"); a("s_add_u32 s22, s22, %d" % F_Q)
        wpoll(a, "w_pa1", 92, "s22", 32, 2)
        if HALF:
            a("s_cmp_ge_u32 s24, 8"); a("s_cbranch_scc1 w_pa1x_ok")
            a("s_mov_b32 s22, %d" % (F_X + 256))
            wpoll(a, "w_pa1x", 92, "s22", 32, 2)
        a("s_add_u32 s22, s24, 2"); a("s_mul_i32 s22, s22, 10240")
        wpoll(a, "w_pa2", 88, "s22", 80, 7)
        a.put("task_pa_go"); wstamp(a, 0); a("s_barrier"); a("s_branch pattn_kernel_entry")
        a.put("task_po")
        a("s_sub_u32 s24, s24, 1"); a("s_cmp_ge_u32 s24, 64"); a("s_cbranch_scc1 task_take")
        a("s_sub_u32 s25, s25, 8"); a("s_mul_i32 s2, s24, 5"); a("s_add_u32 s2, s2, s25")
        a("s_lshl_b32 s98, s24, 5"); a("s_lshl_b32 s22, s25, 2"); a("s_add_u32 s98, s98, s22"); a("s_add_u32 s98, s98, %d" % F_PO)
        a("s_cmp_lg_u32 s100, 0"); a("s_cbranch_scc1 task_po_go")
        a("s_lshl_b32 s22, s24, 5"); a("s_add_u32 s22, s22, %d" % F_PA)
        wpoll(a, "w_po", 92, "s22", 8, 2)
        a.put("task_po_go"); wstamp(a, 0); a("s_barrier"); a("s_branch pout_kernel_entry")
        a.put("task_ln2")
        a("s_sub_u32 s24, s24, 2"); a("s_cmp_ge_u32 s24, 64"); a("s_cbranch_scc1 task_take")
        a("s_mov_b32 s2, s24"); a("s_lshl_b32 s98, s24, 2"); a("s_add_u32 s98, s98, %d" % F_L2)
        a("s_cmp_lg_u32 s100, 0"); a("s_cbranch_scc1 task_ln2_go")
        a("s_lshl_b32 s22, s24, 5"); a("s_add_u32 s22, s22, %d" % F_PO)
        wpoll(a, "w_ln2", 92, "s22", 5, 2)
        a.put("task_ln2_go"); wstamp(a, 0); a("s_barrier"); a("s_branch ln2_kernel_entry")
        a.put("task_ffn")
        a("s_cmp_lt_u32 s24, 10"); a("s_cbranch_scc1 task_take")
        a("s_sub_u32 s24, s24, 10"); a("s_mul_i32 s24, s24, 6"); a("s_add_u32 s24, s24, s25"); a("s_sub_u32 s24, s24, 14")
        a("s_mul_i32 s25, s24, 1366"); a("s_lshr_b32 s25, s25, 16")
        a("s_mul_i32 s22, s25, 48"); a("s_sub_u32 s24, s24, s22")
        a("s_cmp_ge_u32 s24, 44"); a("s_cbranch_scc1 task_take")
        a("s_cmp_ge_u32 s24, 24"); a("s_cbranch_scc1 task_f2")
        a("s_lshl_b32 s2, s24, 3"); a("s_add_u32 s2, s2, s25")
        a("s_lshl_b32 s98, s25, 7"); a("s_lshl_b32 s22, s24, 2"); a("s_add_u32 s98, s98, s22"); a("s_add_u32 s98, s98, %d" % F_F1)
        a("s_cmp_lg_u32 s100, 0"); a("s_cbranch_scc1 task_f1_go")
        a("s_lshl_b32 s22, s25, 5"); a("s_add_u32 s22, s22, %d" % F_L2)
        wpoll(a, "w_f1", 92, "s22", 8, 2)
        a.put("task_f1_go"); wstamp(a, 0); a("s_barrier"); a("s_branch ffn1_kernel_entry")
        a.put("task_f2")
        a("s_sub_u32 s24, s24, 24"); a("s_lshl_b32 s2, s25, 1")
        a("s_cmp_lt_u32 s24, 10"); a("s_cbranch_scc1 task_f2a")
        a("s_sub_u32 s24, s24, 10"); a("s_add_u32 s2, s2, 1")
        a.put("task_f2a")
        a("s_lshl_b32 s22, s24, 4"); a("s_add_u32 s2, s2, s22")
        a("s_mov_b32 s98, %d" % (F_F1 + 2048))
        a("s_cmp_lg_u32 s100, 0"); a("s_cbranch_scc1 task_f2_go")
        a("s_lshl_b32 s22, s25, 7"); a("s_add_u32 s22, s22, %d" % F_F1)
        wpoll(a, "w_f2", 92, "s22", 24, 2)
        a.put("task_f2_go"); wstamp(a, 0); a("s_barrier"); a("s_branch ffn2_kernel_entry")
    a.put("mega_exit")
    if M.TS:
        a("s_cmp_ge_u32 s2, 100000"); a("s_cbranch_scc1 ts_c")
        a("s_mov_b32 s23, 44"); tstamp(a, "s23", atomic=True); a.put("ts_c")
    a("s_endpgm")
    a.put("mega_exit2"); a("s_endpgm")
    gen4.gen_chain(a)
    gen5.gen_t2(a); gen5.gen_t1(a)
    if HALF: gen5.gen_t2(a, 2); gen5.gen_t1(a, 2)
    if POST:
        gen3.gen_pattn(a); (gen3.gen_pout_f if FINE else gen3.gen_pout)(a); gen_ln_seg(a, "ln2_kernel", True, "ws", WS_X1, 2048 * 2560, WS_H2, 3, 4); gen_ln_seg(a, "ln1_kernel", False, "x", 0, 2048 * 1280, WS_H, 0, 1); gen_vo_ln(a); gen_ffn1(a, 1 if FINE else 4); gen_ffn2(a, 1 if FINE else 2)
    M.MEGA = False
    return K, 512, 256

def gen_ln_seg(a, name, src_f32, src_ka, src_add, src_size, dst_off, shift_i, scale_i):
    NR = 8
    a.put(name + "_entry")
    a("s_load_dwordx2 s[12:13], s[0:1], %d" % KA["ws"])
    a("s_load_dwordx2 s[6:7], s[0:1], %d" % KA[src_ka])
    a("v_and_b32 v1, 63, v0"); a("v_lshlrev_b32 v3, 2, v1"); a("v_lshlrev_b32 v5, 3, v1")
    a("s_waitcnt lgkmcnt(0)")
    srd_from_ptr(a, 32, 6, src_size, add=(hex(src_add) if src_add else None))
    srd_from_ptr(a, 36, 12, 0x2000000)
    a("s_lshl_b32 s24, s2, 5"); a("s_lshl_b32 s25, s100, 3"); a("s_add_u32 s24, s24, s25")
    X = 20; T = 160
    rs = 2560 if src_f32 else 1280
    a("s_mul_i32 s26, s24, %d" % rs)
    for r in range(NR):
        a("s_add_u32 s23, s26, %d" % (r * rs))
        for j in range(5):
            if src_f32: a("buffer_load_dwordx2 v[%d:%d], v5, s[32:35], s23 offen offset:%d" % (X + r * 10 + 2 * j, X + r * 10 + 2 * j + 1, j * 512))
            else: a("buffer_load_dword v%d, v3, s[32:35], s23 offen offset:%d" % (100 + r * 5 + j, j * 256))
    for j in range(5):
        a("s_mov_b32 s14, %d" % (WS_MOD + scale_i * 2560 + j * 512))
        a("buffer_load_dwordx2 v[%d:%d], v5, s[36:39], s14 offen" % (140 + 2 * j, 141 + 2 * j))
        a("s_mov_b32 s14, %d" % (WS_MOD + shift_i * 2560 + j * 512))
        a("buffer_load_dwordx2 v[%d:%d], v5, s[36:39], s14 offen" % (150 + 2 * j, 151 + 2 * j))
    a("v_lshrrev_b32 v6, 4, v1"); a("v_lshlrev_b32 v4, 10, v6"); a("v_bfe_u32 v6, v1, 2, 2"); a("v_lshl_add_u32 v4, v6, 8, v4"); a("v_and_b32 v6, 3, v1"); a("v_lshl_add_u32 v4, v6, 2, v4")
    a("s_lshr_b32 s27, s2, 1"); a("s_mul_i32 s27, s27, 81920"); a("s_and_b32 s28, s2, 1"); a("s_mul_i32 s28, s28, 40960"); a("s_add_u32 s27, s27, s28")
    a("s_lshl_b32 s28, s100, 6"); a("v_add_u32 v4, s28, v4"); a("s_add_u32 s27, s27, %d" % dst_off)
    a("s_waitcnt vmcnt(0)")
    S = [168 + r for r in range(NR)]; TM = [T + i for i in range(NR)]
    TM = [176 + i for i in range(NR + 1)]
    for r in range(NR):
        x = X + r * 10
        if not src_f32:
            for j in range(5):
                a("v_lshlrev_b32 v%d, 16, v%d" % (x + 2 * j, 100 + r * 5 + j)); a("v_and_b32 v%d, 0xffff0000, v%d" % (x + 2 * j + 1, 100 + r * 5 + j))
        a("v_add_f32 v%d, v%d, v%d" % (S[r], x, x + 1))
        for j in range(2, 10): a("v_add_f32 v%d, v%d, v%d" % (S[r], S[r], x + j))
    wave_sum(a, S, TM, 3, NR)
    for r in range(NR):
        x = X + r * 10
        a("v_mul_f32 v%d, 0x3acccccd, v%d" % (S[r], S[r]))
        for j in range(10): a("v_sub_f32 v%d, v%d, v%d" % (x + j, x + j, S[r]))
        a("v_mul_f32 v%d, v%d, v%d" % (S[r], x, x))
        for j in range(1, 10): a("v_fmac_f32 v%d, v%d, v%d" % (S[r], x + j, x + j))
    wave_sum(a, S, TM, 3, NR)
    for j in range(10): a("v_add_f32 v%d, 1.0, v%d" % (140 + j, 140 + j))
    for r in range(NR):
        x = X + r * 10
        a("v_mov_b32 v7, 0x3727c5ac"); a("v_fmac_f32 v7, 0x3acccccd, v%d" % S[r]); a("v_rsq_f32 v7, v7"); a("s_nop 0")
        for j in range(10):
            a("v_mul_f32 v%d, v%d, v7" % (x + j, x + j)); a("v_fma_f32 v%d, v%d, v%d, v%d" % (x + j, x + j, 140 + j, 150 + j))
        for j in range(5):
            a("v_cvt_pk_bf16_f32 v%d, v%d, v%d" % (x + j, x + 2 * j, x + 2 * j + 1))
            a("ds_write_b32 v4, v%d offset:%d" % (x + j, (r >> 2) * 20480 + (r & 3) * 16 + j * 4096))
    a("s_waitcnt lgkmcnt(0)"); a("s_barrier")
    a("v_lshlrev_b32 v5, 4, v0")
    for j in range(10): a("ds_read_b128 v[%d:%d], v5 offset:%d" % (20 + 4 * j, 23 + 4 * j, j * 4096))
    for j in range(10):
        a("s_waitcnt lgkmcnt(%d)" % (9 - j))
        a("s_add_u32 s14, s27, %d" % (j * 4096))
        a("buffer_store_dwordx4 v[%d:%d], v5, s[36:39], s14 offen%s" % (20 + 4 * j, 23 + 4 * j, ST()))
    a("s_branch task_done")
```

```python
from gen import *
from gen2 import *
import gen3
from gen3 import stamp, dbg_init, dbg_out, SPIN
import struct, os
HALF = os.environ.get('HALF', '1') == '1'
SM = os.environ.get('SM', '1') == '1'
CFG = dict(S=2, gap=8, slpA=26, slpR=31, slpRm=12, slpA0=22)

ADAPT = os.environ.get("ADAPT", "0") == "1"
UP = int(os.environ.get("UP", "8"))
ADM = os.environ.get("ADM", "0") == "1"
def spoll(a, pfx, S, nl, issue, regs, succ, sleep, gap, vt=15, adapt=None):
    if adapt and ADAPT:
        a("s_lshr_b32 s66, s%d, 2" % adapt)
        a.put(pfx + "_sl")
        a("s_cmp_eq_u32 s66, 0"); a("s_cbranch_scc1 %s_sld" % pfx); a("s_sleep 1"); a("s_sub_u32 s66, s66, 1"); a("s_branch %s_sl" % pfx)
        a.put(pfx + "_sld")
    elif sleep: a("s_sleep %d" % sleep)
    a("s_mov_b32 s60, 0")
    for k in range(S):
        issue(k)
        if k < S - 1 and gap: a("s_sleep %d" % gap)
    a.put(pfx + "_lp")
    for k in range(S):
        a("s_waitcnt vmcnt(%d)" % ((S - 1) * nl))
        r = regs(k)
        a("v_max3_u32 v%d, v%d, v%d, v%d" % (vt, r[0], r[1], r[2]))
        r = r[3:]
        while len(r) >= 2:
            a("v_max3_u32 v%d, v%d, v%d, v%d" % (vt, vt, r[0], r[1])); r = r[2:]
        if r: a("v_max_u32 v%d, v%d, v%d" % (vt, vt, r[0]))
        a("v_cmp_ne_u32 vcc, -1, v%d" % vt)
        a("s_nop 1")
        a("s_cmp_eq_u64 vcc, exec")
        a("s_cbranch_scc1 %s_ok%d" % (pfx, k))
        issue(k)
    a("s_add_u32 s60, s60, 1"); a("s_cmp_gt_u32 s60, %d" % SPIN); a("s_cbranch_scc1 chain_end")
    a("s_branch %s_lp" % pfx)
    for k in range(S):
        a.put("%s_ok%d" % (pfx, k))
        succ(k)
        if adapt and ADAPT:
            if k == 0: a("s_cmp_eq_u32 s60, 0"); a("s_cselect_b32 s66, -1, %d" % UP)
            else: a("s_mov_b32 s66, %d" % UP)
            a("s_add_i32 s%d, s%d, s66" % (adapt, adapt)); a("s_max_i32 s%d, s%d, 0" % (adapt, adapt)); a("s_min_i32 s%d, s%d, 600" % (adapt, adapt))
        if k < S - 1: a("s_branch %s_done" % pfx)
    a.put(pfx + "_done")

def gather_mem(a, pfx, sets, srd, s_off, vG, sleep, adapt=None):
    S = len(sets)
    def issue(k):
        for n in range(3):
            a("buffer_load_dwordx4 v[%d:%d], v%d, s[%d:%d], s%d offen sc1" % (sets[k] + 4 * n, sets[k] + 4 * n + 3, vG + n, srd, srd + 3, s_off))
    def succ(k):
        for n in range(3):
            a("ds_write_b128 v%d, v[%d:%d]" % (vG + n, sets[k] + 4 * n, sets[k] + 4 * n + 3))
    spoll(a, pfx, S, 3, issue, lambda k: list(range(sets[k], sets[k] + 12)), succ, sleep, CFG["gap"], adapt=adapt)
    a("s_waitcnt lgkmcnt(0)")
    a("s_barrier")

def sst(a, slot, wg):
    if not M.TS: return
    lab = a.label("sst")
    a("s_xor_b32 s22, s2, %d" % wg); a("s_or_b32 s22, s22, s20"); a("s_cmp_lg_u32 s22, 0"); a("s_cbranch_scc1 %s" % lab)
    a("s_mov_b32 s23, %d" % (slot * 4)); a("v_mov_b32 v15, v254"); tstamp(a, "s23"); a("v_mov_b32 v254, v15"); a.put(lab)

def gen_chain(a):
    K = "chain_kernel"
    S = CFG["S"]
    if M.MEGA: a.put("chain_entry")
    else:
        kernel_begin(a, K)
        a("s_cmp_ge_u32 s2, 112"); a("s_cbranch_scc1 chain_end")
    def fpoll(lab, voff, soff_expr):
        if not M.MEGA: return
        a("s_mov_b32 s60, 0")
        a.put(lab)
        if voff is None: a("buffer_load_dword v15, off, s[92:95], %s sc1" % soff_expr)
        else: a("buffer_load_dword v15, v%d, s[92:95], %s offen sc1" % (voff, soff_expr))
        a("s_waitcnt vmcnt(0)")
        a("v_cmp_ne_u32 vcc, -1, v15"); a("s_nop 1"); a("s_cmp_eq_u64 vcc, exec"); a("s_cbranch_scc1 %s_ok" % lab)
        a("s_sleep 8")
        a("s_add_u32 s60, s60, 1"); a("s_cmp_gt_u32 s60, %d" % SPIN); a("s_cbranch_scc1 chain_end")
        a("s_branch %s" % lab)
        a.put(lab + "_ok")
    a("s_load_dwordx4 s[4:7], s[0:1], %d" % KA["Wq"])
    a("s_load_dwordx2 s[12:13], s[0:1], %d" % KA["ws"])
    lane_setup(a)
    a("s_waitcnt lgkmcnt(0)")
    srd_from_ptr(a, 44, 12, 66 * 10240, add=hex(WS_MEM))
    srd_from_ptr(a, 48, 12, 65 * 20480, add=hex(WS_P))
    a("s_mul_i32 s22, s20, 2560")
    a("v_lshlrev_b32 v5, 4, v1"); a("v_add_u32 v5, s22, v5"); a("v_add_u32 v6, 1024, v5")
    a("v_and_b32 v7, 31, v1"); a("v_lshlrev_b32 v7, 4, v7"); a("v_add_u32 v7, s22, v7"); a("v_add_u32 v7, 2048, v7")
    a("v_and_b32 v9, 7, v3"); a("v_lshlrev_b32 v8, 7, v2"); a("v_lshl_add_u32 v8, v9, 4, v8")
    a("s_mov_b32 s40, 0"); a("s_mov_b32 s41, 0"); a("s_mov_b32 s42, 0"); a("s_cmp_lt_u32 s2, 32"); a("s_cselect_b32 s64, 64, 130"); a("s_mov_b32 s65, 100")
    sst(a, 24, 0); sst(a, 30, 32)
    a("s_cmp_ge_u32 s2, 32"); a("s_cbranch_scc1 chain_R")
    a("s_mul_i32 s26, s2, 384"); a("s_sub_u32 s27, %d, s26" % (640 * 12288))
    srd_from_ptr(a, 32, 4, "s27", add="s26"); srd_from_ptr(a, 36, 6, "s27", add="s26")
    a("s_add_u32 s28, s26, %d" % WS_K); srd_from_ptr(a, 52, 12, 2048 * 12288, add="s28")
    a("s_mul_i32 s28, s2, 3072"); a("s_add_u32 s28, s28, %d" % WS_KM); srd_from_ptr(a, 56, 12, 64 * 32 * 3072, add="s28")
    dma_voff(a, 10, 12288, 16, 17, 18)
    if SM:
        a("v_bfe_u32 v16, v1, 2, 2"); a("v_lshl_add_u32 v17, v2, 2, v16"); a("v_lshlrev_b32 v17, 7, v17")
        a("v_and_b32 v18, 3, v1"); a("v_lshl_add_u32 v17, v18, 3, v17"); a("v_lshrrev_b32 v16, 1, v16")
        a("v_lshrrev_b32 v18, 1, v2"); a("v_xor_b32 v18, v18, v2"); a("v_and_b32 v18, 1, v18")
        a("v_lshl_or_b32 v19, v18, 1, v16"); a("v_xor_b32 v19, v4, v19")
        a("v_lshl_add_u32 v11, v19, 5, v17"); a("v_add_u32 v12, 2048, v11")
    else:
        a("v_bfe_u32 v16, v1, 2, 2"); a("v_lshl_add_u32 v17, v2, 3, v16"); a("v_lshlrev_b32 v17, 7, v17")
        a("v_and_b32 v18, 3, v1"); a("v_lshl_add_u32 v17, v18, 3, v17"); a("v_lshrrev_b32 v16, 1, v16"); a("v_and_b32 v18, 1, v2")
        for half in range(2):
            a("v_xor_b32 v19, %d, v18" % half); a("v_lshl_or_b32 v19, v19, 1, v16"); a("v_xor_b32 v19, v4, v19")
            a("v_lshl_add_u32 v%d, v19, 5, v17" % (11 + half))
            if half: a("v_add_u32 v12, 512, v12")
    SS = 20480
    PERS = 65536
    NL = 24
    a("s_mul_i32 s22, s20, %d" % (NL * 1024)); a("s_add_u32 s22, s22, %d" % PERS); a("v_lshlrev_b32 v13, 4, v1"); a("v_add_u32 v13, s22, v13")
    def wfr(t, ks):
        idx = t * 20 + ks
        if idx < 64: return ("a", idx * 4)
        if idx < 96: return ("v", 128 + (idx - 64) * 4)
        return ("l", idx - 96)
    def wop(t, tau):
        if t == 5: return ("l", 2 + tau)
        if t == 4 and tau >= 8: return ("l", tau - 8)
        idx = t * 10 + tau
        if idx < 32: return ("a", idx * 8)
        return ("v", 128 + (idx - 32) * 8)
    slots = [(32 if m == 0 else 36, u, hh) for m in range(2) for u in range(3) for hh in range(4)]
    def dma(i):
        if i >= len(slots): return
        srd, u, hh = slots[i]
        for j in range(5):
            a("s_add_u32 m0, s21, %d" % ((i % 3) * SS + j * 4096))
            a("s_mov_b32 s23, %d" % (u * 128 + (hh * 160 + j * 32) * 12288))
            a("buffer_load_dwordx4 v10, s[%d:%d], s23 offen lds" % (srd, srd + 3))
    dma(0); dma(1); dma(2)
    for i in range(24):
        a("s_waitcnt vmcnt(%d)" % (10 if i < 22 else (5 if i == 22 else 0))); a("s_barrier")
        t = i // 4; hh = i % 4
        for k in range(5):
            ks = hh * 5 + k; f = wfr(t, ks)
            off = (i % 3) * SS + k * 4096
            d = 40 + k * 4 if (f[0] != "v" or SM) else f[1]
            a("ds_read_b64_tr_b16 v[%d:%d], v11 offset:%d" % (d, d + 1, off)); a("ds_read_b64_tr_b16 v[%d:%d], v12 offset:%d" % (d + 2, d + 3, off))
        a("s_waitcnt lgkmcnt(0)")
        for k in range(5):
            ks = hh * 5 + k; f = wfr(t, ks); d = 40 + k * 4
            if SM:
                o = wop(t, ks >> 1); ty = ks & 1
                for hb in range(2):
                    for a1 in range(2):
                        src = d + hb * 2 + a1; ri = hb * 4 + 2 * a1 + ty
                        if o[0] == "l": a("ds_write_b32 v13, v%d offset:%d" % (src, (o[1] * 2 + hb) * 1024 + (2 * a1 + ty) * 4))
                        elif o[0] == "a": a("v_accvgpr_write_b32 a%d, v%d" % (o[1] + ri, src))
                        else: a("v_mov_b32 v%d, v%d" % (o[1] + ri, src))
            elif f[0] == "l": a("ds_write_b128 v13, v[%d:%d] offset:%d" % (d, d + 3, f[1] * 1024))
            elif f[0] == "a":
                for r in range(4): a("v_accvgpr_write_b32 a%d, v%d" % (f[1] + r, d + r))
        a("s_waitcnt lgkmcnt(0)"); a("s_barrier")
        dma(i + 3)
    SETS = [52, 64, 76][:S]
    a("v_mul_u32_u24 v9, 12288, v3"); a("v_lshl_add_u32 v9, v2, 4, v9")
    a("s_lshr_b32 s22, s20, 1"); a("s_lshl_b32 s22, s22, 6"); a("s_and_b32 s23, s20, 1"); a("s_lshl_b32 s23, s23, 3"); a("s_add_u32 s22, s22, s23")
    a("v_add_u32 v9, s22, v9")
    a("v_mul_u32_u24 v10, 384, v3"); a("v_lshl_add_u32 v10, v2, 4, v10"); a("v_add_u32 v10, s22, v10")
    a("v_lshlrev_b32 v11, 4, v1")
    SCB = 16384
    a("v_lshrrev_b32 v12, 1, v2"); a("v_lshlrev_b32 v12, 8, v12"); a("v_lshl_add_u32 v12, v3, 5, v12"); a("v_and_b32 v14, 1, v2"); a("v_lshl_add_u32 v12, v14, 4, v12")
    a("s_mul_i32 s22, s20, 1280"); a("s_add_u32 s22, s22, %d" % SCB); a("v_add_u32 v12, s22, v12")
    a("v_lshlrev_b32 v14, 5, v1"); a("v_add_u32 v14, %d, v14" % SCB)
    a("s_mul_i32 s43, s2, 640")
    a("s_mov_b32 s61, 0"); a("s_mov_b32 s62, 0")
    def kseg_loads():
        for tt in range(2):
            for u in range(3):
                a("s_add_u32 s23, s61, %d" % (tt * 16 * 12288 + u * 128))
                a("buffer_load_dwordx2 v[%d:%d], v9, s[52:55], s23 offen" % (40 + (tt * 3 + u) * 2, 41 + (tt * 3 + u) * 2))
    def km_and_prefetch():
        a("s_mov_b32 exec_lo, 0x00ff00ff"); a("s_mov_b32 exec_hi, 0x00ff00ff")
        for u in range(3):
            a("buffer_store_dwordx2 v[%d:%d], v10, s[56:59], s62 offen offset:%d%s" % (16 + 4 * (3 + u), 17 + 4 * (3 + u), u * 128, ST()))
        a("s_mov_b64 exec, -1")
        a("s_add_u32 s61, s61, %d" % (32 * 12288)); a("s_add_u32 s62, s62, %d" % (32 * 3072))
        if M.MEGA:
            if HALF:
                a("s_cmp_lg_u32 s40, 3"); a("s_cbranch_scc1 chA_fk1_ok")
                a("s_lshl_b32 s22, s2, 2"); a("s_add_u32 s22, s22, %d" % (F_X + 128))
                fpoll("chA_fk1", None, "s22")
            a("s_add_u32 s22, s40, 1"); a("s_and_b32 s23, s22, 7"); a("s_cmp_lg_u32 s23, 0"); a("s_cbranch_scc1 chA_fk_ok")
            a("s_cmp_ge_u32 s22, 64"); a("s_cbranch_scc1 chA_fk_ok")
            a("s_lshl_b32 s22, s22, 4"); a("s_lshl_b32 s23, s2, 2"); a("s_add_u32 s22, s22, s23"); a("s_add_u32 s22, s22, %d" % F_K)
            fpoll("chA_fk", None, "s22")
        kseg_loads()
    sst(a, 26, 0)
    if M.MEGA:
        a("s_lshl_b32 s22, s2, 2"); a("s_add_u32 s22, s22, %d" % F_K)
        fpoll("chA_fk0", None, "s22")

    sst(a, 28, 0)
    kseg_loads()
    dbg_init(a)
    a("s_mov_b32 s63, 0")
    if SM:
        a("v_lshrrev_b32 v8, 2, v3"); a("v_and_b32 v100, 1, v3"); a("v_lshl_add_u32 v8, v8, 1, v100"); a("v_lshlrev_b32 v8, 4, v8")
        a("v_lshl_add_u32 v8, v2, 7, v8"); a("v_bfe_u32 v100, v3, 1, 1"); a("v_lshl_add_u32 v8, v100, 9, v8")
        a("v_mul_u32_u24 v100, 0xaaaaaa, v100"); a("v_lshlrev_b32 v101, 8, v100"); a("v_and_b32 v102, 0xff, v100"); a("v_or_b32 v100, v101, v102")
        a("v_add_u32 v100, 0x44444444, v100")
        TB = 24576
        a("s_mul_i32 s22, s20, 1536"); a("s_add_u32 s22, s22, %d" % TB)
        a("v_lshlrev_b32 v101, 4, v3"); a("v_lshl_add_u32 v101, v2, 2, v101"); a("v_add_u32 v101, s22, v101")
        a("v_lshrrev_b32 v102, 2, v3"); a("v_lshl_add_u32 v102, v2, 2, v102"); a("v_lshlrev_b32 v102, 4, v102")
        a("v_and_b32 v103, 1, v3"); a("v_lshl_add_u32 v102, v103, 3, v102"); a("v_add_u32 v102, s22, v102")
        suses = [(tau, t) for tau in range(10) for t in range(6) if wop(t, tau)[0] == "l"]
        swbuf = {u: 104 + (n % 3) * 8 for n, u in enumerate(suses)}
        def srd_w(u, issued):
            o = wop(u[1], u[0])[1]
            for hb in range(2):
                a("ds_read_b128 v[%d:%d], v13 offset:%d" % (swbuf[u] + 4 * hb, swbuf[u] + 4 * hb + 3, (o * 2 + hb) * 1024))
            issued.append(("x", u)); issued.append(("w", u))
    a.put("chA_loop")
    if SM:
        pre_issued = []
        for r in range(16, 40): a("v_mov_b32 v%d, 0" % r)
        for n in range(3): srd_w(suses[n], pre_issued)
        pre_issued = []
    gather_mem(a, "chA", SETS, 44, 41, 5, 0, adapt=64 if ADM else None)
    if M.TS:
        a("s_and_b32 s22, s40, 7"); a("s_or_b32 s22, s22, s2"); a("s_or_b32 s22, s22, s20"); a("s_cmp_lg_u32 s22, 0"); a("s_cbranch_scc1 chA_ts")
        a("s_lshr_b32 s23, s40, 1"); a("v_mov_b32 v15, v254"); tstamp(a, "s23"); a("s_add_u32 s23, s23, 48"); tstamp(a, "s23", core=True); a("v_mov_b32 v254, v15"); a.put("chA_ts")
    stamp(a, 0)
    ND = 4
    if SM:
        issued = list(pre_issued)
        def rd_m(tau): a("ds_read_b128 v[%d:%d], v8 offset:%d" % (88 + (tau % 3) * 4, 91 + (tau % 3) * 4, tau * 1024)); issued.append(("m", tau))
        for tau in range(3): rd_m(tau)
        for tau in range(10):
            need = max(i for i, x in enumerate(issued) if (x[0] == "m" and x[1] == tau) or (x[0] == "w" and x[1][0] == tau))
            a("s_waitcnt lgkmcnt(%d)" % min(15, len(issued) - 1 - need))
            mb = "v[%d:%d]" % (88 + (tau % 3) * 4, 91 + (tau % 3) * 4)
            for t in range(6):
                f = wop(t, tau)
                if f[0] == "l": f = ("v", swbuf[(tau, t)])
                a("v_smfmac_f32_16x16x64_bf16 v[%d:%d], %s, %s, v100" % (16 + 4 * t, 19 + 4 * t, mb, reg(f, 8)))
                if (tau, t) in suses:
                    n = suses.index((tau, t))
                    if n + 3 < len(suses): srd_w(suses[n + 3], issued)
            if tau + 3 < 10: rd_m(tau + 3)
        a("s_waitcnt vmcnt(0)")
        a("s_nop 6"); a("s_nop 1")
        stamp(a, 1)
        order = [0, 3, 1, 4, 2, 5]
        for t in order:
            x = 16 + 4 * t
            a("v_add_f32 v%d, v%d, v%d" % (x, x, x + 2)); a("v_add_f32 v%d, v%d, v%d" % (x + 1, x + 1, x + 3))
        for t in order:
            x = 16 + 4 * t
            a("v_cvt_pk_bf16_f32 v%d, v%d, v%d" % (x, x, x + 1))
        for t in order:
            a("ds_write_b32 v101, v%d offset:%d" % (16 + 4 * t, t * 256))
        for t in order:
            a("ds_read_b64_tr_b16 v[%d:%d], v102 offset:%d" % (16 + 4 * t, 17 + 4 * t, t * 256))
        a("s_waitcnt lgkmcnt(0)")
    else:
        NW = 6
        lf = [ks for ks in range(20)]
        uses = []
        for ks in range(20):
            for t in range(6):
                if wfr(t, ks)[0] == "l": uses.append((ks, t))
        wbuf = {u: 104 + (n % NW) * 4 for n, u in enumerate(uses)}
        issued = []
        def rd_m(ks): a("ds_read_b128 v[%d:%d], v8 offset:%d" % (88 + (ks % ND) * 4, 91 + (ks % ND) * 4, ks * 512)); issued.append(("m", ks))
        def rd_w(u): a("ds_read_b128 v[%d:%d], v13 offset:%d" % (wbuf[u], wbuf[u] + 3, wfr(u[1], u[0])[1] * 1024)); issued.append(("w", u))
        wi = 0
        def prefetch(upto_ks):
            nonlocal wi
            while len([x for x in issued if x[0] == "m"]) <= min(19, upto_ks):
                k = len([x for x in issued if x[0] == "m"])
                rd_m(k)
                while wi < len(uses) and uses[wi][0] <= k:
                    rd_w(uses[wi]); wi += 1
        prefetch(ND - 2)
        for ks in range(20):
            lim = ks + ND - 1
            cons = len([u for u in uses if u[0] < ks])
            while lim > ks and len([u for u in uses if u[0] <= min(lim, 19)]) > cons + NW: lim -= 1
            prefetch(lim)
            need = max(i for i, x in enumerate(issued) if (x[0] == "m" and x[1] == ks) or (x[0] == "w" and x[1][0] == ks))
            a("s_waitcnt lgkmcnt(%d)" % min(15, len(issued) - 1 - need))
            mb = "v[%d:%d]" % (88 + (ks % ND) * 4, 91 + (ks % ND) * 4)
            for t in range(6):
                f = wfr(t, ks)
                if f[0] == "l": f = ("v", wbuf[(ks, t)])
                d = "v[%d:%d]" % (16 + 4 * t, 19 + 4 * t)
                a("v_mfma_f32_16x16x32_bf16 %s, %s, %s, %s" % (d, reg(f), mb, "0" if ks == 0 else d))
        a("s_waitcnt vmcnt(0)")
        a("s_nop 6"); a("s_nop 1")
        stamp(a, 1)
        for t in range(6):
            a("v_cvt_pk_bf16_f32 v%d, v%d, v%d" % (16 + 4 * t, 16 + 4 * t, 17 + 4 * t))
            a("v_cvt_pk_bf16_f32 v%d, v%d, v%d" % (17 + 4 * t, 18 + 4 * t, 19 + 4 * t))
        a("s_nop 1")
    SC = 88
    for u in range(3):
        for tile in range(3):
            d = "v[%d:%d]" % (SC + 4 * tile, SC + 3 + 4 * tile)
            A = (16 + 4 * (3 + u)) if tile == 0 else 40 + ((tile - 1) * 3 + u) * 2
            a("v_mfma_f32_16x16x16_bf16 %s, v[%d:%d], v[%d:%d], %s" % (d, A, A + 1, 16 + 4 * u, 17 + 4 * u, "0" if u == 0 else d))
    a("s_mov_b32 exec_lo, 0x00ff00ff"); a("s_mov_b32 exec_hi, 0x00ff00ff")
    a("s_nop 7"); a("s_nop 1")
    a("ds_write_b128 v12, v[%d:%d] offset:256" % (SC + 4, SC + 7))
    a("ds_write_b128 v12, v[%d:%d] offset:768" % (SC + 8, SC + 11))
    a("s_mov_b32 exec_hi, 0")
    a("ds_write_b128 v12, v[%d:%d]" % (SC, SC + 3))
    a("s_mov_b64 exec, -1")
    a("s_waitcnt lgkmcnt(0)"); a("s_barrier")
    stamp(a, 2)
    a("s_cmp_lg_u32 s20, 0"); a("s_cbranch_scc1 chA_rest")
    for w in range(4):
        for hf in range(2):
            a("ds_read_b128 v[%d:%d], v14 offset:%d" % (52 + (w * 2 + hf) * 4, 55 + (w * 2 + hf) * 4, w * 1280 + hf * 16))
    a("v_cmp_gt_u32 vcc, 40, v1")
    a("v_mov_b32 v88, 0xff800000")
    a("s_waitcnt lgkmcnt(4)")
    for j in range(8): a("v_add_f32 v%d, v%d, v%d" % (52 + j, 52 + j, 60 + j))
    a("s_waitcnt lgkmcnt(0)")
    for j in range(8): a("v_add_f32 v%d, v%d, v%d" % (68 + j, 68 + j, 76 + j))
    for j in range(8): a("v_add_f32 v%d, v%d, v%d" % (52 + j, 52 + j, 68 + j))
    V = 52; T = 89
    c = 192 ** -0.5 * 1.4426950408889634
    ch = struct.unpack("<I", struct.pack("<f", c))[0]
    a("v_max3_f32 v%d, v52, v53, v54" % T); a("v_max3_f32 v%d, v55, v56, v57" % (T + 1)); a("v_max3_f32 v%d, v%d, v58, v59" % (T, T)); a("v_max_f32 v%d, v%d, v%d" % (T, T, T + 1))
    a("v_cndmask_b32 v%d, v88, v%d, vcc" % (T, T))
    def xred(op):
        a("s_nop 1")
        a("%s_dpp v%d, v%d, v%d row_ror:8 row_mask:0xf bank_mask:0xf" % (op, T, T, T))
        for sw in ("v_permlane16_swap_b32", "v_permlane32_swap_b32"):
            a("v_mov_b32 v%d, v%d" % (T + 1, T)); a("s_nop 1")
            a("%s v%d, v%d" % (sw, T, T + 1)); a("s_nop 1")
            a("%s v%d, v%d, v%d" % (op, T, T, T + 1))
    xred("v_max_f32")
    a("v_mul_f32 v%d, 0x%08x, v%d" % (T, ch, T)); a("v_mov_b32 v%d, 0x%08x" % (T + 2, ch))
    for j in range(8): a("v_fma_f32 v%d, v%d, v%d, -v%d" % (V + j, V + j, T + 2, T))
    for j in range(8): a("v_exp_f32 v%d, v%d" % (V + j, V + j))
    a("v_mov_b32 v88, 0")
    a("v_add_f32 v%d, v52, v53" % T); a("v_add_f32 v%d, v54, v55" % (T + 1)); a("v_add_f32 v%d, v56, v57" % (T + 3)); a("v_add_f32 v%d, v58, v59" % (T + 4))
    a("v_add_f32 v%d, v%d, v%d" % (T, T, T + 1)); a("v_add_f32 v%d, v%d, v%d" % (T + 3, T + 3, T + 4)); a("v_add_f32 v%d, v%d, v%d" % (T, T, T + 3))
    a("v_cndmask_b32 v%d, v88, v%d, vcc" % (T, T))
    xred("v_add_f32")
    a("v_rcp_f32 v%d, v%d" % (T, T)); a("s_nop 0")
    for j in range(8): a("v_mul_f32 v%d, v%d, v%d" % (V + j, V + j, T))
    for j in range(4): a("v_cvt_pk_bf16_f32 v%d, v%d, v%d" % (60 + j, 52 + 2 * j, 53 + 2 * j))
    a("s_add_u32 s23, s42, s43")
    a("s_mov_b32 exec_hi, 0xff")
    a("buffer_store_dwordx4 v[60:63], v11, s[48:51], s23 offen sc1")
    a("s_mov_b64 exec, -1")
    stamp(a, 3)
    a.put("chA_rest")
    km_and_prefetch()
    a("s_add_u32 s40, s40, 1"); a("s_add_u32 s41, s41, 10240"); a("s_add_u32 s42, s42, 20480")
    a("s_cmp_ge_u32 s40, 64"); a("s_cbranch_scc1 chA_end")
    if ADAPT and ADM: a("s_branch chA_loop")
    else:
        a("s_cmp_lg_u32 s20, 0"); a("s_cbranch_scc1 chA_slp")
        if CFG["slpA0"]: a("s_sleep %d" % CFG["slpA0"])
        a("s_branch chA_loop")
        a.put("chA_slp")
        if CFG["slpA"]: a("s_sleep %d" % CFG["slpA"])
        a("s_branch chA_loop")
    a.put("chA_end")
    if M.TS:
        a("s_or_b32 s22, s2, s20"); a("s_cmp_lg_u32 s22, 0"); a("s_cbranch_scc1 chA_ts2")
        a("s_mov_b32 s23, 32"); tstamp(a, "s23"); a.put("chA_ts2")
    dbg_out(a, 0, 0)
    if M.MEGA:
        a("s_waitcnt vmcnt(0)"); a("s_barrier")
        a("s_cmp_lg_u32 s20, 0"); a("s_cbranch_scc1 chain_fin")
        for r in range(60, 64): a("v_mov_b32 v%d, 0" % r)
        a("s_add_u32 s23, s42, s43")
        a("s_mov_b32 exec_hi, 0xff")
        a("buffer_store_dwordx4 v[60:63], v11, s[48:51], s23 offen sc1")
        a("s_mov_b64 exec, -1")
        a("s_branch chain_fin")
    a("s_branch chain_end")
    a.put("chain_R")
    a("s_sub_u32 s24, s2, 32")
    a("s_mul_i32 s26, s24, 327680"); a("s_mul_i32 s27, s20, 81920"); a("s_add_u32 s26, s26, s27"); a("s_add_u32 s26, s26, %d" % WS_VO)
    srd_from_ptr(a, 32, 12, 81920, add="s26")
    a("s_mul_i32 s26, s20, %d" % (8 * 640)); a("s_lshl_b32 s27, s24, 3"); a("s_add_u32 s26, s26, s27")
    a("s_lshl_b32 s27, s26, 6"); a("s_add_u32 s27, s27, %d" % WS_U); a("s_sub_u32 s28, %d, s27" % (WS_U + 64 * 32 * 40960))
    srd_from_ptr(a, 36, 12, "s28", add="s27")
    a("s_lshl_b32 s27, s26, 4"); a("s_add_u32 s27, s27, %d" % WS_Y); a("s_sub_u32 s28, %d, s27" % (WS_Y + 64 * 32 * 10240))
    srd_from_ptr(a, 52, 12, "s28", add="s27")
    a("v_lshlrev_b32 v9, 4, v1")
    def vfr(tt, ks):
        idx = tt * 20 + ks
        return ("a", idx * 4) if idx < 64 else ("v", 192 + (idx - 64) * 4)
    if M.MEGA:
        a("v_lshlrev_b32 v30, 2, v1"); a("v_lshlrev_b32 v31, 2, v1"); a("v_add_u32 v31, 256, v31")
        a("s_mov_b32 s22, %d" % F_VO)
        fpoll("chR_vo0", 30, "s22"); fpoll("chR_vo1", 31, "s22")
    sst(a, 32, 32)
    for tt in range(4):
        for ks in range(20):
            a("s_mov_b32 s23, %d" % (tt * 20480 + ks * 1024))
            a("buffer_load_dwordx4 %s, v9, s[32:35], s23 offen" % reg(vfr(tt, ks)))
    YLB = 16384
    a("v_and_b32 v10, 7, v3")
    a("v_lshrrev_b32 v14, 3, v3"); a("v_lshl_add_u32 v14, v14, 2, v2")
    a("s_lshl_b32 s22, s20, 10"); a("s_add_u32 s22, s22, %d" % YLB)
    for m in range(5):
        a("v_add_u32 v11, %d, v14" % (8 * m))
        a("v_mul_u32_u24 v12, 52, v11"); a("v_lshrrev_b32 v12, 8, v12")
        a("v_mul_u32_u24 v13, 5, v12"); a("v_sub_u32 v13, v11, v13")
        a("v_max_u32 v13, 1, v13"); a("v_subrev_u32 v13, 1, v13")
        a("v_mul_u32_u24 v%d, 40960, v12" % (16 + m)); a("v_lshl_add_u32 v%d, v13, 4, v%d" % (16 + m, 16 + m))
        a("v_lshl_add_u32 v%d, v10, 6, v%d" % (16 + m, 16 + m))
        a("v_lshlrev_b32 v%d, 7, v12" % (184 + m)); a("v_lshl_add_u32 v%d, v10, 4, v%d" % (184 + m, 184 + m)); a("v_add_u32 v%d, s22, v%d" % (184 + m, 184 + m))
    a("s_mul_i32 s23, s20, 5120"); a("v_lshlrev_b32 v21, 7, v14"); a("v_lshl_add_u32 v21, v10, 4, v21"); a("v_add_u32 v21, s23, v21")
    a("v_lshlrev_b32 v22, 4, v3"); a("v_lshl_add_u32 v22, v2, 3, v22"); a("v_add_u32 v22, s22, v22")
    a("v_lshlrev_b32 v24, 4, v1"); a("v_add_u32 v24, s22, v24")
    a("v_lshrrev_b32 v25, 3, v1"); a("v_mul_u32_u24 v25, 10240, v25"); a("v_and_b32 v11, 7, v1"); a("v_lshl_add_u32 v25, v11, 4, v25")
    RB = 24576
    a("v_lshlrev_b32 v27, 4, v1"); a("v_add_u32 v27, %d, v27" % RB); a("s_lshl_b32 s22, s20, 10"); a("v_add_u32 v26, s22, v27")
    a("s_lshl_b32 s22, s24, 7"); a("v_lshlrev_b32 v28, 4, v3"); a("v_lshl_add_u32 v28, v2, 3, v28"); a("v_add_u32 v28, s22, v28")
    a("s_mov_b32 s61, 0"); a("s_mov_b32 s62, 0")
    MS = [32, 44, 56][:S]; PS = [120, 140, 160][:S]
    def u_loads():
        for m in range(5):
            a("buffer_load_dwordx4 v[%d:%d], v%d, s[36:39], s61 offen" % (100 + 4 * m, 103 + 4 * m, 16 + m))
    if M.TS: a("s_waitcnt vmcnt(0)")
    sst(a, 34, 32)
    if M.MEGA:
        a("v_and_b32 v30, 31, v1"); a("v_lshlrev_b32 v30, 2, v30")
        a("s_mov_b32 s22, %d" % F_U)
        fpoll("chR_fu0", 30, "s22")

    sst(a, 36, 32)
    u_loads()
    dbg_init(a)
    a.put("chR_loop")
    gather_mem(a, "chR", MS, 44, 41, 5, 0, adapt=64 if ADM else None)
    stamp(a, 0)
    def rd(ks): a("ds_read_b128 v[%d:%d], v8 offset:%d" % (84 + (ks % ND) * 4, 87 + (ks % ND) * 4, ks * 512))
    for ks in range(ND - 1): rd(ks)
    for ks in range(20):
        if ks + ND - 1 < 20: rd(ks + ND - 1)
        rem = min(19, ks + ND - 1) - ks
        a("s_waitcnt lgkmcnt(%d)" % rem)
        mb = "v[%d:%d]" % (84 + (ks % ND) * 4, 87 + (ks % ND) * 4)
        for tt in range(4):
            d = "v[%d:%d]" % (68 + 4 * tt, 71 + 4 * tt)
            a("v_mfma_f32_16x16x32_bf16 %s, %s, %s, %s" % (d, mb, reg(vfr(tt, ks)), "0" if ks == 0 else d))
    a("s_nop 7"); a("s_nop 1")
    for tt in range(4):
        a("v_cvt_pk_bf16_f32 v%d, v%d, v%d" % (68 + 4 * tt, 68 + 4 * tt, 69 + 4 * tt))
        a("v_cvt_pk_bf16_f32 v%d, v%d, v%d" % (69 + 4 * tt, 70 + 4 * tt, 71 + 4 * tt))
    a("s_mov_b32 exec_hi, 0")
    for tt in range(4):
        a("ds_write_b64 v22, v[%d:%d] offset:%d" % (68 + 4 * tt, 69 + 4 * tt, tt * 256))
    a("s_mov_b64 exec, -1")
    a("s_waitcnt vmcnt(0) lgkmcnt(0)")
    for m in range(5):
        mask = 0
        for n in range(16):
            for g in range(4):
                if (m * 8 + (n >> 3) * 4 + g) % 5 == 0: mask |= 1 << (g * 16 + n)
        a("s_mov_b32 exec_lo, 0x%x" % (mask & 0xffffffff)); a("s_mov_b32 exec_hi, 0x%x" % (mask >> 32))
        a("ds_read_b128 v[%d:%d], v%d" % (100 + 4 * m, 103 + 4 * m, 184 + m))
    a("s_mov_b64 exec, -1")
    a("ds_read_b128 v[84:87], v24")
    a("s_waitcnt lgkmcnt(0)")
    a("buffer_store_dwordx4 v[84:87], v25, s[52:55], s62 offen%s" % ST())
    stamp(a, 1)
    def issue(k):
        for m in range(5):
            if m < 4: a("buffer_load_dwordx4 v[%d:%d], v21, s[48:51], s42 offen offset:%d sc1" % (PS[k] + 4 * m, PS[k] + 4 * m + 3, m * 1024))
            else:
                a("buffer_load_dwordx4 v[%d:%d], v29, s[48:51], s42 offen sc1" % (PS[k] + 4 * m, PS[k] + 4 * m + 3))
    a("v_add_u32 v29, 4096, v21")
    def succ(k):
        stamp(a, 2)
        for m in range(5):
            d = "v[%d:%d]" % (68 + 4 * (m & 1), 71 + 4 * (m & 1))
            a("v_mfma_f32_16x16x32_bf16 %s, v[%d:%d], v[%d:%d], %s" % (d, 100 + 4 * m, 103 + 4 * m, PS[k] + 4 * m, PS[k] + 4 * m + 3, "0" if m < 2 else d))
    spoll(a, "chRp", S, 5, issue, lambda k: list(range(PS[k], PS[k] + 20)), succ, CFG["slpR"], CFG["gap"], adapt=65)
    a("s_nop 7"); a("s_nop 1")
    for r in range(4): a("v_add_f32 v%d, v%d, v%d" % (68 + r, 68 + r, 72 + r))
    a("ds_write_b128 v26, v[68:71]")
    a("s_waitcnt lgkmcnt(0)"); a("s_barrier")
    a("s_cmp_lg_u32 s20, 0"); a("s_cbranch_scc1 chR_next")
    for w in range(4):
        a("ds_read_b128 v[%d:%d], v27 offset:%d" % (68 + 8 * w, 71 + 8 * w, w * 1024))
        a("ds_read_b128 v[%d:%d], v27 offset:%d" % (72 + 8 * w, 75 + 8 * w, w * 1024 + 40 * 16))
    a("s_waitcnt lgkmcnt(0)")
    for st in (16, 8, 4):
        for r in range(st): a("v_add_f32 v%d, v%d, v%d" % (68 + r, 68 + r, 68 + st + r))
    a("v_cvt_pk_bf16_f32 v68, v68, v69"); a("v_cvt_pk_bf16_f32 v69, v70, v71")
    a("v_min_u32 v68, 0xfffffffe, v68"); a("v_min_u32 v69, 0xfffffffe, v69")
    a("s_add_u32 s23, s41, 10240")
    a("s_mov_b32 exec_lo, 0x00ff00ff"); a("s_mov_b32 exec_hi, 0")
    a("buffer_store_dwordx2 v[68:69], v28, s[44:47], s23 offen sc1")
    a("s_mov_b64 exec, -1")
    stamp(a, 3)
    a.put("chR_next")
    a("s_add_u32 s40, s40, 1"); a("s_add_u32 s41, s41, 10240"); a("s_add_u32 s42, s42, 20480"); a("s_add_u32 s61, s61, %d" % (32 * 40960)); a("s_add_u32 s62, s62, %d" % (32 * 10240))
    a("s_cmp_ge_u32 s40, 64"); a("s_cbranch_scc1 chR_end")
    if M.MEGA:
        if HALF:
            a("s_cmp_lg_u32 s40, 4"); a("s_cbranch_scc1 chR_fu1_ok")
            a("s_mov_b32 s22, %d" % F_X)
            fpoll("chR_fu1", 30, "s22")
        a("s_and_b32 s23, s40, 7"); a("s_cmp_lg_u32 s23, 0"); a("s_cbranch_scc1 chR_fu_ok")
        a("s_lshl_b32 s22, s40, 4"); a("s_add_u32 s22, s22, %d" % F_U)
        fpoll("chR_fu", 30, "s22")
    u_loads()
    if CFG["slpRm"] and not (ADAPT and ADM): a("s_sleep %d" % CFG["slpRm"])
    a("s_branch chR_loop")
    a.put("chR_end")
    dbg_out(a, 32, 32)
    if M.MEGA:
        a("s_waitcnt vmcnt(0)")
        spoll(a, "chRz", 1, 5, issue, lambda k: list(range(PS[k], PS[k] + 20)), lambda k: None, 4, 0)
        a("s_barrier")
        a("s_cmp_lg_u32 s20, 0"); a("s_cbranch_scc1 chain_fin")
        a("v_mov_b32 v68, 0"); a("v_mov_b32 v69, 0")
        a("s_add_u32 s23, s41, 10240")
        a("s_mov_b32 exec_lo, 0x00ff00ff"); a("s_mov_b32 exec_hi, 0")
        a("buffer_store_dwordx2 v[68:69], v28, s[44:47], s23 offen sc1")
        a("s_mov_b64 exec, -1")
        a.put("chain_fin"); a("s_branch task_next")
        a.put("chain_end"); a("s_branch mega_exit")
        return K, 512, 256
    a.put("chain_end"); a("s_endpgm")
    return K, 512, 256
```

```python
import os
from gen import *

class Stream:
    BUF = 20
    def __init__(self, a, nmt, acc, nslot=4, slot_bytes=SLOT):
        self.a = a; self.nmt = nmt; self.acc = acc
        self.q = VMQ(a); self.slots = []; self.units = []
        self.nslot = nslot; self.sb = slot_bytes
        self.base = dict(nat=0, pi=0)
    def accr(self, mt, nt): return self.acc + (mt * 4 + nt) * 4
    def add_slot(self, srd, voff, soff, rs, nrows, mp):
        self.slots.append(dict(srd=srd, voff=voff, soff=soff, rs=rs, nrows=nrows, mp=mp)); return len(self.slots) - 1
    def add_unit(self, slots, afr, swap, epi):
        self.units.append(dict(slots=slots, afr=afr, swap=swap, epi=epi))
    def dma(self, i):
        if i >= len(self.slots): return
        a = self.a; sl = self.slots[i]
        base = (i % self.nslot) * self.sb
        for j in range(sl["nrows"] // 32):
            a("s_add_u32 m0, s21, %d" % (base + j * 4096))
            a("s_mov_b32 s23, %d" % (sl["soff"] + j * 32 * sl["rs"]))
            a("buffer_load_dwordx4 v%d, s[%d:%d], s23 offen lds" % (sl["voff"], sl["srd"], sl["srd"] + 3))
            self.q.op()
        self.q.mark(("dma", i))
    def reads(self, si, ks, buf):
        a = self.a; sl = self.slots[si]; mp = sl["mp"]
        want = (si % self.nslot) * self.sb
        if self.base[mp] != want:
            d = want - self.base[mp]
            regs = range(8, 16) if mp == "nat" else range(16, 20)
            for r in regs:
                if d > 0: a("v_add_u32 v%d, %d, v%d" % (r, d, r))
                else: a("v_subrev_u32 v%d, %d, v%d" % (r, -d, r))
            self.base[mp] = want
        for nt in range(4):
            d = self.BUF + buf * 16 + nt * 4
            for half in range(2):
                if mp == "nat":
                    a("ds_read_b64_tr_b16 v[%d:%d], v%d offset:%d" % (d + 2 * half, d + 2 * half + 1, 8 + half * 4 + nt, ks * 4096))
                else:
                    a("ds_read_b64_tr_b16 v[%d:%d], v%d offset:%d" % (d + 2 * half, d + 2 * half + 1, 16 + nt, ks * 4096 + half * 2048))
    def run(self):
        a = self.a
        seq = []
        for u in self.units:
            k = 0
            tot = sum(self.slots[s]["nrows"] // 32 for s in u["slots"])
            for s in u["slots"]:
                for ks in range(self.slots[s]["nrows"] // 32):
                    seq.append((s, ks, u, k, k == tot - 1)); k += 1
        import gen3
        st = (lambda k: gen3.stamp(a, k)) if getattr(self, "dbg", False) else (lambda k: None)
        if getattr(self, "dbg", False): gen3.dbg_init(a)
        for i in range(self.nslot): self.dma(i)
        if getattr(self, "pre", None):
            self.pre(); a("s_waitcnt vmcnt(0)"); a("s_barrier")
        else:
            self.q.wait(("dma", 0)); a("s_barrier")
        st(0)
        self.reads(seq[0][0], seq[0][1], 0)
        for n, (s, ks, u, k, last) in enumerate(seq):
            a("s_waitcnt lgkmcnt(0)")
            if n + 1 < len(seq):
                s2, ks2 = seq[n + 1][0], seq[n + 1][1]
                if s2 != s:
                    st(1)
                    self.q.wait(("dma", s2)); a("s_barrier")
                    st(2)
                    self.dma(s + self.nslot)
                self.reads(s2, ks2, (n + 1) & 1)
            for nt in range(4):
                b = "v[%d:%d]" % (self.BUF + (n & 1) * 16 + nt * 4, self.BUF + (n & 1) * 16 + nt * 4 + 3)
                for mt in range(self.nmt):
                    d = self.accr(mt, nt); dd = "v[%d:%d]" % (d, d + 3)
                    f = reg(u["afr"](k, mt))
                    c = "0" if k == 0 else dd
                    if u["swap"]: a("v_mfma_f32_16x16x32_bf16 %s, %s, %s, %s" % (dd, b, f, c))
                    else: a("v_mfma_f32_16x16x32_bf16 %s, %s, %s, %s" % (dd, f, b, c))
            if last:
                a("s_nop 7"); a("s_nop 1")
                st(1)
                u["epi"]()
                a("s_nop 1")
                st(3)
        if getattr(self, "dbg", False): gen3.dbg_out(a, 5, 0)

def common_setup(a, s_nat=True, s_pi=True):
    lane_setup(a)
    if s_nat: tr_addr_nat(a, 8, 5, 6, 7)
    if s_pi: tr_addr_pi(a, 16, 5, 6, 7)

def tokbase(a, vd, vt):
    a("v_lshrrev_b32 v%d, 2, v3" % vd)
    a("v_and_b32 v%d, 3, v3" % vt)
    a("v_lshl_add_u32 v%d, v%d, 3, v%d" % (vd, vd, vt))
def mtrow(mt): return (mt >> 1) * 32 + (mt & 1) * 4

def pack_pi(a, S, mt, q):
    x = S.accr(mt, 2 * q); y = S.accr(mt, 2 * q + 1)
    a("v_cvt_pk_bf16_f32 v%d, v%d, v%d" % (x, x, x + 1))
    a("v_cvt_pk_bf16_f32 v%d, v%d, v%d" % (x + 1, x + 2, x + 3))
    a("v_cvt_pk_bf16_f32 v%d, v%d, v%d" % (x + 2, y, y + 1))
    a("v_cvt_pk_bf16_f32 v%d, v%d, v%d" % (x + 3, y + 2, y + 3))
    return x

def u_epilogue(a, S, q, vU, srd, u, mstride, cstride16):
    def epi():
        for m in range(S.nmt // 2):
            for nt in range(4):
                x = S.accr(2 * m, nt); y = S.accr(2 * m + 1, nt)
                a("v_cvt_pk_bf16_f32 v%d, v%d, v%d" % (x, x, x + 1))
                a("v_cvt_pk_bf16_f32 v%d, v%d, v%d" % (x + 1, x + 2, x + 3))
                a("v_cvt_pk_bf16_f32 v%d, v%d, v%d" % (x + 2, y, y + 1))
                a("v_cvt_pk_bf16_f32 v%d, v%d, v%d" % (x + 3, y + 2, y + 3))
                a("s_mov_b32 s23, %d" % (m * mstride + (u * 4 + nt) * cstride16))
                a("buffer_store_dwordx4 v[%d:%d], v%d, s[%d:%d], s23 offen%s" % (x, x + 3, vU, srd, srd + 3, ST()))
                q.op()
    return epi

def gen_qku(a, part="all"):
    K = "qku_kernel" if part == "all" else "qku%s_kernel" % part
    kbegin(a, K, 256)
    a("s_load_dwordx4 s[4:7], s[0:1], %d" % KA["Wq"])
    a("s_load_dwordx4 s[8:11], s[0:1], %d" % KA["Wv"])
    a("s_load_dwordx2 s[12:13], s[0:1], %d" % KA["ws"])
    common_setup(a)
    a("s_and_b32 s24, s2, 7"); a("s_lshl_b32 s24, s24, 2"); a("s_bfe_u32 s25, s2, 0x20003"); a("s_add_u32 s24, s24, s25")
    a("s_lshr_b32 s25, s2, 5")
    a("s_waitcnt lgkmcnt(0)")
    a("s_mul_i32 s26, s24, 384")
    WSZ = 640 * 12288
    a("s_sub_u32 s27, %d, s26" % WSZ)
    srd_from_ptr(a, 32, 4, "s27", add="s26"); srd_from_ptr(a, 36, 6, "s27", add="s26"); srd_from_ptr(a, 40, 8, "s27", add="s26")
    a("s_mul_i32 s28, s24, 245760")
    srd_from_ptr(a, 44, 10, 245760, add="s28")
    a("s_lshl_b32 s29, s25, 2"); a("s_add_u32 s29, s29, s20")
    a("s_mul_i32 s30, s29, %d" % (64 * 1280)); a("s_add_u32 s30, s30, %d" % WS_H)
    srd_from_ptr(a, 48, 12, 64 * 1280, add="s30")
    a("s_mul_i32 s30, s29, %d" % (64 * 12288)); a("s_add_u32 s30, s30, s26")
    a("s_add_u32 s31, s30, %d" % WS_Q); srd_from_ptr(a, 52, 12, 64 * 12288, add="s31")
    a("s_add_u32 s31, s30, %d" % WS_K); srd_from_ptr(a, 56, 12, 64 * 12288, add="s31")
    a("s_lshl_b32 s30, s29, 6"); a("s_add_u32 s30, s30, s24"); a("s_mul_i32 s30, s30, 40960"); a("s_add_u32 s30, s30, %d" % WS_U)
    srd_from_ptr(a, 60, 12, 33 * 40960, add="s30")
    dma_voff(a, 5, 12288, 244, 245, 246)
    dma_voff(a, 6, 1280, 244, 245, 246)
    tokbase(a, 244, 245)
    a("v_lshlrev_b32 v245, 4, v2")
    a("v_mul_u32_u24 v247, 1280, v244"); a("v_add_u32 v247, v247, v245")
    a("v_mul_u32_u24 v248, 12288, v244"); a("v_add_u32 v248, v248, v245")
    a("v_lshl_add_u32 v249, v3, 6, v245")
    S = Stream(a, 4, 52)
    S.dbg = True
    def hfr(k, mt):
        idx = mt * 20 + k
        return ("a", idx * 4) if idx < 64 else ("v", 116 + (idx - 64) * 4)
    for mt in range(4):
        for k in range(20):
            a("s_mov_b32 s23, %d" % (mtrow(mt) * 1280 + k * 64))
            a("buffer_load_dwordx4 %s, v247, s[48:51], s23 offen" % reg(hfr(k, mt))); S.q.op()
    def vfr(k, mt):
        u = k // 2
        if u < 2: return ("v", 180 + ((u * 4 + mt) * 2 + (k & 1)) * 4)
        return ("v", 116 + (mt * 2 + (k & 1)) * 4)
    mats = dict(all=(("k", 36), ("q", 32), ("v", 40)), T1=(("k", 36), ("q", 32)), T2=(("v", 40),))[part]
    for mat, srd in mats:
        for u in range(3):
            sl = [S.add_slot(srd, 5, u * 128 + hh * 320 * 12288, 12288, 320, "nat") for hh in range(2)]
            if mat != "v":
                def epi(u=u, srdo=(52 if mat == "q" else 56), mat=mat):
                    for mt in range(4):
                        for q in range(2):
                            x = pack_pi(a, S, mt, q)
                            a("s_mov_b32 s23, %d" % (mtrow(mt) * 12288 + u * 128 + q * 64))
                            a("buffer_store_dwordx4 v[%d:%d], v248, s[%d:%d], s23 offen%s" % (x, x + 3, srdo, srdo + 3, ST())); S.q.op()
                    if M.MEGA and mat == "k" and u == 2: M.signal_mid(a)
            else:
                def epi(u=u):
                    for mt in range(4):
                        for q in range(2):
                            x = S.accr(mt, 2 * q); y = S.accr(mt, 2 * q + 1); d = vfr(u * 2 + q, mt)[1]
                            a("v_cvt_pk_bf16_f32 v%d, v%d, v%d" % (d, x, x + 1))
                            a("v_cvt_pk_bf16_f32 v%d, v%d, v%d" % (d + 1, x + 2, x + 3))
                            a("v_cvt_pk_bf16_f32 v%d, v%d, v%d" % (d + 2, y, y + 1))
                            a("v_cvt_pk_bf16_f32 v%d, v%d, v%d" % (d + 3, y + 2, y + 3))
            S.add_unit(sl, hfr, True, epi)
    for u in range(10 if part != "T1" else 0):
        sl = [S.add_slot(44, 6, u * 128, 1280, 192, "pi")]
        S.add_unit(sl, vfr, False, u_epilogue(a, S, S.q, 249, 60, u, 32 * 40960, 1024))
    S.run()
    kend(a, K)
    return K, 512, 256

def gen_vo_ln(a, pv=False):
    K = "voln_kernel" if not pv else "pv_kernel"
    if M.MEGA: a.put("vo_kernel_entry")
    else:
        kernel_begin(a, K)
        a("s_cmp_ge_u32 s2, %d" % (256 if pv else 640)); a("s_cbranch_scc1 voln_end")
        a("s_cmp_ge_u32 s2, 128"); a("s_cbranch_scc1 voln_ln")
    a("s_load_dwordx4 s[8:11], s[0:1], %d" % KA["Wv"])
    a("s_load_dwordx2 s[12:13], s[0:1], %d" % KA["ws"])
    common_setup(a)
    a("s_and_b32 s24, s2, 31"); a("s_bfe_u32 s25, s2, 0x10005"); a("s_lshr_b32 s26, s2, 6")
    a("s_waitcnt lgkmcnt(0)")
    a("s_lshl_b32 s27, s25, 2"); a("s_add_u32 s27, s27, s20"); a("s_mul_i32 s27, s27, 80"); a("s_min_u32 s27, s27, 544")
    a("s_mul_i32 s28, s27, 12288"); a("s_mul_i32 s29, s24, 384"); a("s_add_u32 s28, s28, s29")
    a("s_sub_u32 s29, %d, s28" % (640 * 12288))
    srd_from_ptr(a, 32, 8, "s29", add="s28")
    a("s_mul_i32 s28, s24, 245760"); a("s_mul_i32 s29, s26, 640"); a("s_add_u32 s28, s28, s29")
    a("s_sub_u32 s29, %d, s28" % (32 * 245760))
    srd_from_ptr(a, 44, 10, "s29", add="s28")
    a("s_mul_i32 s28, s26, %d" % (40 * 32 * 10240)); a("s_lshr_b32 s29, s24, 1"); a("s_mul_i32 s29, s29, 20480"); a("s_add_u32 s28, s28, s29")
    a("s_and_b32 s29, s24, 1"); a("s_lshl_b32 s29, s29, 7"); a("s_add_u32 s28, s28, s29")
    a("s_lshl_b32 s29, s27, 5"); a("s_add_u32 s28, s28, s29"); a("s_add_u32 s28, s28, %d" % WS_VO)
    srd_from_ptr(a, 60, 12, 40 * 32 * 10240, add="s28")
    dma_voff(a, 6, 1280, 244, 245, 246)
    tokbase(a, 244, 245)
    a("v_lshlrev_b32 v245, 4, v2")
    a("v_mul_u32_u24 v247, 12288, v244"); a("v_add_u32 v247, v247, v245")
    a("v_lshrrev_b32 v249, 3, v3"); a("v_mul_u32_u24 v249, 327680, v249")
    a("v_and_b32 v246, 7, v3"); a("v_lshlrev_b32 v246, 4, v246"); a("v_add_u32 v249, v249, v246"); a("v_lshl_add_u32 v249, v2, 8, v249")
    S = Stream(a, 6, 52)
    def hfr(k, mt): return ("a", (mt * 6 + k) * 4)
    for mt in range(6):
        for k in range(6):
            a("s_mov_b32 s23, %d" % (mtrow(mt) * 12288 + k * 64))
            a("buffer_load_dwordx4 %s, v247, s[32:35], s23 offen" % reg(hfr(k, mt))); S.q.op()
    for u in range(5):
        sl = [S.add_slot(44, 6, u * 128, 1280, 192, "nat")]
        S.add_unit(sl, hfr, False, u_epilogue(a, S, S.q, 249, 60, u, 1024, 2 * 327680))
    S.run()
    if M.MEGA:
        a("s_branch task_done"); return
    a("s_endpgm")
    a.put("voln_ln")
    if pv:
        a("s_sub_u32 s2, s2, 128")
        gen_prep(a, emb=True)
        a.put("voln_end"); a("s_endpgm")
        return K, 400, 256
    a("s_load_dwordx2 s[12:13], s[0:1], %d" % KA["ws"])
    a("s_load_dwordx2 s[6:7], s[0:1], %d" % KA["x"])
    a("s_waitcnt lgkmcnt(0)")
    srd_from_ptr(a, 32, 6, 2048 * 1280)
    srd_from_ptr(a, 36, 12, 0x2000000)
    a("s_sub_u32 s24, s2, 128")
    gen_ln_body(a, "ln1", False, 32, 36, WS_H, 0, 1, 24)
    a.put("voln_end"); a("s_endpgm")
    return K, 400, 256

def gen_ln2(a):
    K = "ln2_kernel"
    kernel_begin(a, K)
    a("s_cmp_ge_u32 s2, 512"); a("s_cbranch_scc1 ln2_end")
    a("s_load_dwordx2 s[12:13], s[0:1], %d" % KA["ws"])
    a("s_waitcnt lgkmcnt(0)")
    srd_from_ptr(a, 32, 12, 2048 * 2560, add=hex(WS_X1))
    srd_from_ptr(a, 36, 12, 0x2000000)
    a("s_mov_b32 s24, s2")
    gen_ln_body(a, "ln2", True, 32, 36, WS_H2, 3, 4, 24)
    a.put("ln2_end"); a("s_endpgm")
    return K, 64, 64

def gen_ffn1(a, nmt=4):
    K = "ffn1_kernel"
    kbegin(a, K, 192)
    a("s_load_dwordx4 s[4:7], s[0:1], %d" % KA["w1"])
    a("s_load_dwordx2 s[12:13], s[0:1], %d" % KA["ws"])
    common_setup(a, s_pi=False)
    if nmt == 4: a("s_and_b32 s24, s2, 7"); a("s_lshr_b32 s25, s2, 3")
    else: a("s_lshr_b32 s24, s2, 5"); a("s_and_b32 s25, s2, 31")
    a("s_waitcnt lgkmcnt(0)")
    a("s_lshl_b32 s26, s25, 7"); a("s_sub_u32 s27, %d, s26" % (640 * 3072))
    srd_from_ptr(a, 32, 4, "s27", add="s26")
    srd_from_ptr(a, 36, 6, 128, add="s26")
    a("s_lshl_b32 s29, s24, 2"); a("s_add_u32 s29, s29, s20")
    FLN = M.MEGA and nmt == 1 and os.environ.get('FLN', '1') == '1'
    if FLN:
        a("s_lshr_b32 s28, s29, 1"); a("s_lshl_b32 s28, s28, 5"); a("s_and_b32 s30, s29, 1"); a("s_lshl_b32 s30, s30, 2"); a("s_add_u32 s28, s28, s30")
        a("s_mul_i32 s30, s28, 2560"); a("s_add_u32 s30, s30, %d" % WS_X1)
        srd_from_ptr(a, 48, 12, 28 * 2560, add="s30")
        srd_from_ptr(a, 56, 12, 5120, add=hex(WS_MOD + 3 * 2560))
    else:
        a("s_mul_i32 s30, s29, %d" % (16 * nmt * 1280)); a("s_add_u32 s30, s30, %d" % WS_H2)
        srd_from_ptr(a, 48, 12, 16 * nmt * 1280, add="s30")
    a("s_mul_i32 s30, s29, %d" % (16 * nmt * 3072)); a("s_lshl_b32 s31, s25, 11"); a("s_add_u32 s30, s30, s31"); a("s_add_u32 s30, s30, %d" % WS_F)
    srd_from_ptr(a, 52, 12, (nmt - 1) * 48 * 1024 + 2048, add="s30")
    a("v_lshlrev_b32 v250, 4, v1")
    dma_voff(a, 5, 3072, 244, 245, 246)
    tokbase(a, 244, 245)
    a("v_lshlrev_b32 v245, 4, v2")
    a("v_mul_u32_u24 v247, 1280, v244"); a("v_add_u32 v247, v247, v245")
    a("v_mul_u32_u24 v248, 3072, v244"); a("v_add_u32 v248, v248, v245")
    S = Stream(a, nmt, 52)
    a("v_lshlrev_b32 v246, 3, v2")
    for nt in range(4):
        a("buffer_load_dwordx2 v[%d:%d], v246, s[36:39], 0 offen offset:%d" % (180 + 2 * nt, 181 + 2 * nt, nt * 32)); S.q.op()
    def hfr(k, mt):
        if FLN: return ("v", 100 + 4 * k)
        idx = mt * 20 + k
        return ("a", idx * 4) if idx < 64 else ("v", 116 + (idx - 64) * 4)
    def loadA_ln():
        MB = 81920
        a("v_lshlrev_b32 v206, 4, v0"); a("v_and_b32 v207, 63, v0"); a("v_lshlrev_b32 v207, 4, v207"); a("v_add_u32 v207, 4096, v207")
        a("buffer_load_dwordx4 v[208:211], v206, s[56:59], 0 offen"); a("buffer_load_dwordx4 v[212:215], v207, s[56:59], 0 offen")
        a("v_mov_b32 v216, 0"); a("v_cmp_le_u32 vcc, 2560, v206"); a("s_nop 1"); a("v_cndmask_b32 v216, v216, 1.0, vcc")
        a("v_mul_u32_u24 v203, 2560, v244"); a("v_lshl_add_u32 v203, v2, 5, v203")
        a("v_lshlrev_b32 v204, 5, v2"); a("v_add_u32 v204, %d, v204" % MB)
        a("v_add_u32 v206, %d, v206" % MB); a("v_add_u32 v207, %d, v207" % MB)
        a("s_waitcnt vmcnt(0)")
        for r in range(4): a("v_add_f32 v%d, v%d, v216" % (208 + r, 208 + r)); a("v_add_f32 v%d, 1.0, v%d" % (212 + r, 212 + r))
        a("ds_write_b128 v206, v[208:211]"); a("ds_write_b128 v207, v[212:215]")
        a("s_waitcnt lgkmcnt(0)")
        M.tpoll40(a, "tf1", 92, 200)
        for k in range(20):
            for hb in range(2):
                a("buffer_load_dwordx4 v[%d:%d], v203, s[48:51], 0 offen offset:%d" % (20 + 8 * k + 4 * hb, 23 + 8 * k + 4 * hb, k * 128 + hb * 16))
        S0, Q0 = 206, 210
        for k in range(20):
            if k % 5 == 0: a("s_waitcnt vmcnt(%d)" % (30 - 2 * k))
            for p in range(4):
                x = "v[%d:%d]" % (20 + 8 * k + 2 * p, 21 + 8 * k + 2 * p)
                sa = "v[%d:%d]" % (S0 + 2 * (p & 1), S0 + 1 + 2 * (p & 1)); qa = "v[%d:%d]" % (Q0 + 2 * (p & 1), Q0 + 1 + 2 * (p & 1))
                if k == 0 and p < 2: a("v_pk_add_f32 %s, %s, 0" % (sa, x)); a("v_pk_mul_f32 %s, %s, %s" % (qa, x, x))
                else: a("v_pk_add_f32 %s, %s, %s" % (sa, sa, x)); a("v_pk_fma_f32 %s, %s, %s, %s" % (qa, x, x, qa))
        MD = 220
        def rdm(k):
            b = 214 if (k & 1) else 230
            return b
        a("v_pk_add_f32 v[206:207], v[206:207], v[208:209]"); a("v_pk_add_f32 v[210:211], v[210:211], v[212:213]")
        a("v_add_f32 v206, v206, v207"); a("v_add_f32 v210, v210, v211")
        for sw in ("v_permlane16_swap_b32", "v_permlane32_swap_b32"):
            a("v_mov_b32 v207, v206"); a("v_mov_b32 v211, v210"); a("s_nop 1")
            a("%s v206, v207" % sw); a("%s v210, v211" % sw); a("s_nop 1")
            a("v_add_f32 v206, v206, v207"); a("v_add_f32 v210, v210, v211")
        a("v_mul_f32 v206, 0x3acccccd, v206"); a("v_mul_f32 v210, 0x3acccccd, v210")
        a("v_fma_f32 v210, -v206, v206, v210"); a("v_max_f32 v210, 0, v210"); a("v_add_f32 v210, 0x3727c5ac, v210")
        a("v_rsq_f32 v208, v210"); a("s_nop 0")
        a("v_mul_f32 v210, v206, v208"); a("v_sub_f32 v210, 0, v210"); a("v_mov_b32 v209, v208"); a("v_mov_b32 v211, v210")
        sets = [188, 220]
        def mreg(k, which, hb):
            n = which * 2 + hb
            if k & 1: return 220 + 4 * n
            return (188, 192, 236, 240)[n]
        def rd(k):
            for which in range(2):
                for hb in range(2):
                    r = mreg(k, which, hb)
                    a("ds_read_b128 v[%d:%d], v204 offset:%d" % (r, r + 3, which * 2560 + k * 128 + hb * 16))
        rd(19)
        for k in range(19, -1, -1):
            if k > 0: rd(k - 1)
            for p in range(4):
                x = "v[%d:%d]" % (20 + 8 * k + 2 * p, 21 + 8 * k + 2 * p)
                a("v_pk_fma_f32 %s, %s, v[208:209], v[210:211]" % (x, x))
            a("s_waitcnt lgkmcnt(%d)" % (4 if k > 0 else 0))
            for p in range(4):
                x = "v[%d:%d]" % (20 + 8 * k + 2 * p, 21 + 8 * k + 2 * p)
                sb = mreg(k, 0, p >> 1) + 2 * (p & 1); cb = mreg(k, 1, p >> 1) + 2 * (p & 1)
                a("v_pk_fma_f32 v[%d:%d], %s, v[%d:%d], v[%d:%d]" % (212 + 2 * p, 213 + 2 * p, x, cb, cb + 1, sb, sb + 1))
            for p in range(4): a("v_cvt_pk_bf16_f32 v%d, v%d, v%d" % (100 + 4 * k + p, 212 + 2 * p, 213 + 2 * p))
    def loadA():
        if FLN: return loadA_ln()
        if M.tpoll: M.tpoll(a, "tf1", 92, 2, 2, 200)
        for mt in range(nmt):
            for k in range(20):
                a("s_mov_b32 s23, %d" % ((mt * 20 + k) * 1024))
                a("buffer_load_dwordx4 %s, v250, s[48:51], s23 offen" % reg(hfr(k, mt))); S.q.op()
    if M.tpoll: S.pre = loadA
    else: loadA()
    sl = [S.add_slot(32, 5, hh * 320 * 3072, 3072, 320, "nat") for hh in range(2)]
    def epi():
        for nt in range(4):
            for j in range(2):
                a("v_lshlrev_b32 v%d, 16, v%d" % (190 + nt * 4 + 2 * j, 180 + 2 * nt + j))
                a("v_and_b32 v%d, 0xffff0000, v%d" % (190 + nt * 4 + 2 * j + 1, 180 + 2 * nt + j))
        for mt in range(nmt):
            for nt in range(4):
                x = S.accr(mt, nt)
                for r in range(4):
                    a("v_add_f32 v%d, v%d, v%d" % (x + r, x + r, 190 + nt * 4 + r))
                    a("v_cvt_pk_bf16_f32 v%d, v%d, v%d" % (x + r, x + r, x + r))
                    a("v_lshlrev_b32 v%d, 16, v%d" % (x + r, x + r))
                    a("v_max_f32 v%d, 0, v%d" % (x + r, x + r))
                    a("v_mul_f32 v%d, v%d, v%d" % (x + r, x + r, x + r))
            for q in range(2):
                x = pack_pi(a, S, mt, q)
                a("s_mov_b32 s23, %d" % ((mt * 48 + q) * 1024))
                a("buffer_store_dwordx4 v[%d:%d], v250, s[52:55], s23 offen%s" % (x, x + 3, ST())); S.q.op()
    S.add_unit(sl, hfr, True, epi)
    S.run()
    kend(a, K)
    return K, 512, 256

def gen_ffn2(a, nmt=2):
    K = "ffn2_kernel"
    kbegin(a, K, 160)
    a("s_load_dwordx4 s[4:7], s[0:1], %d" % KA["w2"])
    a("s_load_dwordx4 s[8:11], s[0:1], %d" % KA["out"])
    a("s_load_dwordx2 s[12:13], s[0:1], %d" % KA["ws"])
    common_setup(a, s_nat=False)
    if nmt == 2: a("s_and_b32 s24, s2, 15"); a("s_lshr_b32 s25, s2, 4")
    else: a("s_lshr_b32 s24, s2, 4"); a("s_and_b32 s25, s2, 15")
    a("s_waitcnt lgkmcnt(0)")
    a("s_lshl_b32 s26, s25, 7"); a("s_sub_u32 s27, %d, s26" % (1536 * 1280))
    srd_from_ptr(a, 32, 4, "s27", add="s26")
    srd_from_ptr(a, 36, 6, 128, add="s26")
    a("s_lshl_b32 s29, s24, 2"); a("s_add_u32 s29, s29, s20")
    a("s_mul_i32 s30, s29, %d" % (16 * nmt * 3072)); a("s_add_u32 s30, s30, %d" % WS_F)
    srd_from_ptr(a, 48, 12, 16 * nmt * 3072, add="s30")
    if nmt == 2: a("s_lshl_b32 s28, s29, 5"); NR = 32
    else:
        a("s_lshr_b32 s28, s29, 1"); a("s_lshl_b32 s28, s28, 5"); a("s_and_b32 s30, s29, 1"); a("s_lshl_b32 s30, s30, 2"); a("s_add_u32 s28, s28, s30"); NR = 28
    a("s_mul_i32 s30, s28, 2560"); a("s_lshl_b32 s31, s26, 1"); a("s_add_u32 s30, s30, s31"); a("s_add_u32 s30, s30, %d" % WS_X1)
    srd_from_ptr(a, 52, 12, NR * 2560, add="s30")
    a("s_mul_i32 s30, s28, 1280"); a("s_add_u32 s30, s30, s26")
    srd_from_ptr(a, 56, 8, NR * 1280, add="s30")
    a("s_add_u32 s30, s31, %d" % (WS_MOD + 5 * 2560))
    srd_from_ptr(a, 60, 12, 256, add="s30")
    dma_voff(a, 6, 1280, 244, 245, 246)
    tokbase(a, 244, 245)
    a("v_lshlrev_b32 v245, 4, v2")
    a("v_mul_u32_u24 v247, 3072, v244"); a("v_add_u32 v247, v247, v245")
    a("v_mul_u32_u24 v248, 2560, v244"); a("v_add_u32 v248, v248, v245")
    a("v_lshlrev_b32 v246, 3, v2")
    a("v_mul_u32_u24 v249, 1280, v244"); a("v_add_u32 v249, v249, v246")
    a("v_lshlrev_b32 v250, 4, v1")
    S = Stream(a, nmt, 52)
    for nt in range(4):
        a("buffer_load_dwordx2 v[%d:%d], v246, s[36:39], 0 offen offset:%d" % (84 + 2 * nt, 85 + 2 * nt, nt * 32)); S.q.op()
        a("buffer_load_dwordx4 v[%d:%d], v245, s[60:63], 0 offen offset:%d" % (92 + 4 * nt, 95 + 4 * nt, nt * 64)); S.q.op()
    def hfr(k, mt):
        idx = mt * 48 + k
        return ("a", idx * 4) if idx < 64 else ("v", 116 + (idx - 64) * 4)
    def loadA():
        if M.tpoll: M.tpoll(a, "tf2", 92, 24, 2, 200)
        for mt in range(nmt):
            for k in range(48):
                a("s_mov_b32 s23, %d" % ((mt * 48 + k) * 1024))
                a("buffer_load_dwordx4 %s, v250, s[48:51], s23 offen" % reg(hfr(k, mt))); S.q.op()
    if M.tpoll: S.pre = loadA
    else: loadA()
    sl = [S.add_slot(32, 6, hh * 256 * 1280, 1280, 256, "pi") for hh in range(6)]
    def epi():
        for mt in range(nmt):
            for nt in range(4):
                a("s_mov_b32 s23, %d" % (mtrow(mt) * 2560 + nt * 64))
                a("buffer_load_dwordx4 v[%d:%d], v248, s[52:55], s23 offen" % (116 + (mt * 4 + nt) * 4, 119 + (mt * 4 + nt) * 4)); S.q.op()
        for nt in range(4):
            for j in range(2):
                a("v_lshlrev_b32 v%d, 16, v%d" % (150 + nt * 4 + 2 * j, 84 + 2 * nt + j))
                a("v_and_b32 v%d, 0xffff0000, v%d" % (150 + nt * 4 + 2 * j + 1, 84 + 2 * nt + j))
        a("s_waitcnt vmcnt(0)")
        for mt in range(nmt):
            for nt in range(4):
                x = S.accr(mt, nt)
                for r in range(4):
                    a("v_add_f32 v%d, v%d, v%d" % (x + r, x + r, 150 + nt * 4 + r))
                    a("v_fma_f32 v%d, v%d, v%d, v%d" % (x + r, x + r, 92 + nt * 4 + r, 116 + (mt * 4 + nt) * 4 + r))
                a("v_cvt_pk_bf16_f32 v%d, v%d, v%d" % (x, x, x + 1))
                a("v_cvt_pk_bf16_f32 v%d, v%d, v%d" % (x + 1, x + 2, x + 3))
                a("s_mov_b32 s23, %d" % (mtrow(mt) * 1280 + nt * 32))
                a("buffer_store_dwordx2 v[%d:%d], v249, s[56:59], s23 offen" % (x, x + 1))
    S.add_unit(sl, hfr, True, epi)
    S.run()
    kend(a, K)
    return K, 512, 256
```

```python
import os
from gen import *
from gen2 import *
SPIN = 400000

def poll_check(a, regs, vt, lab_poll, lab_fail, s_cnt):
    a("v_max3_u32 v%d, v%d, v%d, v%d" % (vt, regs[0], regs[1], regs[2]))
    r = regs[3:]
    while len(r) >= 2:
        a("v_max3_u32 v%d, v%d, v%d, v%d" % (vt, vt, r[0], r[1])); r = r[2:]
    if r: a("v_max_u32 v%d, v%d, v%d" % (vt, vt, r[0]))
    a("v_cmp_eq_u32 vcc, -1, v%d" % vt)
    a("s_add_u32 s%d, s%d, 1" % (s_cnt, s_cnt))
    a("s_cmp_gt_u32 s%d, %d" % (s_cnt, SPIN))
    a("s_cbranch_scc1 %s" % lab_fail)
    a("s_cbranch_vccnz %s" % lab_poll)

def gather_mem(a, pfx, G, srd, s_off, vG, vLw):
    a("s_mov_b32 s60, 0")
    a.put(pfx + "_pm")
    for n in range(3):
        a("buffer_load_dwordx4 v[%d:%d], v%d, s[%d:%d], s%d offen sc1" % (G + 4 * n, G + 4 * n + 3, vG + n, srd, srd + 3, s_off))
    a("s_waitcnt vmcnt(0)")
    poll_check(a, list(range(G, G + 12)), 15, pfx + "_pm", "chain_end", 60)
    for n in range(3):
        a("ds_write_b128 v%d, v[%d:%d]" % (vG + n, G + 4 * n, G + 4 * n + 3))
    a("s_waitcnt lgkmcnt(0)")
    a("s_barrier")

DBG = False
def stamp(a, k):
    if not DBG: return
    a("s_memtime s[66:67]"); a("s_waitcnt lgkmcnt(0)")
    a("s_sub_u32 s65, s66, s68"); a("s_add_u32 s%d, s%d, s65" % (70 + k, 70 + k)); a("s_mov_b32 s68, s66")
def dbg_init(a):
    if not DBG: return
    for k in range(8): a("s_mov_b32 s%d, 0" % (70 + k))
    a("s_memtime s[66:67]"); a("s_waitcnt lgkmcnt(0)"); a("s_mov_b32 s68, s66")
def dbg_out(a, wg, base):
    if not DBG: return
    lab = a.label("dbgo")
    a("s_cmp_lg_u32 s2, %d" % wg); a("s_cbranch_scc1 %s" % lab); a("s_cmp_lg_u32 s20, 0"); a("s_cbranch_scc1 %s" % lab)
    a("s_load_dwordx2 s[80:81], s[0:1], %d" % KA["dbg"]); a("s_waitcnt lgkmcnt(0)"); a("s_mov_b32 s82, 256"); a("s_mov_b32 s83, 0x00020000")
    a("v_mov_b32 v16, 0")
    for k in range(8):
        a("v_mov_b32 v17, s%d" % (70 + k)); a("buffer_store_dword v17, v16, s[80:83], 0 offen offset:%d" % (base + 4 * k))
    a.put(lab)

def gen_chain(a):
    K = "chain_kernel"
    kernel_begin(a, K)
    a("s_cmp_ge_u32 s2, 112"); a("s_cbranch_scc1 chain_end")
    a("s_load_dwordx4 s[4:7], s[0:1], %d" % KA["Wq"])
    a("s_load_dwordx2 s[12:13], s[0:1], %d" % KA["ws"])
    lane_setup(a)
    a("s_waitcnt lgkmcnt(0)")
    srd_from_ptr(a, 44, 12, 65 * 10240, add=hex(WS_MEM))
    srd_from_ptr(a, 48, 12, 64 * 20480, add=hex(WS_P))
    a("s_mul_i32 s22, s20, 2560")
    a("v_lshlrev_b32 v5, 4, v1"); a("v_add_u32 v5, s22, v5"); a("v_add_u32 v6, 1024, v5")
    a("v_and_b32 v7, 31, v1"); a("v_lshlrev_b32 v7, 4, v7"); a("v_add_u32 v7, s22, v7"); a("v_add_u32 v7, 2048, v7")
    a("v_and_b32 v9, 7, v3"); a("v_lshlrev_b32 v8, 7, v2"); a("v_lshl_add_u32 v8, v9, 4, v8")
    a("s_mov_b32 s40, 0")
    a("s_mov_b32 s41, 0")
    a("s_mov_b32 s42, 0")
    a("s_cmp_ge_u32 s2, 32"); a("s_cbranch_scc1 chain_R")
    h = 2
    a("s_mul_i32 s26, s2, 384"); a("s_sub_u32 s27, %d, s26" % (640 * 12288))
    srd_from_ptr(a, 32, 4, "s27", add="s26"); srd_from_ptr(a, 36, 6, "s27", add="s26")
    a("s_add_u32 s28, s26, %d" % WS_K); srd_from_ptr(a, 52, 12, 2048 * 12288, add="s28")
    a("s_mul_i32 s28, s2, 3072"); a("s_add_u32 s28, s28, %d" % WS_KM); srd_from_ptr(a, 56, 12, 64 * 32 * 3072, add="s28")
    dma_voff(a, 10, 12288, 16, 17, 18)
    a("v_bfe_u32 v16, v1, 2, 2"); a("v_lshl_add_u32 v17, v2, 3, v16"); a("v_lshlrev_b32 v17, 7, v17")
    a("v_and_b32 v18, 3, v1"); a("v_lshl_add_u32 v17, v18, 3, v17"); a("v_lshrrev_b32 v16, 1, v16"); a("v_and_b32 v18, 1, v2")
    for half in range(2):
        a("v_xor_b32 v19, %d, v18" % half); a("v_lshl_or_b32 v19, v19, 1, v16"); a("v_xor_b32 v19, v4, v19")
        a("v_lshl_add_u32 v%d, v19, 5, v17" % (11 + half))
        if half: a("v_add_u32 v12, 512, v12")
    a("v_add_u32 v14, %d, v11" % SLOT); a("v_add_u32 v15, %d, v12" % SLOT)
    a("s_mul_i32 s22, s20, 20480"); a("s_add_u32 s22, s22, 81920"); a("v_lshlrev_b32 v13, 4, v1"); a("v_add_u32 v13, s22, v13")
    def wfr(t, ks):
        idx = t * 20 + ks
        if idx < 64: return ("a", idx * 4)
        if idx < 100: return ("v", 112 + (idx - 64) * 4)
        return None
    slots = [(32 if m == 0 else 36, u, hh) for m in range(2) for u in range(3) for hh in range(2)]
    def dma(i):
        if i >= len(slots): return
        srd, u, hh = slots[i]
        for j in range(10):
            a("s_add_u32 m0, s21, %d" % ((i & 1) * SLOT + j * 4096))
            a("s_mov_b32 s23, %d" % (u * 128 + (hh * 320 + j * 32) * 12288))
            a("buffer_load_dwordx4 v10, s[%d:%d], s23 offen lds" % (srd, srd + 3))
    dma(0); dma(1)
    for i in range(12):
        a("s_waitcnt vmcnt(%d)" % (10 if i < 11 else 0)); a("s_barrier")
        t = i // 2; hh = i & 1
        for k in range(10):
            ks = hh * 10 + k; f = wfr(t, ks)
            off = k * 4096
            r0, r1 = (14, 15) if (i & 1) else (11, 12)
            d = 40 + k * 4 if (f is None or f[0] == "a") else f[1]
            a("ds_read_b64_tr_b16 v[%d:%d], v%d offset:%d" % (d, d + 1, r0, off)); a("ds_read_b64_tr_b16 v[%d:%d], v%d offset:%d" % (d + 2, d + 3, r1, off))
        a("s_waitcnt lgkmcnt(0)")
        for k in range(10):
            ks = hh * 10 + k; f = wfr(t, ks); d = 40 + k * 4
            if f is None: a("ds_write_b128 v13, v[%d:%d] offset:%d" % (d, d + 3, ks * 1024))
            elif f[0] == "a":
                for r in range(4): a("v_accvgpr_write_b32 a%d, v%d" % (f[1] + r, d + r))
        a("s_waitcnt lgkmcnt(0)"); a("s_barrier")
        dma(i + 2)
    a("v_mul_u32_u24 v9, 12288, v3"); a("v_lshl_add_u32 v9, v2, 4, v9")
    a("s_lshr_b32 s22, s20, 1"); a("s_lshl_b32 s22, s22, 6"); a("s_and_b32 s23, s20, 1"); a("s_lshl_b32 s23, s23, 3"); a("s_add_u32 s22, s22, s23")
    a("v_add_u32 v9, s22, v9")
    a("v_mul_u32_u24 v10, 384, v3"); a("v_lshl_add_u32 v10, v2, 4, v10"); a("v_add_u32 v10, s22, v10")
    a("v_lshrrev_b32 v11, 1, v2"); a("v_lshlrev_b32 v11, 7, v11"); a("v_lshl_add_u32 v11, v3, 4, v11"); a("v_and_b32 v12, 1, v2"); a("v_lshl_add_u32 v11, v12, 3, v11")
    a("v_lshlrev_b32 v14, 4, v1"); a("v_add_u32 v14, 16384, v14"); a("s_mul_i32 s22, s20, 3072"); a("v_add_u32 v12, s22, v14")
    a("s_mul_i32 s43, s2, 640")
    a("s_mov_b32 s61, 0")
    a("s_mov_b32 s62, 0")
    def kseg_loads():
        for tt in range(2):
            for u in range(3):
                a("s_add_u32 s23, s61, %d" % (tt * 16 * 12288 + u * 128))
                a("buffer_load_dwordx2 v[%d:%d], v9, s[52:55], s23 offen" % (40 + (tt * 3 + u) * 2, 41 + (tt * 3 + u) * 2))
    kseg_loads()
    dbg_init(a)
    a.put("chA_loop")
    gather_mem(a, "chA", 52, 44, 41, 5, None)
    stamp(a, 0)
    ND = 4
    def rd(ks):
        a("ds_read_b128 v[%d:%d], v8 offset:%d" % (64 + (ks % ND) * 4, 67 + (ks % ND) * 4, ks * 512))
        a("ds_read_b128 v[%d:%d], v13 offset:%d" % (80 + (ks % ND) * 4, 83 + (ks % ND) * 4, ks * 1024))
    for ks in range(ND - 1): rd(ks)
    for ks in range(20):
        if ks + ND - 1 < 20: rd(ks + ND - 1)
        rem = min(19, ks + ND - 1) - ks
        a("s_waitcnt lgkmcnt(%d)" % (2 * rem))
        mb = "v[%d:%d]" % (64 + (ks % ND) * 4, 67 + (ks % ND) * 4)
        for t in range(6):
            f = wfr(t, ks) or ("v", 80 + (ks % ND) * 4)
            d = "v[%d:%d]" % (16 + 4 * t, 19 + 4 * t)
            a("v_mfma_f32_16x16x32_bf16 %s, %s, %s, %s" % (d, reg(f), mb, "0" if ks == 0 else d))
    a("s_nop 7"); a("s_nop 1")
    stamp(a, 1)
    for t in range(6):
        a("v_cvt_pk_bf16_f32 v%d, v%d, v%d" % (16 + 4 * t, 16 + 4 * t, 17 + 4 * t))
        a("v_cvt_pk_bf16_f32 v%d, v%d, v%d" % (17 + 4 * t, 18 + 4 * t, 19 + 4 * t))
    a("s_nop 1")
    for tile in range(3):
        d = "v[%d:%d]" % (96 + 4 * tile, 99 + 4 * tile)
        for u in range(3):
            A = (16 + 4 * (3 + u)) if tile == 0 else 40 + ((tile - 1) * 3 + u) * 2
            a("v_mfma_f32_16x16x16_bf16 %s, v[%d:%d], v[%d:%d], %s" % (d, A, A + 1, 16 + 4 * u, 17 + 4 * u, "0" if u == 0 else d))
    a("s_nop 7"); a("s_nop 3")
    for tile in range(3):
        a("ds_write_b128 v12, v[%d:%d] offset:%d" % (96 + 4 * tile, 99 + 4 * tile, tile * 1024))
    a("s_mov_b32 exec_lo, 0x00ff00ff"); a("s_mov_b32 exec_hi, 0x00ff00ff")
    for u in range(3):
        a("buffer_store_dwordx2 v[%d:%d], v10, s[56:59], s62 offen offset:%d" % (16 + 4 * (3 + u), 17 + 4 * (3 + u), u * 128))
    a("s_mov_b64 exec, -1")
    a("s_add_u32 s61, s61, %d" % (32 * 12288)); a("s_add_u32 s62, s62, %d" % (32 * 3072))
    kseg_loads()
    a("s_waitcnt lgkmcnt(0)"); a("s_barrier")
    stamp(a, 2)
    a("s_cmp_lg_u32 s20, 0"); a("s_cbranch_scc1 chA_next")
    for w in range(4):
        for tile in range(3):
            a("ds_read_b128 v[%d:%d], v14 offset:%d" % (52 + (w * 3 + tile) * 4, 55 + (w * 3 + tile) * 4, w * 3072 + tile * 1024))
    a("s_waitcnt lgkmcnt(0)")
    for j in range(12):
        a("v_add_f32 v%d, v%d, v%d" % (52 + j, 52 + j, 64 + j)); a("v_add_f32 v%d, v%d, v%d" % (76 + j, 76 + j, 88 + j))
    for j in range(12): a("v_add_f32 v%d, v%d, v%d" % (52 + j, 52 + j, 76 + j))
    a("v_cmp_gt_u32 vcc, 2, v2"); a("v_mov_b32 v64, 0xff800000"); a("s_nop 1")
    for j in range(4): a("v_cndmask_b32 v%d, v64, v%d, vcc" % (52 + j, 52 + j))
    softmax12(a, 52, 64)
    for j in range(6): a("v_cvt_pk_bf16_f32 v%d, v%d, v%d" % (64 + j, 52 + 2 * j, 53 + 2 * j))
    a("s_add_u32 s23, s42, s43")
    a("s_mov_b32 exec_lo, 0x00ff00ff"); a("s_mov_b32 exec_hi, 0x00ff00ff")
    a("buffer_store_dwordx2 v[66:67], v11, s[48:51], s23 offen offset:128 sc1")
    a("buffer_store_dwordx2 v[68:69], v11, s[48:51], s23 offen offset:384 sc1")
    a("s_mov_b32 exec_hi, 0")
    a("buffer_store_dwordx2 v[64:65], v11, s[48:51], s23 offen sc1")
    a("s_mov_b64 exec, -1")
    stamp(a, 3)
    a.put("chA_next")
    a("s_add_u32 s40, s40, 1"); a("s_add_u32 s41, s41, 10240"); a("s_add_u32 s42, s42, 20480")
    a("s_cmp_lt_u32 s40, 64"); a("s_cbranch_scc1 chA_loop")
    dbg_out(a, 0, 0)
    a("s_branch chain_end")
    a.put("chain_R")
    a("s_sub_u32 s24, s2, 32")
    a("s_mul_i32 s26, s24, 327680"); a("s_mul_i32 s27, s20, 81920"); a("s_add_u32 s26, s26, s27"); a("s_add_u32 s26, s26, %d" % WS_VO)
    srd_from_ptr(a, 32, 12, 81920, add="s26")
    a("s_mul_i32 s26, s20, %d" % (8 * 51200)); a("s_mul_i32 s27, s24, 640"); a("s_add_u32 s26, s26, s27"); a("s_add_u32 s26, s26, %d" % WS_YU)
    a("s_sub_u32 s27, %d, s26" % (WS_YU + 64 * 32 * 51200))
    srd_from_ptr(a, 36, 12, "s27", add="s26")
    a("v_mul_u32_u24 v9, 1280, v3"); a("v_lshl_add_u32 v9, v2, 4, v9")
    def vfr(tt, ks):
        idx = tt * 20 + ks
        return ("a", idx * 4) if idx < 64 else ("v", 192 + (idx - 64) * 4)
    for tt in range(4):
        for ks in range(20):
            a("s_mov_b32 s23, %d" % (tt * 20480 + ks * 64))
            a("buffer_load_dwordx4 %s, v9, s[32:35], s23 offen" % reg(vfr(tt, ks)))
    a("v_and_b32 v10, 7, v3")
    for b in range(5):
        a("v_add_u32 v11, %d, v2" % (4 * b))
        a("v_mul_u32_u24 v12, 52, v11"); a("v_lshrrev_b32 v12, 8, v12")
        a("v_mul_u32_u24 v13, 5, v12"); a("v_sub_u32 v13, v11, v13")
        a("v_mul_u32_u24 v%d, 51200, v12" % (16 + b)); a("v_lshl_add_u32 v%d, v13, 4, v%d" % (16 + b, 16 + b))
        a("v_mul_u32_u24 v13, 80, v10"); a("v_add_u32 v%d, v%d, v13" % (16 + b, 16 + b))
    a("s_mul_i32 s22, s20, 5120"); a("v_lshlrev_b32 v21, 7, v2"); a("v_lshl_add_u32 v21, v10, 4, v21"); a("v_add_u32 v21, s22, v21")
    a("s_lshl_b32 s22, s20, 10"); a("s_add_u32 s22, s22, 16384")
    a("v_lshlrev_b32 v22, 4, v3"); a("v_lshl_add_u32 v22, v2, 3, v22"); a("v_add_u32 v22, s22, v22")
    a("v_lshlrev_b32 v23, 4, v10"); a("v_add_u32 v23, s22, v23")
    a("v_lshlrev_b32 v24, 4, v1"); a("v_add_u32 v24, s22, v24")
    a("v_lshrrev_b32 v25, 3, v1"); a("v_mul_u32_u24 v25, 51200, v25"); a("v_and_b32 v11, 7, v1"); a("v_mul_u32_u24 v11, 80, v11"); a("v_add_u32 v25, v25, v11")
    a("v_lshlrev_b32 v27, 4, v1"); a("v_add_u32 v27, 24576, v27"); a("s_lshl_b32 s22, s20, 10"); a("v_add_u32 v26, s22, v27")
    a("s_lshl_b32 s22, s24, 7"); a("v_lshlrev_b32 v28, 4, v3"); a("v_lshl_add_u32 v28, v2, 3, v28"); a("v_add_u32 v28, s22, v28")
    a("s_mov_b32 s61, 0")
    dbg_init(a)
    a.put("chR_loop")
    for ks in range(10):
        aa, b = divmod(ks, 5)
        a("s_add_u32 s23, s61, %d" % (aa * 4 * 51200))
        a("buffer_load_dwordx4 v[%d:%d], v%d, s[36:39], s23 offen" % (76 + 4 * ks, 79 + 4 * ks, 16 + b))
    gather_mem(a, "chR", 32, 44, 41, 5, None)
    stamp(a, 0)
    def rd(ks): a("ds_read_b128 v[%d:%d], v8 offset:%d" % (60 + (ks % ND) * 4, 63 + (ks % ND) * 4, ks * 512))
    for ks in range(ND - 1): rd(ks)
    for ks in range(20):
        if ks + ND - 1 < 20: rd(ks + ND - 1)
        rem = min(19, ks + ND - 1) - ks
        a("s_waitcnt lgkmcnt(%d)" % rem)
        mb = "v[%d:%d]" % (60 + (ks % ND) * 4, 63 + (ks % ND) * 4)
        for tt in range(4):
            d = "v[%d:%d]" % (44 + 4 * tt, 47 + 4 * tt)
            a("v_mfma_f32_16x16x32_bf16 %s, %s, %s, %s" % (d, mb, reg(vfr(tt, ks)), "0" if ks == 0 else d))
    a("s_nop 7"); a("s_nop 1")
    for tt in range(4):
        a("v_cvt_pk_bf16_f32 v%d, v%d, v%d" % (44 + 4 * tt, 44 + 4 * tt, 45 + 4 * tt))
        a("v_cvt_pk_bf16_f32 v%d, v%d, v%d" % (45 + 4 * tt, 46 + 4 * tt, 47 + 4 * tt))
    a("s_mov_b32 exec_hi, 0")
    for tt in range(4):
        a("ds_write_b64 v22, v[%d:%d] offset:%d" % (44 + 4 * tt, 45 + 4 * tt, tt * 256))
    a("s_mov_b64 exec, -1")
    a("s_waitcnt lgkmcnt(0)")
    for ks in range(10):
        for g0 in range(4):
            if (4 * ks + g0) % 5 == 0:
                hl = (4 * ks + g0) // 5
                lo = (0xffff << (16 * g0)) & 0xffffffff; hi = (0xffff << (16 * g0)) >> 32
                a("s_mov_b32 exec_lo, 0x%x" % lo); a("s_mov_b32 exec_hi, 0x%x" % hi)
                a("ds_read_b128 v[%d:%d], v23 offset:%d" % (76 + 4 * ks, 79 + 4 * ks, hl * 128))
    a("s_mov_b64 exec, -1")
    a("ds_read_b128 v[32:35], v24")
    a("s_waitcnt lgkmcnt(0)")
    a("buffer_store_dwordx4 v[32:35], v25, s[36:39], s61 offen")
    stamp(a, 1)
    a("s_mov_b32 s60, 0")
    a.put("chR_pp")
    for ks in range(10):
        if ks < 8: a("buffer_load_dwordx4 v[%d:%d], v21, s[48:51], s42 offen offset:%d sc1" % (116 + 4 * ks, 119 + 4 * ks, ks * 512))
        else:
            a("s_add_u32 s23, s42, %d" % (ks * 512))
            a("buffer_load_dwordx4 v[%d:%d], v21, s[48:51], s23 offen sc1" % (116 + 4 * ks, 119 + 4 * ks))
    a("s_waitcnt vmcnt(0)")
    poll_check(a, list(range(116, 156)), 15, "chR_pp", "chain_end", 60)
    stamp(a, 2)
    for ks in range(10):
        d = "v[%d:%d]" % (44 + 4 * (ks & 1), 47 + 4 * (ks & 1))
        a("v_mfma_f32_16x16x32_bf16 %s, v[%d:%d], v[%d:%d], %s" % (d, 76 + 4 * ks, 79 + 4 * ks, 116 + 4 * ks, 119 + 4 * ks, "0" if ks < 2 else d))
    a("s_nop 7"); a("s_nop 1")
    for r in range(4): a("v_add_f32 v%d, v%d, v%d" % (44 + r, 44 + r, 48 + r))
    a("ds_write_b128 v26, v[44:47]")
    a("s_waitcnt lgkmcnt(0)"); a("s_barrier")
    a("s_cmp_lg_u32 s20, 0"); a("s_cbranch_scc1 chR_next")
    for w in range(4): a("ds_read_b128 v[%d:%d], v27 offset:%d" % (44 + 4 * w, 47 + 4 * w, w * 1024))
    a("s_waitcnt lgkmcnt(0)")
    for r in range(4):
        a("v_add_f32 v%d, v%d, v%d" % (44 + r, 44 + r, 48 + r)); a("v_add_f32 v%d, v%d, v%d" % (52 + r, 52 + r, 56 + r))
    for r in range(4): a("v_add_f32 v%d, v%d, v%d" % (44 + r, 44 + r, 52 + r))
    a("v_cvt_pk_bf16_f32 v44, v44, v45"); a("v_cvt_pk_bf16_f32 v45, v46, v47")
    a("v_min_u32 v44, 0xfffffffe, v44"); a("v_min_u32 v45, 0xfffffffe, v45")
    a("s_add_u32 s23, s41, 10240")
    a("s_mov_b32 exec_lo, 0x00ff00ff"); a("s_mov_b32 exec_hi, 0")
    a("buffer_store_dwordx2 v[44:45], v28, s[44:47], s23 offen sc1")
    a("s_mov_b64 exec, -1")
    stamp(a, 3)
    a.put("chR_next")
    a("s_add_u32 s40, s40, 1"); a("s_add_u32 s41, s41, 10240"); a("s_add_u32 s42, s42, 20480"); a("s_add_u32 s61, s61, %d" % (32 * 51200))
    a("s_cmp_lt_u32 s40, 64"); a("s_cbranch_scc1 chR_loop")
    dbg_out(a, 32, 32)
    a.put("chain_end"); a("s_endpgm")
    return K, 512, 256

def softmax12(a, V, T, n=12):
    c = 192 ** -0.5 * 1.4426950408889634
    import struct
    ch = struct.unpack("<I", struct.pack("<f", c))[0]
    a("v_max3_f32 v%d, v%d, v%d, v%d" % (T, V, V + 1, V + 2))
    for j in range(3, n - 1, 2): a("v_max3_f32 v%d, v%d, v%d, v%d" % (T, T, V + j, V + j + 1))
    if (n - 3) % 2: a("v_max_f32 v%d, v%d, v%d" % (T, T, V + n - 1))
    for sw in ("v_permlane16_swap_b32", "v_permlane32_swap_b32"):
        a("v_mov_b32 v%d, v%d" % (T + 1, T)); a("s_nop 1")
        a("%s v%d, v%d" % (sw, T, T + 1)); a("s_nop 1")
        a("v_max_f32 v%d, v%d, v%d" % (T, T, T + 1))
    a("v_mul_f32 v%d, 0x%08x, v%d" % (T, ch, T))
    a("v_mov_b32 v%d, 0x%08x" % (T + 2, ch))
    for j in range(n):
        a("v_fma_f32 v%d, v%d, v%d, -v%d" % (V + j, V + j, T + 2, T))
    for j in range(n): a("v_exp_f32 v%d, v%d" % (V + j, V + j))
    a("s_nop 0")
    a("v_add_f32 v%d, v%d, v%d" % (T, V, V + 1))
    for j in range(2, n): a("v_add_f32 v%d, v%d, v%d" % (T, T, V + j))
    for sw in ("v_permlane16_swap_b32", "v_permlane32_swap_b32"):
        a("v_mov_b32 v%d, v%d" % (T + 1, T)); a("s_nop 1")
        a("%s v%d, v%d" % (sw, T, T + 1)); a("s_nop 1")
        a("v_add_f32 v%d, v%d, v%d" % (T, T, T + 1))
    a("v_rcp_f32 v%d, v%d" % (T, T)); a("s_nop 0")
    for j in range(n): a("v_mul_f32 v%d, v%d, v%d" % (V + j, V + j, T))

def gen_pattn(a):
    K = "pattn_kernel"
    kbegin(a, K, 512)
    a("s_load_dwordx2 s[12:13], s[0:1], %d" % KA["ws"])
    lane_setup(a)
    a("s_lshl_b32 s24, s2, 2"); a("s_add_u32 s24, s24, s20"); a("s_and_b32 s25, s24, 31"); a("s_lshr_b32 s26, s24, 5")
    a("s_waitcnt lgkmcnt(0)")
    a("s_mul_i32 s27, s26, %d" % (32 * 12288)); a("s_mul_i32 s28, s25, 384"); a("s_add_u32 s27, s27, s28")
    a("s_add_u32 s28, s27, %d" % WS_Q); srd_from_ptr(a, 32, 12, 32 * 12288, add="s28")
    a("s_add_u32 s28, s27, %d" % WS_K); srd_from_ptr(a, 36, 12, 32 * 12288, add="s28")
    a("s_mul_i32 s28, s24, 3072"); a("s_add_u32 s28, s28, %d" % WS_KM); srd_from_ptr(a, 40, 12, 3072, add="s28")
    a("s_mul_i32 s28, s26, %d" % (32 * 2560)); a("s_mul_i32 s29, s25, 80"); a("s_add_u32 s28, s28, s29"); a("s_add_u32 s28, s28, %d" % WS_PP)
    srd_from_ptr(a, 44, 12, 32 * 2560, add="s28")
    a("v_mul_u32_u24 v5, 12288, v3"); a("v_lshl_add_u32 v5, v2, 4, v5")
    a("v_and_b32 v7, 7, v3"); a("v_mul_u32_u24 v6, 384, v7"); a("v_lshl_add_u32 v6, v2, 4, v6")
    for ks in range(6):
        for t in range(2):
            a("s_mov_b32 s23, %d" % (t * 16 * 12288 + ks * 64))
            a("buffer_load_dwordx4 v[%d:%d], v5, s[32:35], s23 offen" % (16 + (t * 6 + ks) * 4, 19 + (t * 6 + ks) * 4))
            a("buffer_load_dwordx4 v[%d:%d], v5, s[36:39], s23 offen" % (64 + (t * 6 + ks) * 4, 67 + (t * 6 + ks) * 4))
    if M.tpoll:
        if os.environ.get('PAP', '1') == '1': M.tpoll(a, "tpa", 88, 4, 640, 200)
        else: M.tpoll(a, "tpa", 88, 80, 7, 200)
    for ks in range(6):
        a("buffer_load_dwordx4 v[%d:%d], v6, s[40:43], 0 offen offset:%d" % (112 + ks * 4, 115 + ks * 4, ks * 64))
    a("s_waitcnt vmcnt(0)")
    for ks in range(6):
        for qt in range(2):
            for tile in range(3):
                A = 112 + ks * 4 if tile == 0 else 64 + ((tile - 1) * 6 + ks) * 4
                d = "v[%d:%d]" % (136 + (qt * 3 + tile) * 4, 139 + (qt * 3 + tile) * 4)
                a("v_mfma_f32_16x16x32_bf16 %s, v[%d:%d], v[%d:%d], %s" % (d, A, A + 3, 16 + (qt * 6 + ks) * 4, 19 + (qt * 6 + ks) * 4, "0" if ks == 0 else d))
    a("s_nop 7"); a("s_nop 1")
    a("v_mov_b32 v8, 0xff800000")
    a("v_lshlrev_b32 v9, 2, v2")
    a("v_mul_u32_u24 v10, 2560, v3"); a("v_lshl_add_u32 v10, v2, 3, v10")
    for qt in range(2):
        V = 136 + qt * 12
        a("v_cmp_gt_u32 vcc, 2, v2"); a("s_nop 1")
        for j in range(4): a("v_cndmask_b32 v%d, v8, v%d, vcc" % (V + j, V + j))
        for kt in range(2):
            for r in range(4):
                a("v_add_u32 v11, %d, v9" % (kt * 16 + r - qt * 16 + 64))
                a("v_add_u32 v12, 64, v3")
                a("v_cmp_le_u32 vcc, v11, v12"); a("s_nop 1")
                a("v_cndmask_b32 v%d, v8, v%d, vcc" % (V + 4 + kt * 4 + r, V + 4 + kt * 4 + r))
        softmax12(a, V, 13)
        for j in range(6): a("v_cvt_pk_bf16_f32 v%d, v%d, v%d" % (V + j, V + 2 * j, V + 2 * j + 1))
        a("s_mov_b32 s23, %d" % (qt * 16 * 2560))
        a("buffer_store_dwordx2 v[%d:%d], v10, s[44:47], s23 offen offset:16%s" % (V + 2, V + 3, ST()))
        a("buffer_store_dwordx2 v[%d:%d], v10, s[44:47], s23 offen offset:48%s" % (V + 4, V + 5, ST()))
        a("s_mov_b32 exec_hi, 0")
        a("buffer_store_dwordx2 v[%d:%d], v10, s[44:47], s23 offen%s" % (V, V + 1, ST()))
        a("s_mov_b64 exec, -1")
    kend(a, K)
    return K, 168

def gen_pout(a):
    K = "pout_kernel"
    kbegin(a, K, 320)
    a("s_load_dwordx2 s[12:13], s[0:1], %d" % KA["ws"])
    a("s_load_dwordx2 s[6:7], s[0:1], %d" % KA["x"])
    lane_setup(a)
    a("s_lshl_b32 s24, s2, 2"); a("s_add_u32 s24, s24, s20")
    a("s_mul_i32 s26, s24, 3277"); a("s_lshr_b32 s26, s26, 16")
    a("s_mul_i32 s25, s26, 20"); a("s_sub_u32 s25, s24, s25")
    a("s_waitcnt lgkmcnt(0)")
    a("s_mul_i32 s28, s26, %d" % (32 * 2560)); a("s_add_u32 s28, s28, %d" % WS_PP); srd_from_ptr(a, 32, 12, 32 * 2560, add="s28")
    srd_from_ptr(a, 36, 12, WS_SIZE)
    a("s_mul_i32 s28, s26, %d" % (32 * 1280)); a("s_lshl_b32 s29, s25, 6"); a("s_add_u32 s28, s28, s29"); srd_from_ptr(a, 40, 6, 32 * 1280, add="s28")
    a("s_mul_i32 s28, s26, %d" % (32 * 2560)); a("s_lshl_b32 s29, s25, 7"); a("s_add_u32 s28, s28, s29"); a("s_add_u32 s28, s28, %d" % WS_X1)
    srd_from_ptr(a, 44, 12, 32 * 2560, add="s28")
    a("s_add_u32 s28, s29, %d" % (WS_MOD + 2 * 2560)); srd_from_ptr(a, 48, 12, 128, add="s28")
    a("v_mul_u32_u24 v5, 2560, v3"); a("v_lshl_add_u32 v5, v2, 4, v5")
    a("s_mul_i32 s28, s26, %d" % (32 * 640)); a("s_sub_u32 s29, s25, s20"); a("s_lshl_b32 s29, s29, 5"); a("s_add_u32 s28, s28, s29")
    a("v_add_u32 v14, s28, v3")
    a("s_lshl_b32 s30, s20, 1")
    for b in range(5):
        a("v_add_u32 v11, %d, v2" % (4 * b))
        a("v_mul_u32_u24 v12, 52, v11"); a("v_lshrrev_b32 v12, 8, v12")
        a("v_mul_u32_u24 v13, 5, v12"); a("v_sub_u32 v13, v11, v13")
        a("v_mul_u32_u24 v12, 640, v12"); a("v_add_u32 v12, v12, v14")
        a("v_lshlrev_b32 v6, 4, v12"); a("v_add_u32 v6, %d, v6" % WS_Y)
        a("v_lshlrev_b32 v7, 6, v12"); a("v_lshl_add_u32 v7, v13, 4, v7"); a("v_add_u32 v7, %d, v7" % (WS_U - 16))
        a("v_cmp_eq_u32 vcc, 0, v13"); a("v_mov_b32 v8, %d" % (4 * 640 * 64)); a("v_mov_b32 v9, %d" % (4 * 640 * 16))
        a("v_cndmask_b32 v%d, v7, v6, vcc" % (216 + b))
        a("v_cndmask_b32 v%d, v8, v9, vcc" % (222 + b))
        a("v_mov_b32 v8, 1024"); a("v_mov_b32 v9, 256"); a("v_cndmask_b32 v%d, v8, v9, vcc" % (228 + b))
        a("v_mul_lo_u32 v8, s30, v%d" % (222 + b)); a("v_add_u32 v%d, v%d, v8" % (216 + b, 216 + b))
    a("s_mul_i32 s31, s20, 640")
    def fr(gr, b, j):
        i = gr * 50 + b * 10 + j
        if i < 64: return ("a", i * 4)
        return ("v", 80 + (i - 64) * 4) if i - 64 < 34 else ("v", 236 + (i - 98) * 4)
    assert fr(1, 4, 9) == ("v", 236 + 4)
    for gr in range(2):
        for b in range(5):
            for t in range(2):
                a("s_add_u32 s23, s31, %d" % (t * 16 * 2560 + (gr * 5 + b) * 64))
                a("buffer_load_dwordx4 %s, v5, s[32:35], s23 offen" % reg(fr(gr, b, t)))
            a("v_mov_b32 v6, v%d" % (216 + b))
            for nt in range(8):
                a("buffer_load_dwordx4 %s, v6, s[36:39], 0 offen" % reg(fr(gr, b, 2 + nt)))
                if nt < 7: a("v_add_u32 v6, v6, v%d" % (228 + b))
            if gr == 0: a("v_add_u32 v%d, v%d, v%d" % (216 + b, 216 + b, 222 + b))
    for gr in range(2):
        for b in range(5):
            a("s_waitcnt vmcnt(%d)" % (100 - (gr * 50 + b * 10 + 10) if 100 - (gr * 50 + b * 10 + 10) < 63 else 62))
            for mt in range(2):
                for nt in range(8):
                    d = "v[%d:%d]" % (16 + (mt * 8 + nt) * 4, 19 + (mt * 8 + nt) * 4)
                    a("v_mfma_f32_16x16x32_bf16 %s, %s, %s, %s" % (d, reg(fr(gr, b, 2 + nt)), reg(fr(gr, b, mt)), "0" if (gr == 0 and b == 0) else d))
    a("s_nop 7"); a("s_nop 1")
    a("v_lshlrev_b32 v6, 4, v1"); a("s_lshl_b32 s23, s20, 14"); a("v_add_u32 v7, s23, v6")
    for tl in range(16): a("ds_write_b128 v7, v[%d:%d] offset:%d" % (16 + tl * 4, 19 + tl * 4, tl * 1024))
    a("s_waitcnt lgkmcnt(0)"); a("s_barrier")
    a("s_lshl_b32 s23, s20, 11"); a("v_add_u32 v7, s23, v6")
    for w in range(4):
        for mt in range(2):
            for nt in range(2):
                r = 80 + (w * 4 + mt * 2 + nt) * 4
                a("ds_read_b128 v[%d:%d], v7 offset:%d" % (r, r + 3, w * 16384 + (mt * 8 + nt) * 1024))
    a("s_waitcnt lgkmcnt(0)")
    for tl in range(4):
        for r in range(4):
            d = 16 + tl * 4 + r
            a("v_add_f32 v%d, v%d, v%d" % (d, 80 + tl * 4 + r, 96 + tl * 4 + r)); a("v_add_f32 v6, v%d, v%d" % (112 + tl * 4 + r, 128 + tl * 4 + r)); a("v_add_f32 v%d, v%d, v6" % (d, d))
    a("v_mul_u32_u24 v12, 1280, v3"); a("v_lshl_add_u32 v12, v2, 3, v12"); a("v_lshlrev_b32 v13, 4, v2")
    for nt in range(2):
        a("buffer_load_dwordx4 v[%d:%d], v13, s[48:51], 0 offen offset:%d" % (32 + 4 * nt, 35 + 4 * nt, nt * 64))
        for mt in range(2):
            a("s_mov_b32 s23, %d" % (mt * 16 * 1280 + nt * 32))
            a("buffer_load_dwordx2 v[%d:%d], v12, s[40:43], s23 offen" % (40 + (mt * 2 + nt) * 2, 41 + (mt * 2 + nt) * 2))
    a("s_waitcnt vmcnt(0)")
    for mt in range(2):
        for nt in range(2):
            x = 40 + (mt * 2 + nt) * 2; d = 16 + (mt * 2 + nt) * 4
            for j in range(2):
                a("v_lshlrev_b32 v48, 16, v%d" % (x + j)); a("v_and_b32 v49, 0xffff0000, v%d" % (x + j))
                a("v_fma_f32 v%d, v%d, v%d, v48" % (d + 2 * j, d + 2 * j, 32 + 4 * nt + 2 * j))
                a("v_fma_f32 v%d, v%d, v%d, v49" % (d + 2 * j + 1, d + 2 * j + 1, 32 + 4 * nt + 2 * j + 1))
            a("s_mov_b32 s23, %d" % (mt * 16 * 2560 + nt * 64))
            a("buffer_store_dwordx4 v[%d:%d], v5, s[44:47], s23 offen%s" % (d, d + 3, ST()))
    kend(a, K)
    return K, 512, 256


def gen_pout_f(a):
    K = "pout_kernel"
    kbegin(a, K, 320)
    a("s_load_dwordx2 s[12:13], s[0:1], %d" % KA["ws"])
    a("s_load_dwordx2 s[6:7], s[0:1], %d" % KA["x"])
    lane_setup(a)
    a("s_lshr_b32 s26, s2, 5"); a("s_and_b32 s25, s2, 31")
    a("s_lshr_b32 s62, s20, 1"); a("s_and_b32 s63, s20, 1")
    a("s_waitcnt lgkmcnt(0)")
    a("s_mul_i32 s28, s26, %d" % (32 * 2560)); a("s_add_u32 s28, s28, %d" % WS_PP); srd_from_ptr(a, 32, 12, 32 * 2560, add="s28")
    srd_from_ptr(a, 36, 12, WS_SIZE)
    a("s_mul_i32 s28, s26, %d" % (32 * 1280)); a("s_lshl_b32 s29, s25, 6"); a("s_add_u32 s28, s28, s29"); srd_from_ptr(a, 40, 6, 32 * 1280, add="s28")
    a("s_mul_i32 s28, s26, %d" % (32 * 2560)); a("s_lshl_b32 s29, s25, 7"); a("s_add_u32 s28, s28, s29"); a("s_add_u32 s28, s28, %d" % WS_X1)
    srd_from_ptr(a, 44, 12, 32 * 2560, add="s28")
    a("s_add_u32 s28, s29, %d" % (WS_MOD + 2 * 2560)); srd_from_ptr(a, 48, 12, 128, add="s28")
    a("v_mul_u32_u24 v5, 2560, v3"); a("v_lshl_add_u32 v5, v2, 4, v5")
    a("s_mul_i32 s28, s26, %d" % (32 * 640)); a("s_lshl_b32 s29, s25, 5"); a("s_add_u32 s28, s28, s29")
    a("v_add_u32 v14, s28, v3")
    a("s_lshl_b32 s30, s20, 1")
    for b in range(5):
        a("v_add_u32 v11, %d, v2" % (4 * b))
        a("v_mul_u32_u24 v12, 52, v11"); a("v_lshrrev_b32 v12, 8, v12")
        a("v_mul_u32_u24 v13, 5, v12"); a("v_sub_u32 v13, v11, v13")
        a("v_mul_u32_u24 v12, 640, v12"); a("v_add_u32 v12, v12, v14")
        a("v_lshlrev_b32 v6, 4, v12"); a("v_add_u32 v6, %d, v6" % WS_Y)
        a("v_lshlrev_b32 v7, 6, v12"); a("v_lshl_add_u32 v7, v13, 4, v7"); a("v_add_u32 v7, %d, v7" % (WS_U - 16))
        a("v_cmp_eq_u32 vcc, 0, v13"); a("v_mov_b32 v8, %d" % (4 * 640 * 64)); a("v_mov_b32 v9, %d" % (4 * 640 * 16))
        a("v_cndmask_b32 v%d, v7, v6, vcc" % (216 + b))
        a("v_cndmask_b32 v%d, v8, v9, vcc" % (222 + b))
        a("v_mov_b32 v8, 1024"); a("v_mov_b32 v9, 256"); a("v_cndmask_b32 v%d, v8, v9, vcc" % (228 + b))
        a("v_mul_lo_u32 v8, s30, v%d" % (222 + b)); a("v_add_u32 v%d, v%d, v8" % (216 + b, 216 + b))
    a("s_mul_i32 s31, s20, 640")
    def fr(gr, b, j): return ("a", (gr * 20 + b * 4 + j) * 4)
    for gr in range(2):
        for b in range(5):
            a("buffer_load_dwordx4 %s, v%d, s[36:39], 0 offen" % (reg(fr(gr, b, 2)), 216 + b))
            a("v_add_u32 v6, v%d, v%d" % (216 + b, 228 + b))
            a("buffer_load_dwordx4 %s, v6, s[36:39], 0 offen" % reg(fr(gr, b, 3)))
            if gr == 0: a("v_add_u32 v%d, v%d, v%d" % (216 + b, 216 + b, 222 + b))
    a("v_mul_u32_u24 v12, 1280, v3"); a("v_lshl_add_u32 v12, v2, 3, v12"); a("v_lshlrev_b32 v13, 4, v2")
    a("s_lshl_b32 s23, s63, 6")
    a("buffer_load_dwordx4 v[32:35], v13, s[48:51], s23 offen")
    a("s_mul_i32 s23, s62, %d" % (16 * 1280)); a("s_lshl_b32 s22, s63, 5"); a("s_add_u32 s23, s23, s22")
    a("buffer_load_dwordx2 v[40:41], v12, s[40:43], s23 offen")
    M.tpoll(a, "tpo", 92, 8, 2, 200)
    for gr in range(2):
        for b in range(5):
            for t in range(2):
                a("s_add_u32 s23, s31, %d" % (t * 16 * 2560 + (gr * 5 + b) * 64))
                a("buffer_load_dwordx4 %s, v5, s[32:35], s23 offen" % reg(fr(gr, b, t)))
    for gr in range(2):
        for b in range(5):
            a("s_waitcnt vmcnt(%d)" % (20 - (gr * 10 + b * 2 + 2)))
            for mt in range(2):
                for nt in range(2):
                    d = "v[%d:%d]" % (16 + (mt * 2 + nt) * 4, 19 + (mt * 2 + nt) * 4)
                    a("v_mfma_f32_16x16x32_bf16 %s, %s, %s, %s" % (d, reg(fr(gr, b, 2 + nt)), reg(fr(gr, b, mt)), "0" if (gr == 0 and b == 0) else d))
    a("s_nop 7"); a("s_nop 1")
    a("v_lshlrev_b32 v6, 4, v1"); a("s_lshl_b32 s23, s20, 12"); a("v_add_u32 v7, s23, v6")
    for tl in range(4): a("ds_write_b128 v7, v[%d:%d] offset:%d" % (16 + tl * 4, 19 + tl * 4, tl * 1024))
    a("s_waitcnt lgkmcnt(0)"); a("s_barrier")
    a("s_lshl_b32 s23, s20, 10"); a("v_add_u32 v7, s23, v6")
    for w in range(4):
        a("ds_read_b128 v[%d:%d], v7 offset:%d" % (80 + w * 4, 83 + w * 4, w * 4096))
    a("s_waitcnt vmcnt(0) lgkmcnt(0)")
    for r in range(4):
        d = 16 + r
        a("v_add_f32 v%d, v%d, v%d" % (d, 80 + r, 84 + r)); a("v_add_f32 v6, v%d, v%d" % (88 + r, 92 + r)); a("v_add_f32 v%d, v%d, v6" % (d, d))
    for j in range(2):
        a("v_lshlrev_b32 v48, 16, v%d" % (40 + j)); a("v_and_b32 v49, 0xffff0000, v%d" % (40 + j))
        a("v_fma_f32 v%d, v%d, v%d, v48" % (16 + 2 * j, 16 + 2 * j, 32 + 2 * j))
        a("v_fma_f32 v%d, v%d, v%d, v49" % (16 + 2 * j + 1, 16 + 2 * j + 1, 32 + 2 * j + 1))
    a("s_mul_i32 s23, s62, %d" % (16 * 2560)); a("s_lshl_b32 s22, s63, 6"); a("s_add_u32 s23, s23, s22")
    a("buffer_store_dwordx4 v[16:19], v5, s[44:47], s23 offen%s" % ST())
    kend(a, K)
    return K, 512, 256
```

```python
from gen import *
from gen2 import *
import gen3
from gen3 import stamp, dbg_init, dbg_out, SPIN
import struct, os
HALF = os.environ.get('HALF', '1') == '1'
SM = os.environ.get('SM', '1') == '1'
CFG = dict(S=1, gap=8, slpA=26, slpR=32, slpRm=12, slpA0=22)

ADAPT = os.environ.get("ADAPT", "0") == "1"
UP = int(os.environ.get("UP", "8"))
ADM = os.environ.get("ADM", "0") == "1"
def spoll(a, pfx, S, nl, issue, regs, succ, sleep, gap, vt=15, adapt=None):
    if adapt and ADAPT:
        a("s_lshr_b32 s66, s%d, 2" % adapt)
        a.put(pfx + "_sl")
        a("s_cmp_eq_u32 s66, 0"); a("s_cbranch_scc1 %s_sld" % pfx); a("s_sleep 1"); a("s_sub_u32 s66, s66, 1"); a("s_branch %s_sl" % pfx)
        a.put(pfx + "_sld")
    elif sleep: a("s_sleep %d" % sleep)
    a("s_mov_b32 s60, 0")
    for k in range(S):
        issue(k)
        if k < S - 1 and gap: a("s_sleep %d" % gap)
    a.put(pfx + "_lp")
    for k in range(S):
        a("s_waitcnt vmcnt(%d)" % ((S - 1) * nl))
        r = regs(k)
        a("v_max3_u32 v%d, v%d, v%d, v%d" % (vt, r[0], r[1], r[2]))
        r = r[3:]
        while len(r) >= 2:
            a("v_max3_u32 v%d, v%d, v%d, v%d" % (vt, vt, r[0], r[1])); r = r[2:]
        if r: a("v_max_u32 v%d, v%d, v%d" % (vt, vt, r[0]))
        a("v_cmp_ne_u32 vcc, -1, v%d" % vt)
        a("s_nop 1")
        a("s_cmp_eq_u64 vcc, exec")
        a("s_cbranch_scc1 %s_ok%d" % (pfx, k))
        issue(k)
    a("s_add_u32 s60, s60, 1"); a("s_cmp_gt_u32 s60, %d" % SPIN); a("s_cbranch_scc1 chain_end")
    a("s_branch %s_lp" % pfx)
    for k in range(S):
        a.put("%s_ok%d" % (pfx, k))
        succ(k)
        if adapt and ADAPT:
            if k == 0: a("s_cmp_eq_u32 s60, 0"); a("s_cselect_b32 s66, -1, %d" % UP)
            else: a("s_mov_b32 s66, %d" % UP)
            a("s_add_i32 s%d, s%d, s66" % (adapt, adapt)); a("s_max_i32 s%d, s%d, 0" % (adapt, adapt)); a("s_min_i32 s%d, s%d, 600" % (adapt, adapt))
        if k < S - 1: a("s_branch %s_done" % pfx)
    a.put(pfx + "_done")

def gather_mem(a, pfx, sets, srd, s_off, vG, sleep, adapt=None):
    S = len(sets)
    def issue(k):
        for n in range(3):
            a("buffer_load_dwordx4 v[%d:%d], v%d, s[%d:%d], s%d offen sc1" % (sets[k] + 4 * n, sets[k] + 4 * n + 3, vG + n, srd, srd + 3, s_off))
    def succ(k):
        for n in range(3):
            a("ds_write_b128 v%d, v[%d:%d]" % (vG + n, sets[k] + 4 * n, sets[k] + 4 * n + 3))
    spoll(a, pfx, S, 3, issue, lambda k: list(range(sets[k], sets[k] + 12)), succ, sleep, CFG["gap"], adapt=adapt)
    a("s_waitcnt lgkmcnt(0)")
    a("s_barrier")

def sst(a, slot, wg):
    if not M.TS: return
    lab = a.label("sst")
    a("s_xor_b32 s22, s2, %d" % wg); a("s_or_b32 s22, s22, s20"); a("s_cmp_lg_u32 s22, 0"); a("s_cbranch_scc1 %s" % lab)
    a("s_mov_b32 s23, %d" % (slot * 4)); a("v_mov_b32 v15, v254"); tstamp(a, "s23"); a("v_mov_b32 v254, v15"); a.put(lab)

def gen_chain(a):
    K = "chain_kernel"
    S = CFG["S"]
    if M.MEGA: a.put("chain_entry")
    else:
        kernel_begin(a, K)
        a("s_cmp_ge_u32 s2, 112"); a("s_cbranch_scc1 chain_end")
    def fpoll(lab, voff, soff_expr):
        if not M.MEGA: return
        a("s_mov_b32 s60, 0")
        a.put(lab)
        if voff is None: a("buffer_load_dword v15, off, s[92:95], %s sc1" % soff_expr)
        else: a("buffer_load_dword v15, v%d, s[92:95], %s offen sc1" % (voff, soff_expr))
        a("s_waitcnt vmcnt(0)")
        a("v_cmp_ne_u32 vcc, -1, v15"); a("s_nop 1"); a("s_cmp_eq_u64 vcc, exec"); a("s_cbranch_scc1 %s_ok" % lab)
        a("s_sleep 8")
        a("s_add_u32 s60, s60, 1"); a("s_cmp_gt_u32 s60, %d" % SPIN); a("s_cbranch_scc1 chain_end")
        a("s_branch %s" % lab)
        a.put(lab + "_ok")
    a("s_load_dwordx4 s[4:7], s[0:1], %d" % KA["Wq"])
    a("s_load_dwordx2 s[12:13], s[0:1], %d" % KA["ws"])
    lane_setup(a)
    a("s_waitcnt lgkmcnt(0)")
    srd_from_ptr(a, 44, 12, 66 * 10240, add=hex(WS_MEM))
    srd_from_ptr(a, 48, 12, 65 * 20480, add=hex(WS_P))
    a("s_mul_i32 s22, s20, 2560")
    a("v_lshlrev_b32 v5, 4, v1"); a("v_add_u32 v5, s22, v5"); a("v_add_u32 v6, 1024, v5")
    a("v_and_b32 v7, 31, v1"); a("v_lshlrev_b32 v7, 4, v7"); a("v_add_u32 v7, s22, v7"); a("v_add_u32 v7, 2048, v7")
    a("v_and_b32 v9, 7, v3"); a("v_lshlrev_b32 v8, 7, v2"); a("v_lshl_add_u32 v8, v9, 4, v8")
    a("s_mov_b32 s40, 0"); a("s_mov_b32 s41, 0"); a("s_mov_b32 s42, 0"); a("s_cmp_lt_u32 s2, 32"); a("s_cselect_b32 s64, 64, 130"); a("s_mov_b32 s65, 100")
    sst(a, 24, 0); sst(a, 30, 32)
    a("s_cmp_ge_u32 s2, 32"); a("s_cbranch_scc1 chain_R")
    a("s_mul_i32 s26, s2, 384"); a("s_sub_u32 s27, %d, s26" % (640 * 12288))
    srd_from_ptr(a, 32, 4, "s27", add="s26"); srd_from_ptr(a, 36, 6, "s27", add="s26")
    a("s_add_u32 s28, s26, %d" % WS_K); srd_from_ptr(a, 52, 12, 2048 * 12288, add="s28")
    a("s_mul_i32 s28, s2, 3072"); a("s_add_u32 s28, s28, %d" % WS_KM); srd_from_ptr(a, 56, 12, 64 * 32 * 3072, add="s28")
    dma_voff(a, 10, 12288, 16, 17, 18)
    if SM:
        a("v_bfe_u32 v16, v1, 2, 2"); a("v_lshl_add_u32 v17, v2, 2, v16"); a("v_lshlrev_b32 v17, 7, v17")
        a("v_and_b32 v18, 3, v1"); a("v_lshl_add_u32 v17, v18, 3, v17"); a("v_lshrrev_b32 v16, 1, v16")
        a("v_lshrrev_b32 v18, 1, v2"); a("v_xor_b32 v18, v18, v2"); a("v_and_b32 v18, 1, v18")
        a("v_lshl_or_b32 v19, v18, 1, v16"); a("v_xor_b32 v19, v4, v19")
        a("v_lshl_add_u32 v11, v19, 5, v17"); a("v_add_u32 v12, 2048, v11")
    else:
        a("v_bfe_u32 v16, v1, 2, 2"); a("v_lshl_add_u32 v17, v2, 3, v16"); a("v_lshlrev_b32 v17, 7, v17")
        a("v_and_b32 v18, 3, v1"); a("v_lshl_add_u32 v17, v18, 3, v17"); a("v_lshrrev_b32 v16, 1, v16"); a("v_and_b32 v18, 1, v2")
        for half in range(2):
            a("v_xor_b32 v19, %d, v18" % half); a("v_lshl_or_b32 v19, v19, 1, v16"); a("v_xor_b32 v19, v4, v19")
            a("v_lshl_add_u32 v%d, v19, 5, v17" % (11 + half))
            if half: a("v_add_u32 v12, 512, v12")
    SS = 20480
    PERS = 65536
    NL = 24
    a("s_mul_i32 s22, s20, %d" % (NL * 1024)); a("s_add_u32 s22, s22, %d" % PERS); a("v_lshlrev_b32 v13, 4, v1"); a("v_add_u32 v13, s22, v13")
    def wfr(t, ks):
        idx = t * 20 + ks
        if idx < 64: return ("a", idx * 4)
        if idx < 96: return ("v", 128 + (idx - 64) * 4)
        return ("l", idx - 96)
    def wop(t, tau):
        if t == 5: return ("l", 2 + tau)
        if t == 4 and tau >= 8: return ("l", tau - 8)
        idx = t * 10 + tau
        if idx < 32: return ("a", idx * 8)
        return ("v", 128 + (idx - 32) * 8)
    slots = [(32 if m == 0 else 36, u, hh) for m in range(2) for u in range(3) for hh in range(4)]
    def dma(i):
        if i >= len(slots): return
        srd, u, hh = slots[i]
        for j in range(5):
            a("s_add_u32 m0, s21, %d" % ((i % 3) * SS + j * 4096))
            a("s_mov_b32 s23, %d" % (u * 128 + (hh * 160 + j * 32) * 12288))
            a("buffer_load_dwordx4 v10, s[%d:%d], s23 offen lds" % (srd, srd + 3))
    dma(0); dma(1); dma(2)
    for i in range(24):
        a("s_waitcnt vmcnt(%d)" % (10 if i < 22 else (5 if i == 22 else 0))); a("s_barrier")
        t = i // 4; hh = i % 4
        for k in range(5):
            ks = hh * 5 + k; f = wfr(t, ks)
            off = (i % 3) * SS + k * 4096
            d = 40 + k * 4 if (f[0] != "v" or SM) else f[1]
            a("ds_read_b64_tr_b16 v[%d:%d], v11 offset:%d" % (d, d + 1, off)); a("ds_read_b64_tr_b16 v[%d:%d], v12 offset:%d" % (d + 2, d + 3, off))
        a("s_waitcnt lgkmcnt(0)")
        for k in range(5):
            ks = hh * 5 + k; f = wfr(t, ks); d = 40 + k * 4
            if SM:
                o = wop(t, ks >> 1); ty = ks & 1
                for hb in range(2):
                    for a1 in range(2):
                        src = d + hb * 2 + a1; ri = hb * 4 + 2 * a1 + ty
                        if o[0] == "l": a("ds_write_b32 v13, v%d offset:%d" % (src, (o[1] * 2 + hb) * 1024 + (2 * a1 + ty) * 4))
                        elif o[0] == "a": a("v_accvgpr_write_b32 a%d, v%d" % (o[1] + ri, src))
                        else: a("v_mov_b32 v%d, v%d" % (o[1] + ri, src))
            elif f[0] == "l": a("ds_write_b128 v13, v[%d:%d] offset:%d" % (d, d + 3, f[1] * 1024))
            elif f[0] == "a":
                for r in range(4): a("v_accvgpr_write_b32 a%d, v%d" % (f[1] + r, d + r))
        a("s_waitcnt lgkmcnt(0)"); a("s_barrier")
        dma(i + 3)
    SETS = [52, 64, 76][:S]
    a("v_mul_u32_u24 v9, 12288, v3"); a("v_lshl_add_u32 v9, v2, 4, v9")
    a("s_lshr_b32 s22, s20, 1"); a("s_lshl_b32 s22, s22, 6"); a("s_and_b32 s23, s20, 1"); a("s_lshl_b32 s23, s23, 3"); a("s_add_u32 s22, s22, s23")
    a("v_add_u32 v9, s22, v9")
    a("v_mul_u32_u24 v10, 384, v3"); a("v_lshl_add_u32 v10, v2, 4, v10"); a("v_add_u32 v10, s22, v10")
    a("v_lshlrev_b32 v11, 4, v1")
    SCB = 16384
    a("v_lshrrev_b32 v12, 1, v2"); a("v_lshlrev_b32 v12, 8, v12"); a("v_lshl_add_u32 v12, v3, 5, v12"); a("v_and_b32 v14, 1, v2"); a("v_lshl_add_u32 v12, v14, 4, v12")
    a("s_mul_i32 s22, s20, 1280"); a("s_add_u32 s22, s22, %d" % SCB); a("v_add_u32 v12, s22, v12")
    a("v_lshlrev_b32 v14, 5, v1"); a("v_add_u32 v14, %d, v14" % SCB)
    a("s_mul_i32 s43, s2, 640")
    a("s_mov_b32 s61, 0"); a("s_mov_b32 s62, 0")
    def kseg_loads():
        for tt in range(2):
            for u in range(3):
                a("s_add_u32 s23, s61, %d" % (tt * 16 * 12288 + u * 128))
                a("buffer_load_dwordx2 v[%d:%d], v9, s[52:55], s23 offen" % (40 + (tt * 3 + u) * 2, 41 + (tt * 3 + u) * 2))
    def km_and_prefetch():
        a("s_mov_b32 exec_lo, 0x00ff00ff"); a("s_mov_b32 exec_hi, 0x00ff00ff")
        for u in range(3):
            a("buffer_store_dwordx2 v[%d:%d], v10, s[56:59], s62 offen offset:%d%s" % (16 + 4 * (3 + u), 17 + 4 * (3 + u), u * 128, ST()))
        a("s_mov_b64 exec, -1")
        a("s_add_u32 s61, s61, %d" % (32 * 12288)); a("s_add_u32 s62, s62, %d" % (32 * 3072))
        if M.MEGA:
            if HALF:
                a("s_cmp_lg_u32 s40, 3"); a("s_cbranch_scc1 chA_fk1_ok")
                a("s_lshl_b32 s22, s2, 2"); a("s_add_u32 s22, s22, %d" % (F_X + 128))
                fpoll("chA_fk1", None, "s22")
            a("s_add_u32 s22, s40, 1"); a("s_and_b32 s23, s22, 7"); a("s_cmp_lg_u32 s23, 0"); a("s_cbranch_scc1 chA_fk_ok")
            a("s_cmp_ge_u32 s22, 64"); a("s_cbranch_scc1 chA_fk_ok")
            a("s_lshl_b32 s22, s22, 4"); a("s_lshl_b32 s23, s2, 2"); a("s_add_u32 s22, s22, s23"); a("s_add_u32 s22, s22, %d" % F_K)
            fpoll("chA_fk", None, "s22")
        kseg_loads()
    sst(a, 26, 0)
    if M.MEGA:
        a("s_lshl_b32 s22, s2, 2"); a("s_add_u32 s22, s22, %d" % F_K)
        fpoll("chA_fk0", None, "s22")

    sst(a, 28, 0)
    kseg_loads()
    dbg_init(a)
    a("s_mov_b32 s63, 0")
    if SM:
        a("v_lshrrev_b32 v8, 2, v3"); a("v_and_b32 v100, 1, v3"); a("v_lshl_add_u32 v8, v8, 1, v100"); a("v_lshlrev_b32 v8, 4, v8")
        a("v_lshl_add_u32 v8, v2, 7, v8"); a("v_bfe_u32 v100, v3, 1, 1"); a("v_lshl_add_u32 v8, v100, 9, v8")
        a("v_mul_u32_u24 v100, 0xaaaaaa, v100"); a("v_lshlrev_b32 v101, 8, v100"); a("v_and_b32 v102, 0xff, v100"); a("v_or_b32 v100, v101, v102")
        a("v_add_u32 v100, 0x44444444, v100")
        TB = 24576
        a("s_mul_i32 s22, s20, 1536"); a("s_add_u32 s22, s22, %d" % TB)
        a("v_lshlrev_b32 v101, 4, v3"); a("v_lshl_add_u32 v101, v2, 2, v101"); a("v_add_u32 v101, s22, v101")
        a("v_lshrrev_b32 v102, 2, v3"); a("v_lshl_add_u32 v102, v2, 2, v102"); a("v_lshlrev_b32 v102, 4, v102")
        a("v_and_b32 v103, 1, v3"); a("v_lshl_add_u32 v102, v103, 3, v102"); a("v_add_u32 v102, s22, v102")
        suses = [(tau, t) for tau in range(10) for t in range(6) if wop(t, tau)[0] == "l"]
        swbuf = {u: 104 + (n % 3) * 8 for n, u in enumerate(suses)}
        def srd_w(u, issued):
            o = wop(u[1], u[0])[1]
            for hb in range(2):
                a("ds_read_b128 v[%d:%d], v13 offset:%d" % (swbuf[u] + 4 * hb, swbuf[u] + 4 * hb + 3, (o * 2 + hb) * 1024))
            issued.append(("x", u)); issued.append(("w", u))
    a.put("chA_loop")
    if SM:
        pre_issued = []
        for r in range(16, 40): a("v_mov_b32 v%d, 0" % r)
        for n in range(3): srd_w(suses[n], pre_issued)
        pre_issued = []
    gather_mem(a, "chA", SETS, 44, 41, 5, 0, adapt=64 if ADM else None)
    if M.TS:
        a("s_and_b32 s22, s40, 7"); a("s_or_b32 s22, s22, s2"); a("s_or_b32 s22, s22, s20"); a("s_cmp_lg_u32 s22, 0"); a("s_cbranch_scc1 chA_ts")
        a("s_lshr_b32 s23, s40, 1"); a("v_mov_b32 v15, v254"); tstamp(a, "s23"); a("s_add_u32 s23, s23, 48"); tstamp(a, "s23", core=True); a("v_mov_b32 v254, v15"); a.put("chA_ts")
    stamp(a, 0)
    ND = 4
    if SM:
        issued = list(pre_issued)
        def rd_m(tau): a("ds_read_b128 v[%d:%d], v8 offset:%d" % (88 + (tau % 3) * 4, 91 + (tau % 3) * 4, tau * 1024)); issued.append(("m", tau))
        for tau in range(3): rd_m(tau)
        for tau in range(10):
            need = max(i for i, x in enumerate(issued) if (x[0] == "m" and x[1] == tau) or (x[0] == "w" and x[1][0] == tau))
            a("s_waitcnt lgkmcnt(%d)" % min(15, len(issued) - 1 - need))
            mb = "v[%d:%d]" % (88 + (tau % 3) * 4, 91 + (tau % 3) * 4)
            for t in range(6):
                f = wop(t, tau)
                if f[0] == "l": f = ("v", swbuf[(tau, t)])
                a("v_smfmac_f32_16x16x64_bf16 v[%d:%d], %s, %s, v100" % (16 + 4 * t, 19 + 4 * t, mb, reg(f, 8)))
                if (tau, t) in suses:
                    n = suses.index((tau, t))
                    if n + 3 < len(suses): srd_w(suses[n + 3], issued)
            if tau + 3 < 10: rd_m(tau + 3)
        a("s_waitcnt vmcnt(0)")
        a("s_nop 6"); a("s_nop 1")
        stamp(a, 1)
        order = [0, 3, 1, 4, 2, 5]
        for t in order:
            x = 16 + 4 * t
            a("v_add_f32 v%d, v%d, v%d" % (x, x, x + 2)); a("v_add_f32 v%d, v%d, v%d" % (x + 1, x + 1, x + 3))
        for t in order:
            x = 16 + 4 * t
            a("v_cvt_pk_bf16_f32 v%d, v%d, v%d" % (x, x, x + 1))
        for t in order:
            a("ds_write_b32 v101, v%d offset:%d" % (16 + 4 * t, t * 256))
        for t in order:
            a("ds_read_b64_tr_b16 v[%d:%d], v102 offset:%d" % (16 + 4 * t, 17 + 4 * t, t * 256))
        a("s_waitcnt lgkmcnt(0)")
    else:
        NW = 6
        lf = [ks for ks in range(20)]
        uses = []
        for ks in range(20):
            for t in range(6):
                if wfr(t, ks)[0] == "l": uses.append((ks, t))
        wbuf = {u: 104 + (n % NW) * 4 for n, u in enumerate(uses)}
        issued = []
        def rd_m(ks): a("ds_read_b128 v[%d:%d], v8 offset:%d" % (88 + (ks % ND) * 4, 91 + (ks % ND) * 4, ks * 512)); issued.append(("m", ks))
        def rd_w(u): a("ds_read_b128 v[%d:%d], v13 offset:%d" % (wbuf[u], wbuf[u] + 3, wfr(u[1], u[0])[1] * 1024)); issued.append(("w", u))
        wi = 0
        def prefetch(upto_ks):
            nonlocal wi
            while len([x for x in issued if x[0] == "m"]) <= min(19, upto_ks):
                k = len([x for x in issued if x[0] == "m"])
                rd_m(k)
                while wi < len(uses) and uses[wi][0] <= k:
                    rd_w(uses[wi]); wi += 1
        prefetch(ND - 2)
        for ks in range(20):
            lim = ks + ND - 1
            cons = len([u for u in uses if u[0] < ks])
            while lim > ks and len([u for u in uses if u[0] <= min(lim, 19)]) > cons + NW: lim -= 1
            prefetch(lim)
            need = max(i for i, x in enumerate(issued) if (x[0] == "m" and x[1] == ks) or (x[0] == "w" and x[1][0] == ks))
            a("s_waitcnt lgkmcnt(%d)" % min(15, len(issued) - 1 - need))
            mb = "v[%d:%d]" % (88 + (ks % ND) * 4, 91 + (ks % ND) * 4)
            for t in range(6):
                f = wfr(t, ks)
                if f[0] == "l": f = ("v", wbuf[(ks, t)])
                d = "v[%d:%d]" % (16 + 4 * t, 19 + 4 * t)
                a("v_mfma_f32_16x16x32_bf16 %s, %s, %s, %s" % (d, reg(f), mb, "0" if ks == 0 else d))
        a("s_waitcnt vmcnt(0)")
        a("s_nop 6"); a("s_nop 1")
        stamp(a, 1)
        for t in range(6):
            a("v_cvt_pk_bf16_f32 v%d, v%d, v%d" % (16 + 4 * t, 16 + 4 * t, 17 + 4 * t))
            a("v_cvt_pk_bf16_f32 v%d, v%d, v%d" % (17 + 4 * t, 18 + 4 * t, 19 + 4 * t))
        a("s_nop 1")
    SC = 88
    for u in range(3):
        for tile in range(3):
            d = "v[%d:%d]" % (SC + 4 * tile, SC + 3 + 4 * tile)
            A = (16 + 4 * (3 + u)) if tile == 0 else 40 + ((tile - 1) * 3 + u) * 2
            a("v_mfma_f32_16x16x16_bf16 %s, v[%d:%d], v[%d:%d], %s" % (d, A, A + 1, 16 + 4 * u, 17 + 4 * u, "0" if u == 0 else d))
    a("s_mov_b32 exec_lo, 0x00ff00ff"); a("s_mov_b32 exec_hi, 0x00ff00ff")
    a("s_nop 7"); a("s_nop 1")
    a("ds_write_b128 v12, v[%d:%d] offset:256" % (SC + 4, SC + 7))
    a("ds_write_b128 v12, v[%d:%d] offset:768" % (SC + 8, SC + 11))
    a("s_mov_b32 exec_hi, 0")
    a("ds_write_b128 v12, v[%d:%d]" % (SC, SC + 3))
    a("s_mov_b64 exec, -1")
    a("s_waitcnt lgkmcnt(0)"); a("s_barrier")
    stamp(a, 2)
    a("s_cmp_lg_u32 s20, 0"); a("s_cbranch_scc1 chA_rest")
    for w in range(4):
        for hf in range(2):
            a("ds_read_b128 v[%d:%d], v14 offset:%d" % (52 + (w * 2 + hf) * 4, 55 + (w * 2 + hf) * 4, w * 1280 + hf * 16))
    a("v_cmp_gt_u32 vcc, 40, v1")
    a("v_mov_b32 v88, 0xff800000")
    a("s_waitcnt lgkmcnt(4)")
    for j in range(8): a("v_add_f32 v%d, v%d, v%d" % (52 + j, 52 + j, 60 + j))
    a("s_waitcnt lgkmcnt(0)")
    for j in range(8): a("v_add_f32 v%d, v%d, v%d" % (68 + j, 68 + j, 76 + j))
    for j in range(8): a("v_add_f32 v%d, v%d, v%d" % (52 + j, 52 + j, 68 + j))
    V = 52; T = 89
    c = 192 ** -0.5 * 1.4426950408889634
    ch = struct.unpack("<I", struct.pack("<f", c))[0]
    a("v_max3_f32 v%d, v52, v53, v54" % T); a("v_max3_f32 v%d, v55, v56, v57" % (T + 1)); a("v_max3_f32 v%d, v%d, v58, v59" % (T, T)); a("v_max_f32 v%d, v%d, v%d" % (T, T, T + 1))
    a("v_cndmask_b32 v%d, v88, v%d, vcc" % (T, T))
    def xred(op):
        a("s_nop 1")
        a("%s_dpp v%d, v%d, v%d row_ror:8 row_mask:0xf bank_mask:0xf" % (op, T, T, T))
        for sw in ("v_permlane16_swap_b32", "v_permlane32_swap_b32"):
            a("v_mov_b32 v%d, v%d" % (T + 1, T)); a("s_nop 1")
            a("%s v%d, v%d" % (sw, T, T + 1)); a("s_nop 1")
            a("%s v%d, v%d, v%d" % (op, T, T, T + 1))
    xred("v_max_f32")
    a("v_mul_f32 v%d, 0x%08x, v%d" % (T, ch, T)); a("v_mov_b32 v%d, 0x%08x" % (T + 2, ch))
    for j in range(8): a("v_fma_f32 v%d, v%d, v%d, -v%d" % (V + j, V + j, T + 2, T))
    for j in range(8): a("v_exp_f32 v%d, v%d" % (V + j, V + j))
    a("v_mov_b32 v88, 0")
    a("v_add_f32 v%d, v52, v53" % T); a("v_add_f32 v%d, v54, v55" % (T + 1)); a("v_add_f32 v%d, v56, v57" % (T + 3)); a("v_add_f32 v%d, v58, v59" % (T + 4))
    a("v_add_f32 v%d, v%d, v%d" % (T, T, T + 1)); a("v_add_f32 v%d, v%d, v%d" % (T + 3, T + 3, T + 4)); a("v_add_f32 v%d, v%d, v%d" % (T, T, T + 3))
    a("v_cndmask_b32 v%d, v88, v%d, vcc" % (T, T))
    xred("v_add_f32")
    a("v_rcp_f32 v%d, v%d" % (T, T)); a("s_nop 0")
    for j in range(8): a("v_mul_f32 v%d, v%d, v%d" % (V + j, V + j, T))
    for j in range(4): a("v_cvt_pk_bf16_f32 v%d, v%d, v%d" % (60 + j, 52 + 2 * j, 53 + 2 * j))
    a("s_add_u32 s23, s42, s43")
    a("s_mov_b32 exec_hi, 0xff")
    a("buffer_store_dwordx4 v[60:63], v11, s[48:51], s23 offen sc1")
    a("s_mov_b64 exec, -1")
    stamp(a, 3)
    a.put("chA_rest")
    km_and_prefetch()
    a("s_add_u32 s40, s40, 1"); a("s_add_u32 s41, s41, 10240"); a("s_add_u32 s42, s42, 20480")
    a("s_cmp_ge_u32 s40, 64"); a("s_cbranch_scc1 chA_end")
    if ADAPT and ADM: a("s_branch chA_loop")
    else:
        a("s_cmp_lg_u32 s20, 0"); a("s_cbranch_scc1 chA_slp")
        if CFG["slpA0"]: a("s_sleep %d" % CFG["slpA0"])
        a("s_branch chA_loop")
        a.put("chA_slp")
        if CFG["slpA"]: a("s_sleep %d" % CFG["slpA"])
        a("s_branch chA_loop")
    a.put("chA_end")
    if M.TS:
        a("s_or_b32 s22, s2, s20"); a("s_cmp_lg_u32 s22, 0"); a("s_cbranch_scc1 chA_ts2")
        a("s_mov_b32 s23, 32"); tstamp(a, "s23"); a.put("chA_ts2")
    dbg_out(a, 0, 0)
    if M.MEGA:
        a("s_waitcnt vmcnt(0)"); a("s_barrier")
        a("s_cmp_lg_u32 s20, 0"); a("s_cbranch_scc1 chain_fin")
        for r in range(60, 64): a("v_mov_b32 v%d, 0" % r)
        a("s_add_u32 s23, s42, s43")
        a("s_mov_b32 exec_hi, 0xff")
        a("buffer_store_dwordx4 v[60:63], v11, s[48:51], s23 offen sc1")
        a("s_mov_b64 exec, -1")
        a("s_branch chain_fin")
    a("s_branch chain_end")
    a.put("chain_R")
    a("s_sub_u32 s24, s2, 32")
    a("s_mul_i32 s26, s24, 327680"); a("s_mul_i32 s27, s20, 81920"); a("s_add_u32 s26, s26, s27"); a("s_add_u32 s26, s26, %d" % WS_VO)
    srd_from_ptr(a, 32, 12, 81920, add="s26")
    a("s_mul_i32 s26, s20, %d" % (8 * 640)); a("s_lshl_b32 s27, s24, 3"); a("s_add_u32 s26, s26, s27")
    a("s_lshl_b32 s27, s26, 6"); a("s_add_u32 s27, s27, %d" % WS_U); a("s_sub_u32 s28, %d, s27" % (WS_U + 64 * 32 * 40960))
    srd_from_ptr(a, 36, 12, "s28", add="s27")
    a("s_lshl_b32 s27, s26, 4"); a("s_add_u32 s27, s27, %d" % WS_Y); a("s_sub_u32 s28, %d, s27" % (WS_Y + 64 * 32 * 10240))
    srd_from_ptr(a, 52, 12, "s28", add="s27")
    a("v_lshlrev_b32 v9, 4, v1")
    def vfr(tt, ks):
        idx = tt * 20 + ks
        return ("a", idx * 4) if idx < 64 else ("v", 192 + (idx - 64) * 4)
    if M.MEGA:
        a("v_lshlrev_b32 v30, 2, v1"); a("v_lshlrev_b32 v31, 2, v1"); a("v_add_u32 v31, 256, v31")
        a("s_mov_b32 s22, %d" % F_VO)
        fpoll("chR_vo0", 30, "s22"); fpoll("chR_vo1", 31, "s22")
    sst(a, 32, 32)
    for tt in range(4):
        for ks in range(20):
            a("s_mov_b32 s23, %d" % (tt * 20480 + ks * 1024))
            a("buffer_load_dwordx4 %s, v9, s[32:35], s23 offen" % reg(vfr(tt, ks)))
    YLB = 16384
    a("v_and_b32 v10, 7, v3")
    a("v_lshrrev_b32 v14, 3, v3"); a("v_lshl_add_u32 v14, v14, 2, v2")
    a("s_lshl_b32 s22, s20, 10"); a("s_add_u32 s22, s22, %d" % YLB)
    for m in range(5):
        a("v_add_u32 v11, %d, v14" % (8 * m))
        a("v_mul_u32_u24 v12, 52, v11"); a("v_lshrrev_b32 v12, 8, v12")
        a("v_mul_u32_u24 v13, 5, v12"); a("v_sub_u32 v13, v11, v13")
        a("v_max_u32 v13, 1, v13"); a("v_subrev_u32 v13, 1, v13")
        a("v_mul_u32_u24 v%d, 40960, v12" % (16 + m)); a("v_lshl_add_u32 v%d, v13, 4, v%d" % (16 + m, 16 + m))
        a("v_lshl_add_u32 v%d, v10, 6, v%d" % (16 + m, 16 + m))
        a("v_lshlrev_b32 v%d, 7, v12" % (184 + m)); a("v_lshl_add_u32 v%d, v10, 4, v%d" % (184 + m, 184 + m)); a("v_add_u32 v%d, s22, v%d" % (184 + m, 184 + m))
    a("s_mul_i32 s23, s20, 5120"); a("v_lshlrev_b32 v21, 7, v14"); a("v_lshl_add_u32 v21, v10, 4, v21"); a("v_add_u32 v21, s23, v21")
    a("v_lshlrev_b32 v22, 4, v3"); a("v_lshl_add_u32 v22, v2, 3, v22"); a("v_add_u32 v22, s22, v22")
    a("v_lshlrev_b32 v24, 4, v1"); a("v_add_u32 v24, s22, v24")
    a("v_lshrrev_b32 v25, 3, v1"); a("v_mul_u32_u24 v25, 10240, v25"); a("v_and_b32 v11, 7, v1"); a("v_lshl_add_u32 v25, v11, 4, v25")
    RB = 24576
    a("v_lshlrev_b32 v27, 4, v1"); a("v_add_u32 v27, %d, v27" % RB); a("s_lshl_b32 s22, s20, 10"); a("v_add_u32 v26, s22, v27")
    a("s_lshl_b32 s22, s24, 7"); a("v_lshlrev_b32 v28, 4, v3"); a("v_lshl_add_u32 v28, v2, 3, v28"); a("v_add_u32 v28, s22, v28")
    a("s_mov_b32 s61, 0"); a("s_mov_b32 s62, 0")
    MS = [32, 44, 56][:S]; PS = [120, 140, 160][:S]
    def u_loads():
        for m in range(5):
            a("buffer_load_dwordx4 v[%d:%d], v%d, s[36:39], s61 offen" % (100 + 4 * m, 103 + 4 * m, 16 + m))
    if M.TS: a("s_waitcnt vmcnt(0)")
    sst(a, 34, 32)
    if M.MEGA:
        a("v_and_b32 v30, 31, v1"); a("v_lshlrev_b32 v30, 2, v30")
        a("s_mov_b32 s22, %d" % F_U)
        fpoll("chR_fu0", 30, "s22")

    sst(a, 36, 32)
    u_loads()
    dbg_init(a)
    a.put("chR_loop")
    gather_mem(a, "chR", MS, 44, 41, 5, 0, adapt=64 if ADM else None)
    stamp(a, 0)
    def rd(ks): a("ds_read_b128 v[%d:%d], v8 offset:%d" % (84 + (ks % ND) * 4, 87 + (ks % ND) * 4, ks * 512))
    for ks in range(ND - 1): rd(ks)
    for ks in range(20):
        if ks + ND - 1 < 20: rd(ks + ND - 1)
        rem = min(19, ks + ND - 1) - ks
        a("s_waitcnt lgkmcnt(%d)" % rem)
        mb = "v[%d:%d]" % (84 + (ks % ND) * 4, 87 + (ks % ND) * 4)
        for tt in range(4):
            d = "v[%d:%d]" % (68 + 4 * tt, 71 + 4 * tt)
            a("v_mfma_f32_16x16x32_bf16 %s, %s, %s, %s" % (d, mb, reg(vfr(tt, ks)), "0" if ks == 0 else d))
    a("s_nop 7"); a("s_nop 1")
    for tt in range(4):
        a("v_cvt_pk_bf16_f32 v%d, v%d, v%d" % (68 + 4 * tt, 68 + 4 * tt, 69 + 4 * tt))
        a("v_cvt_pk_bf16_f32 v%d, v%d, v%d" % (69 + 4 * tt, 70 + 4 * tt, 71 + 4 * tt))
    a("s_mov_b32 exec_hi, 0")
    for tt in range(4):
        a("ds_write_b64 v22, v[%d:%d] offset:%d" % (68 + 4 * tt, 69 + 4 * tt, tt * 256))
    a("s_mov_b64 exec, -1")
    a("s_waitcnt vmcnt(0) lgkmcnt(0)")
    for m in range(5):
        mask = 0
        for n in range(16):
            for g in range(4):
                if (m * 8 + (n >> 3) * 4 + g) % 5 == 0: mask |= 1 << (g * 16 + n)
        a("s_mov_b32 exec_lo, 0x%x" % (mask & 0xffffffff)); a("s_mov_b32 exec_hi, 0x%x" % (mask >> 32))
        a("ds_read_b128 v[%d:%d], v%d" % (100 + 4 * m, 103 + 4 * m, 184 + m))
    a("s_mov_b64 exec, -1")
    a("ds_read_b128 v[84:87], v24")
    a("s_waitcnt lgkmcnt(0)")
    a("buffer_store_dwordx4 v[84:87], v25, s[52:55], s62 offen%s" % ST())
    stamp(a, 1)
    def issue(k):
        for m in range(5):
            if m < 4: a("buffer_load_dwordx4 v[%d:%d], v21, s[48:51], s42 offen offset:%d sc1" % (PS[k] + 4 * m, PS[k] + 4 * m + 3, m * 1024))
            else:
                a("buffer_load_dwordx4 v[%d:%d], v29, s[48:51], s42 offen sc1" % (PS[k] + 4 * m, PS[k] + 4 * m + 3))
    a("v_add_u32 v29, 4096, v21")
    def succ(k):
        stamp(a, 2)
        for m in range(5):
            d = "v[%d:%d]" % (68 + 4 * (m & 1), 71 + 4 * (m & 1))
            a("v_mfma_f32_16x16x32_bf16 %s, v[%d:%d], v[%d:%d], %s" % (d, 100 + 4 * m, 103 + 4 * m, PS[k] + 4 * m, PS[k] + 4 * m + 3, "0" if m < 2 else d))
    spoll(a, "chRp", S, 5, issue, lambda k: list(range(PS[k], PS[k] + 20)), succ, CFG["slpR"], CFG["gap"], adapt=65)
    a("s_nop 7"); a("s_nop 1")
    for r in range(4): a("v_add_f32 v%d, v%d, v%d" % (68 + r, 68 + r, 72 + r))
    a("ds_write_b128 v26, v[68:71]")
    a("s_waitcnt lgkmcnt(0)"); a("s_barrier")
    a("s_cmp_lg_u32 s20, 0"); a("s_cbranch_scc1 chR_next")
    for w in range(4):
        a("ds_read_b128 v[%d:%d], v27 offset:%d" % (68 + 8 * w, 71 + 8 * w, w * 1024))
        a("ds_read_b128 v[%d:%d], v27 offset:%d" % (72 + 8 * w, 75 + 8 * w, w * 1024 + 40 * 16))
    a("s_waitcnt lgkmcnt(0)")
    for st in (16, 8, 4):
        for r in range(st): a("v_add_f32 v%d, v%d, v%d" % (68 + r, 68 + r, 68 + st + r))
    a("v_cvt_pk_bf16_f32 v68, v68, v69"); a("v_cvt_pk_bf16_f32 v69, v70, v71")
    a("v_min_u32 v68, 0xfffffffe, v68"); a("v_min_u32 v69, 0xfffffffe, v69")
    a("s_add_u32 s23, s41, 10240")
    a("s_mov_b32 exec_lo, 0x00ff00ff"); a("s_mov_b32 exec_hi, 0")
    a("buffer_store_dwordx2 v[68:69], v28, s[44:47], s23 offen sc1")
    a("s_mov_b64 exec, -1")
    stamp(a, 3)
    a.put("chR_next")
    a("s_add_u32 s40, s40, 1"); a("s_add_u32 s41, s41, 10240"); a("s_add_u32 s42, s42, 20480"); a("s_add_u32 s61, s61, %d" % (32 * 40960)); a("s_add_u32 s62, s62, %d" % (32 * 10240))
    a("s_cmp_ge_u32 s40, 64"); a("s_cbranch_scc1 chR_end")
    if M.MEGA:
        if HALF:
            a("s_cmp_lg_u32 s40, 4"); a("s_cbranch_scc1 chR_fu1_ok")
            a("s_mov_b32 s22, %d" % F_X)
            fpoll("chR_fu1", 30, "s22")
        a("s_and_b32 s23, s40, 7"); a("s_cmp_lg_u32 s23, 0"); a("s_cbranch_scc1 chR_fu_ok")
        a("s_lshl_b32 s22, s40, 4"); a("s_add_u32 s22, s22, %d" % F_U)
        fpoll("chR_fu", 30, "s22")
    u_loads()
    if CFG["slpRm"] and not (ADAPT and ADM): a("s_sleep %d" % CFG["slpRm"])
    a("s_branch chR_loop")
    a.put("chR_end")
    dbg_out(a, 32, 32)
    if M.MEGA:
        if os.environ.get('PAP', '1') == '1':
            assert S == 1
            if os.environ.get('STT', '1') == '1': a("s_branch tail_static")
        else:
            a("s_waitcnt vmcnt(0)")
            spoll(a, "chRz", 1, 5, issue, lambda k: list(range(PS[k], PS[k] + 20)), lambda k: None, 4, 0)
            a("s_barrier")
            a("s_cmp_lg_u32 s20, 0"); a("s_cbranch_scc1 chain_fin")
            a("v_mov_b32 v68, 0"); a("v_mov_b32 v69, 0")
            a("s_add_u32 s23, s41, 10240")
            a("s_mov_b32 exec_lo, 0x00ff00ff"); a("s_mov_b32 exec_hi, 0")
            a("buffer_store_dwordx2 v[68:69], v28, s[44:47], s23 offen sc1")
            a("s_mov_b64 exec, -1")
        a.put("chain_fin"); a("s_branch task_next")
        a.put("chain_end"); a("s_branch mega_exit")
        return K, 512, 256
    a.put("chain_end"); a("s_endpgm")
    return K, 512, 256
```

```python
from gen import *
from gen2 import *
import gen3, gen4, gen5, os
from gen3 import SPIN
POST = True
NT0 = 512
HALF = os.environ.get("HALF", "1") == "1"
FINE = os.environ.get("FINE", "1") == "1"
XQ = os.environ.get("XQ", "1") == "1"
LAG = [int(x) for x in os.environ.get("LAG", "2,3,6,8").split(",")]

WSLP = int(os.environ.get('WSLP', '32'))
WT = int(os.environ.get('WT', '6'))
WTR = int(os.environ.get('WTR', '64'))
PAP = os.environ.get('PAP', '1') == '1'
FLN = os.environ.get('FLN', '1') == '1'

def signal_mid(a):
    a("v_mov_b32 v251, 0"); a("s_mov_b64 exec, 1")
    a("buffer_store_dword v251, off, s[92:95], s99 sc1")
    a("s_mov_b64 exec, -1")

def wpoll(a, lab, srd, s_off, cnt, shift, slp=None, vb=250):
    n = (cnt + 63) // 64
    for j in range(n):
        a("v_and_b32 v%d, 63, v0" % vb); a("v_add_u32 v%d, %d, v%d" % (vb, 64 * j, vb)); a("v_min_u32 v%d, %d, v%d" % (vb, cnt - 1, vb)); a(("v_lshlrev_b32 v%d, %d, v%d" % (vb + 2 + j, shift, vb)) if shift < 32 else ("v_mul_u32_u24 v%d, %d, v%d" % (vb + 2 + j, shift, vb)))
    a("s_mov_b32 s60, 0")
    a.put(lab)
    for j in range(n): a("buffer_load_dword v%d, v%d, s[%d:%d], %s offen sc1" % (vb + j, vb + 2 + j, srd, srd + 3, s_off))
    a("s_waitcnt vmcnt(0)")
    if n == 2: a("v_max_u32 v%d, v%d, v%d" % (vb, vb, vb + 1))
    a("v_cmp_ne_u32 vcc, -1, v%d" % vb); a("s_nop 1"); a("s_cmp_eq_u64 vcc, exec"); a("s_cbranch_scc1 %s_ok" % lab)
    if slp is None and WT:
        a("s_sleep %d" % WT); a("s_cmp_ge_u32 s97, %d" % (64 + NT0 + 46 * WTR)); a("s_cbranch_scc1 %s_ns" % lab); a("s_sleep %d" % (WSLP - WT)); a.put(lab + "_ns")
    else: a("s_sleep %d" % (slp or WSLP))
    a("s_add_u32 s60, s60, 1"); a("s_cmp_gt_u32 s60, %d" % SPIN); a("s_cbranch_scc1 mega_exit")
    a("s_branch %s" % lab)
    a.put(lab + "_ok")

def tpoll(a, lab, srd, cnt, shift, vb):
    a("s_cmp_lg_u32 s100, 0"); a("s_cbranch_scc1 %s_skip" % lab)
    wpoll(a, lab, srd, "s99", cnt, shift, None, vb)
    a.put(lab + "_skip"); a("s_barrier")

def tpoll40(a, lab, srd, vb):
    a("s_cmp_lg_u32 s100, 0"); a("s_cbranch_scc1 %s_ok" % lab)
    a("v_and_b32 v%d, 63, v0" % vb); a("v_min_u32 v%d, 39, v%d" % (vb, vb)); a("v_lshlrev_b32 v%d, 2, v%d" % (vb + 2, vb))
    a("v_add_u32 v%d, 48, v%d" % (vb + 1, vb + 2)); a("v_cmp_lt_u32 vcc, 19, v%d" % vb); a("s_nop 1"); a("v_cndmask_b32 v%d, v%d, v%d, vcc" % (vb + 2, vb + 2, vb + 1))
    a("s_mov_b32 s60, 0")
    a.put(lab)
    a("buffer_load_dword v%d, v%d, s[%d:%d], s99 offen sc1" % (vb, vb + 2, srd, srd + 3))
    a("s_waitcnt vmcnt(0)")
    a("v_cmp_ne_u32 vcc, -1, v%d" % vb); a("s_nop 1"); a("s_cmp_eq_u64 vcc, exec"); a("s_cbranch_scc1 %s_ok" % lab)
    if WT:
        a("s_sleep %d" % WT); a("s_cmp_ge_u32 s97, %d" % (64 + NT0 + 46 * WTR)); a("s_cbranch_scc1 %s_ns" % lab); a("s_sleep %d" % (WSLP - WT)); a.put(lab + "_ns")
    else: a("s_sleep %d" % WSLP)
    a("s_add_u32 s60, s60, 1"); a("s_cmp_gt_u32 s60, %d" % SPIN); a("s_cbranch_scc1 mega_exit")
    a("s_branch %s" % lab)
    a.put(lab + "_ok"); a("s_barrier")

def ticket(a, off, sdst):
    a("s_cmp_lg_u32 s100, 0"); lab = a.label("tk"); a("s_cbranch_scc1 %s" % lab)
    a("v_mov_b32 v251, 1"); a("s_mov_b32 s23, %s" % off); a("s_mov_b64 exec, 1")
    a("buffer_atomic_add v251, off, s[92:95], s23 sc0 sc1")
    a("s_waitcnt vmcnt(0)")
    a("v_mov_b32 v252, 0"); a("ds_write_b32 v252, v251"); a("s_waitcnt lgkmcnt(0)")
    a("s_mov_b64 exec, -1")
    a.put(lab)
    a("s_barrier")
    a("v_mov_b32 v252, 0"); a("ds_read_b32 v251, v252"); a("s_waitcnt lgkmcnt(0)"); a("s_nop 0")
    a("v_readfirstlane_b32 s%d, v251" % sdst); a("s_nop 3")
    a("s_barrier")

TSR = int(os.environ.get("TSR", "55"))
def wstamp(a, which):
    if not M.TS: return
    lab = a.label("ws")
    a("s_sub_u32 s22, s97, %d" % (64 + NT0 + (46 if FINE else 20) * TSR)); a("s_cmp_ge_u32 s22, %d" % (46 if FINE else 20)); a("s_cbranch_scc1 %s" % lab)
    a("s_cmp_lg_u32 s100, 0"); a("s_cbranch_scc1 %s" % lab)
    if FINE: a("s_mul_i32 s22, s22, 28"); a("s_lshr_b32 s22, s22, 6")
    a("s_lshl_b32 s23, s22, 3"); a("s_add_u32 s23, s23, %d" % (96 + 4 * which)); tstamp(a, "s23")
    a.put(lab)
def gen_ln2m(a):
    a.put("ln2_kernel_entry")
    a("s_load_dwordx2 s[12:13], s[0:1], %d" % KA["ws"])
    a("s_waitcnt lgkmcnt(0)")
    srd_from_ptr(a, 32, 12, 2048 * 2560, add=hex(WS_X1))
    srd_from_ptr(a, 36, 12, 0x2000000)
    a("s_mov_b32 s24, s2"); a("s_mov_b32 s25, 8")
    a.put("ln2_lp")
    gen_ln_body(a, "ln2", True, 32, 36, WS_H2, 3, 4, 24)
    a("s_add_u32 s24, s24, 1"); a("s_sub_u32 s25, s25, 1"); a("s_cmp_lg_u32 s25, 0"); a("s_cbranch_scc1 ln2_lp")
    a("s_branch task_done")

def gen_mega(a):
    K = "mega_kernel"
    M.MEGA = True; M.signal_mid = staticmethod(signal_mid); M.tpoll = staticmethod(tpoll); M.tpoll40 = staticmethod(tpoll40)
    kernel_begin(a, K)
    a("s_cmp_ge_u32 s2, 256"); a("s_cbranch_scc1 mega_exit2")
    a("s_load_dwordx2 s[12:13], s[0:1], %d" % KA["ws"])
    a("v_lshrrev_b32 v4, 6, v0"); a("s_nop 0"); a("v_readfirstlane_b32 s100, v4")
    a("s_waitcnt lgkmcnt(0)")
    srd_from_ptr(a, 92, 12, 0x10000)
    srd_from_ptr(a, 88, 12, (WS_P + 65 * 20480 - WS_MEM) if PAP else 66 * 10240, add=hex(WS_MEM))
    if M.TS:
        a("s_load_dwordx2 s[14:15], s[0:1], %d" % KA["dbg"]); a("s_waitcnt lgkmcnt(0)")
        srd_from_ptr(a, 80, 14, 256)
    if os.environ.get("ROLE", "static") == "static": a("s_mov_b32 s96, s2")
    elif os.environ.get("ROLE", "").startswith("m"):
        a("s_getreg_b32 s22, hwreg(HW_REG_XCC_ID)"); a("s_and_b32 s22, s22, 15"); a("s_lshr_b32 s22, %s, s22" % os.environ["ROLE"][1:]); a("s_and_b32 s22, s22, 1")
        a("s_mov_b32 s96, 1000"); a("s_cmp_eq_u32 s22, 0"); a("s_cbranch_scc1 role_skip")
        ticket(a, WS_TKT, 96)
        a.put("role_skip")
    else: ticket(a, WS_TKT, 96)
    a("s_mov_b32 s101, 0")
    if M.TS:
        a("s_cmp_lg_u32 s96, 0"); a("s_cbranch_scc1 ts_a"); a("s_mov_b32 s23, 36"); tstamp(a, "s23"); a.put("ts_a")
    if M.TS:
        a("s_cmp_lg_u32 s100, 0"); a("s_cbranch_scc1 ts_hw")
        a("s_getreg_b32 s22, hwreg(HW_REG_XCC_ID)"); a("s_getreg_b32 s23, hwreg(HW_REG_HW_ID)")
        a("v_mov_b32 v250, s22"); a("v_mov_b32 v251, s23"); a("s_lshl_b32 s22, s96, 3"); a("s_add_u32 s22, s22, 0x4000")
        a("s_mov_b64 exec, 1"); a("buffer_store_dwordx2 v[250:251], off, s[92:95], s22"); a("s_mov_b64 exec, -1")
        a.put("ts_hw")
    if XQ:
        a("s_mov_b32 s2, s96"); a("s_mov_b32 s97, 0x7fffffff")
        a("s_cmp_lt_u32 s96, 32"); a("s_cbranch_scc1 chain_entry")
        a("s_cmp_ge_u32 s96, 160"); a("s_cbranch_scc1 task_take")
        a("s_cmp_lt_u32 s96, 112"); a("s_cselect_b32 s101, 1, 0")
        a("s_sub_u32 s2, s96, 32"); a("s_lshl_b32 s98, s2, 2"); a("s_add_u32 s98, s98, %d" % F_VO); a("s_branch vo_kernel_entry")
    else:
        a("s_cmp_ge_u32 s96, 112"); a("s_cbranch_scc1 task_take")
        a("s_mov_b32 s2, s96"); a("s_mov_b32 s97, 0x7fffffff")
        a("s_cmp_lt_u32 s96, 32"); a("s_cbranch_scc1 chain_entry")
        a("s_sub_u32 s2, s96, 32"); a("s_lshl_b32 s98, s2, 2"); a("s_add_u32 s98, s98, %d" % F_VO); a("s_mov_b32 s101, 1"); a("s_branch vo_kernel_entry")
    a.put("task_done")
    a("s_mov_b64 exec, -1")
    a("s_waitcnt vmcnt(0) lgkmcnt(0)"); a("s_barrier")
    wstamp(a, 1)
    a("s_cmp_lg_u32 s100, 0"); a("s_cbranch_scc1 task_take")
    a("v_mov_b32 v251, 0"); a("s_mov_b64 exec, 1")
    a("buffer_store_dword v251, off, s[92:95], s98 sc1")
    a("s_mov_b64 exec, -1")
    a("s_branch task_take")
    a.put("task_next")
    a("s_mov_b64 exec, -1")
    a("s_waitcnt vmcnt(0) lgkmcnt(0)"); a("s_barrier")
    a.put("task_take")
    a("s_cmp_eq_u32 s101, 0"); a("s_cbranch_scc1 task_take2")
    a("s_mov_b32 s101, 0"); a("s_mov_b32 s2, s96"); a("s_branch chain_entry")
    a.put("task_take2")
    if XQ:
        assert HALF
        a("s_cmp_lt_u32 s96, 112"); a("s_cbranch_scc1 tq_post")
        a("s_cmp_ge_u32 s96, 1000"); a("s_cbranch_scc1 tq_x")
        ticket(a, WS_TKT + 128, 97)
        a("s_cmp_lt_u32 s97, 64"); a("s_cbranch_scc1 task_l1")
        a("s_mov_b32 s96, 1000")
        a.put("tq_x")
        a("s_cmp_ge_u32 s96, 1008"); a("s_cbranch_scc1 tq_post")
        a("s_getreg_b32 s22, hwreg(HW_REG_XCC_ID)"); a("s_add_u32 s22, s22, s96"); a("s_and_b32 s61, s22, 7")
        a("s_lshl_b32 s62, s61, 2"); a("s_add_u32 s62, s62, %d" % WS_TKT)
        ticket(a, "s62", 97)
        a("s_cmp_lt_u32 s97, 72"); a("s_cbranch_scc1 tq_go")
        a("s_add_u32 s96, s96, 1"); a("s_branch tq_x")
        a.put("tq_go")
        a("s_mov_b32 s22, s97"); a("s_lshr_b32 s62, s22, 3")
        a("s_bfe_u32 s23, s22, 0x20001"); a("s_lshl_b32 s23, s23, 3"); a("s_add_u32 s23, s23, s61")
        a("s_lshl_b32 s23, s23, 1"); a("s_and_b32 s22, s22, 1"); a("s_add_u32 s23, s23, s22")
        a("s_mov_b32 s97, 100")
        a("s_cmp_ge_u32 s62, 2"); a("s_cbranch_scc1 tq_full")
        a("s_lshl_b32 s24, s62, 6"); a("s_add_u32 s24, s24, s23"); a("s_branch task_h_in")
        a.put("tq_full")
        a("s_sub_u32 s62, s62, 1"); a("s_lshl_b32 s24, s62, 6"); a("s_add_u32 s24, s24, s23"); a("s_branch task_t")
        a.put("tq_post")
        ticket(a, WS_TKT + 64, 97)
        a("s_add_u32 s97, s97, %d" % (64 + NT0)); a("s_branch task_post")
    ticket(a, WS_TKT + 128, 97)
    a("s_cmp_lt_u32 s97, 8"); a("s_cbranch_scc1 task_l1")
    a("s_cmp_ge_u32 s97, 56"); a("s_cbranch_scc1 task_nv")
    a("s_add_u32 s2, s97, 72"); a("s_lshl_b32 s98, s2, 2"); a("s_add_u32 s98, s98, %d" % F_VO); a("s_branch vo_kernel_entry")
    a.put("task_nv")
    a("s_sub_u32 s97, s97, 48")
    RS = 20 if NT0 == 512 else 28
    if FINE: RS = 46
    if HALF:
        a("s_cmp_lt_u32 s97, 64"); a("s_cbranch_scc1 task_l1")
        a("s_sub_u32 s24, s97, 64"); a("s_cmp_ge_u32 s24, 128"); a("s_cbranch_scc1 task_nh")
        a.put("task_h_in")
        a("s_cmp_lg_u32 s100, 0"); a("s_cbranch_scc1 task_h_go")
        a("s_mov_b32 s22, %d" % F_L1)
        wpoll(a, "w_h", 92, "s22", 8, 2, 8)
        a.put("task_h_go"); a("s_barrier")
        a("s_lshr_b32 s2, s24, 1")
        a("s_and_b32 s22, s2, 31"); a("s_lshl_b32 s22, s22, 2"); a("s_cmp_ge_u32 s2, 32"); a("s_cbranch_scc1 task_h1")
        a("s_add_u32 s98, s22, %d" % F_U); a("s_add_u32 s99, s22, %d" % F_K); a("s_add_u32 s23, s22, %d" % F_Q); a("s_branch task_h2")
        a.put("task_h1")
        a("s_add_u32 s98, s22, %d" % F_X); a("s_add_u32 s99, s22, %d" % (F_X + 128)); a("s_add_u32 s23, s22, %d" % (F_X + 256))
        a.put("task_h2")
        a("s_bitcmp1_b32 s24, 0"); a("s_cbranch_scc0 t2h_kernel_entry")
        a("s_mov_b32 s98, s23"); a("s_branch t1h_kernel_entry")
        a.put("task_nh")
        a("s_sub_u32 s97, s97, 64")
    a("s_cmp_ge_u32 s97, %d" % (64 + NT0)); a("s_cbranch_scc1 task_post")
    a("s_sub_u32 s24, s97, 64")
    a("s_cmp_ge_u32 s97, 64"); a("s_cbranch_scc1 task_t")
    a.put("task_l1")
    a("s_mov_b32 s2, s97"); a("s_lshl_b32 s98, s97, 2"); a("s_add_u32 s98, s98, %d" % F_L1); a("s_branch ln1_kernel_entry")
    a.put("task_t")
    a("s_cmp_lg_u32 s100, 0"); a("s_cbranch_scc1 task_t_go")
    a("s_lshr_b32 s22, s24, 6"); a("s_lshl_b32 s22, s22, 5"); a("s_add_u32 s22, s22, %d" % F_L1)
    wpoll(a, "w_t", 92, "s22", 8, 2, 8)
    a.put("task_t_go"); a("s_barrier")
    a("s_lshr_b32 s22, s24, 6"); a("s_bfe_u32 s23, s24, 0x50001"); a("s_lshl_b32 s2, s22, 5"); a("s_add_u32 s2, s2, s23")
    a("s_lshl_b32 s22, s2, 2")
    a("s_bitcmp1_b32 s24, 0"); a("s_cbranch_scc1 task_t1")
    a("s_add_u32 s98, s22, %d" % F_U); a("s_branch t2_kernel_entry")
    a.put("task_t1")
    a("s_add_u32 s98, s22, %d" % F_Q); a("s_add_u32 s99, s22, %d" % F_K); a("s_branch t1_kernel_entry")
    a.put("task_post")
    if M.TS:
        a("s_cmp_lg_u32 s97, %d" % (64 + NT0)); a("s_cbranch_scc1 ts_b"); a("s_mov_b32 s23, 40"); tstamp(a, "s23"); a.put("ts_b")
    if not POST:
        a("s_branch mega_exit")
    elif FINE:
        FPO = WS_FLG + 24576; FF1 = WS_FLG + 8192; FDUM = WS_FLG + 13312
        a("s_sub_u32 s22, s97, %d" % (64 + NT0)); a("s_mul_i32 s24, s22, 1425"); a("s_lshr_b32 s24, s24, 16")
        a("s_mul_i32 s23, s24, 46"); a("s_sub_u32 s25, s22, s23")
        a("s_cmp_ge_u32 s24, %d" % (64 + LAG[3])); a("s_cbranch_scc1 mega_exit")
        a("s_cmp_ge_u32 s25, 41"); a("s_cbranch_scc1 task_f2")
        a("s_cmp_ge_u32 s25, 29"); a("s_cbranch_scc1 task_f1")
        a("s_cmp_ge_u32 s25, 28"); a("s_cbranch_scc1 task_ln2")
        a("s_cmp_ge_u32 s25, 8"); a("s_cbranch_scc1 task_po")
        a("s_cmp_ge_u32 s24, 64"); a("s_cbranch_scc1 task_take")
        a("s_lshl_b32 s2, s24, 3"); a("s_add_u32 s2, s2, s25"); a("s_lshl_b32 s98, s2, 2"); a("s_add_u32 s98, s98, %d" % F_PA)
        a("s_cmp_lg_u32 s100, 0"); a("s_cbranch_scc1 task_pa_go")
        a("s_lshr_b32 s22, s24, 3"); a("s_lshl_b32 s22, s22, 7"); a("s_add_u32 s22, s22, %d" % F_Q)
        wpoll(a, "w_pa1", 92, "s22", 32, 2)
        if HALF:
            a("s_cmp_ge_u32 s24, 8"); a("s_cbranch_scc1 w_pa1x_ok")
            a("s_mov_b32 s22, %d" % (F_X + 256))
            wpoll(a, "w_pa1x", 92, "s22", 32, 2)
        a.put("task_pa_go")
        if PAP: a("s_add_u32 s99, s24, 1"); a("s_mul_i32 s99, s99, 20480"); a("s_mul_i32 s22, s25, 2560"); a("s_add_u32 s99, s99, s22"); a("s_add_u32 s99, s99, %d" % (WS_P - WS_MEM))
        else: a("s_add_u32 s99, s24, 2"); a("s_mul_i32 s99, s99, 10240")
        wstamp(a, 0); a("s_barrier"); a("s_branch pattn_kernel_entry")
        a.put("task_po")
        a("s_sub_u32 s24, s24, %d" % LAG[0]); a("s_cmp_ge_u32 s24, 64"); a("s_cbranch_scc1 task_take")
        a("s_sub_u32 s25, s25, 8"); a("s_lshl_b32 s2, s24, 5"); a("s_add_u32 s2, s2, s25")
        a("s_lshl_b32 s98, s2, 2"); a("s_add_u32 s98, s98, %d" % FPO)
        a("s_cmp_lg_u32 s100, 0"); a("s_cbranch_scc1 task_po_go")
        a("s_add_u32 s22, s24, %d" % (1 if PAP else 2)); a("s_mul_i32 s22, s22, 10240")
        wpoll(a, "w_po", 88, "s22", 80, 7)
        a.put("task_po_go"); a("s_lshl_b32 s99, s24, 5"); a("s_add_u32 s99, s99, %d" % F_PA); wstamp(a, 0); a("s_barrier"); a("s_branch pout_kernel_entry")
        a.put("task_ln2")
        if FLN: a("s_branch task_take")
        a("s_sub_u32 s24, s24, %d" % LAG[1]); a("s_cmp_ge_u32 s24, 64"); a("s_cbranch_scc1 task_take")
        a("s_mov_b32 s2, s24"); a("s_lshl_b32 s98, s24, 2"); a("s_add_u32 s98, s98, %d" % F_L2)
        a("s_cmp_lg_u32 s100, 0"); a("s_cbranch_scc1 task_ln2_go")
        a("s_lshl_b32 s22, s24, 7"); a("s_add_u32 s22, s22, %d" % FPO)
        wpoll(a, "w_ln2", 92, "s22", 20, 2)
        a.put("task_ln2_go"); wstamp(a, 0); a("s_barrier"); a("s_branch ln2_kernel_entry")
        a.put("task_f1")
        a("s_sub_u32 s24, s24, %d" % LAG[2]); a("s_cmp_ge_u32 s24, 64"); a("s_cbranch_scc1 task_take")
        a("s_sub_u32 s25, s25, 29"); a("s_and_b32 s22, s24, 1"); a("s_mul_i32 s22, s22, 12"); a("s_add_u32 s25, s25, s22")
        a("s_lshr_b32 s24, s24, 1"); a("s_lshl_b32 s2, s24, 5"); a("s_add_u32 s2, s2, s25")
        a("s_lshl_b32 s98, s2, 2"); a("s_add_u32 s98, s98, %d" % FF1)
        if FLN: a("s_lshl_b32 s99, s24, 8"); a("s_add_u32 s99, s99, %d" % FPO)
        else: a("s_lshl_b32 s99, s24, 3"); a("s_add_u32 s99, s99, %d" % F_L2)
        a.put("task_f1_go"); wstamp(a, 0); a("s_barrier"); a("s_branch ffn1_kernel_entry")
        a.put("task_f2")
        a("s_sub_u32 s24, s24, %d" % LAG[3]); a("s_cmp_ge_u32 s24, 64"); a("s_cbranch_scc1 task_take")
        a("s_sub_u32 s25, s25, 41"); a("s_and_b32 s22, s24, 1"); a("s_mul_i32 s22, s22, 5"); a("s_add_u32 s25, s25, s22")
        a("s_lshr_b32 s24, s24, 1"); a("s_lshl_b32 s2, s24, 4"); a("s_add_u32 s2, s2, s25")
        a("s_mov_b32 s98, %d" % FDUM)
        a("s_lshl_b32 s99, s24, 7"); a("s_add_u32 s99, s99, %d" % FF1)
        a.put("task_f2_go"); wstamp(a, 0); a("s_barrier"); a("s_branch ffn2_kernel_entry")
    else:
        a("s_sub_u32 s22, s97, %d" % (64 + NT0)); a("s_mul_i32 s24, s22, %d" % (3277 if RS == 20 else 2341)); a("s_lshr_b32 s24, s24, 16")
        a("s_mul_i32 s23, s24, %d" % RS); a("s_sub_u32 s25, s22, s23")
        a("s_cmp_ge_u32 s24, 74"); a("s_cbranch_scc1 mega_exit")
        if RS == 28:
            a("s_cmp_lt_u32 s25, 20"); a("s_cbranch_scc1 task_np")
            a("s_lshl_b32 s24, s24, 3"); a("s_add_u32 s24, s24, s25"); a("s_add_u32 s24, s24, %d" % (NT0 - 20))
            a("s_cmp_ge_u32 s24, 512"); a("s_cbranch_scc1 task_take")
            a("s_branch task_t")
            a.put("task_np")
        a("s_cmp_ge_u32 s25, 14"); a("s_cbranch_scc1 task_ffn")
        a("s_cmp_ge_u32 s25, 13"); a("s_cbranch_scc1 task_ln2")
        a("s_cmp_ge_u32 s25, 8"); a("s_cbranch_scc1 task_po")
        a("s_cmp_ge_u32 s24, 64"); a("s_cbranch_scc1 task_take")
        a("s_lshl_b32 s2, s24, 3"); a("s_add_u32 s2, s2, s25"); a("s_lshl_b32 s98, s2, 2"); a("s_add_u32 s98, s98, %d" % F_PA)
        a("s_cmp_lg_u32 s100, 0"); a("s_cbranch_scc1 task_pa_go")
        a("s_lshr_b32 s22, s24, 3"); a("s_lshl_b32 s22, s22, 7"); a("s_add_u32 s22, s22, %d" % F_Q)
        wpoll(a, "w_pa1", 92, "s22", 32, 2)
        if HALF:
            a("s_cmp_ge_u32 s24, 8"); a("s_cbranch_scc1 w_pa1x_ok")
            a("s_mov_b32 s22, %d" % (F_X + 256))
            wpoll(a, "w_pa1x", 92, "s22", 32, 2)
        a("s_add_u32 s22, s24, 2"); a("s_mul_i32 s22, s22, 10240")
        wpoll(a, "w_pa2", 88, "s22", 80, 7)
        a.put("task_pa_go"); wstamp(a, 0); a("s_barrier"); a("s_branch pattn_kernel_entry")
        a.put("task_po")
        a("s_sub_u32 s24, s24, 1"); a("s_cmp_ge_u32 s24, 64"); a("s_cbranch_scc1 task_take")
        a("s_sub_u32 s25, s25, 8"); a("s_mul_i32 s2, s24, 5"); a("s_add_u32 s2, s2, s25")
        a("s_lshl_b32 s98, s24, 5"); a("s_lshl_b32 s22, s25, 2"); a("s_add_u32 s98, s98, s22"); a("s_add_u32 s98, s98, %d" % F_PO)
        a("s_cmp_lg_u32 s100, 0"); a("s_cbranch_scc1 task_po_go")
        a("s_lshl_b32 s22, s24, 5"); a("s_add_u32 s22, s22, %d" % F_PA)
        wpoll(a, "w_po", 92, "s22", 8, 2)
        a.put("task_po_go"); wstamp(a, 0); a("s_barrier"); a("s_branch pout_kernel_entry")
        a.put("task_ln2")
        a("s_sub_u32 s24, s24, 2"); a("s_cmp_ge_u32 s24, 64"); a("s_cbranch_scc1 task_take")
        a("s_mov_b32 s2, s24"); a("s_lshl_b32 s98, s24, 2"); a("s_add_u32 s98, s98, %d" % F_L2)
        a("s_cmp_lg_u32 s100, 0"); a("s_cbranch_scc1 task_ln2_go")
        a("s_lshl_b32 s22, s24, 5"); a("s_add_u32 s22, s22, %d" % F_PO)
        wpoll(a, "w_ln2", 92, "s22", 5, 2)
        a.put("task_ln2_go"); wstamp(a, 0); a("s_barrier"); a("s_branch ln2_kernel_entry")
        a.put("task_ffn")
        a("s_cmp_lt_u32 s24, 10"); a("s_cbranch_scc1 task_take")
        a("s_sub_u32 s24, s24, 10"); a("s_mul_i32 s24, s24, 6"); a("s_add_u32 s24, s24, s25"); a("s_sub_u32 s24, s24, 14")
        a("s_mul_i32 s25, s24, 1366"); a("s_lshr_b32 s25, s25, 16")
        a("s_mul_i32 s22, s25, 48"); a("s_sub_u32 s24, s24, s22")
        a("s_cmp_ge_u32 s24, 44"); a("s_cbranch_scc1 task_take")
        a("s_cmp_ge_u32 s24, 24"); a("s_cbranch_scc1 task_f2")
        a("s_lshl_b32 s2, s24, 3"); a("s_add_u32 s2, s2, s25")
        a("s_lshl_b32 s98, s25, 7"); a("s_lshl_b32 s22, s24, 2"); a("s_add_u32 s98, s98, s22"); a("s_add_u32 s98, s98, %d" % F_F1)
        a("s_cmp_lg_u32 s100, 0"); a("s_cbranch_scc1 task_f1_go")
        a("s_lshl_b32 s22, s25, 5"); a("s_add_u32 s22, s22, %d" % F_L2)
        wpoll(a, "w_f1", 92, "s22", 8, 2)
        a.put("task_f1_go"); wstamp(a, 0); a("s_barrier"); a("s_branch ffn1_kernel_entry")
        a.put("task_f2")
        a("s_sub_u32 s24, s24, 24"); a("s_lshl_b32 s2, s25, 1")
        a("s_cmp_lt_u32 s24, 10"); a("s_cbranch_scc1 task_f2a")
        a("s_sub_u32 s24, s24, 10"); a("s_add_u32 s2, s2, 1")
        a.put("task_f2a")
        a("s_lshl_b32 s22, s24, 4"); a("s_add_u32 s2, s2, s22")
        a("s_mov_b32 s98, %d" % (F_F1 + 2048))
        a("s_cmp_lg_u32 s100, 0"); a("s_cbranch_scc1 task_f2_go")
        a("s_lshl_b32 s22, s25, 7"); a("s_add_u32 s22, s22, %d" % F_F1)
        wpoll(a, "w_f2", 92, "s22", 24, 2)
        a.put("task_f2_go"); wstamp(a, 0); a("s_barrier"); a("s_branch ffn2_kernel_entry")
    a.put("mega_exit")
    if M.TS:
        a("s_cmp_ge_u32 s2, 100000"); a("s_cbranch_scc1 ts_c")
        a("s_mov_b32 s23, 44"); tstamp(a, "s23", atomic=True); a.put("ts_c")
    a("s_endpgm")
    a.put("mega_exit2"); a("s_endpgm")
    gen4.gen_chain(a)
    gen5.gen_t2(a); gen5.gen_t1(a)
    if HALF: gen5.gen_t2(a, 2); gen5.gen_t1(a, 2)
    if POST:
        gen3.gen_pattn(a); (gen3.gen_pout_f if FINE else gen3.gen_pout)(a); gen_ln_seg(a, "ln2_kernel", True, "ws", WS_X1, 2048 * 2560, WS_H2, 3, 4); gen_ln_seg(a, "ln1_kernel", False, "x", 0, 2048 * 1280, WS_H, 0, 1); gen_vo_ln(a); gen_ffn1(a, 1 if FINE else 4); gen_ffn2(a, 1 if FINE else 2)
    M.MEGA = False
    return K, 512, 256

def gen_ln_seg(a, name, src_f32, src_ka, src_add, src_size, dst_off, shift_i, scale_i):
    NR = 8
    a.put(name + "_entry")
    a("s_load_dwordx2 s[12:13], s[0:1], %d" % KA["ws"])
    a("s_load_dwordx2 s[6:7], s[0:1], %d" % KA[src_ka])
    a("v_and_b32 v1, 63, v0"); a("v_lshlrev_b32 v3, 2, v1"); a("v_lshlrev_b32 v5, 3, v1")
    a("s_waitcnt lgkmcnt(0)")
    srd_from_ptr(a, 32, 6, src_size, add=(hex(src_add) if src_add else None))
    srd_from_ptr(a, 36, 12, 0x2000000)
    a("s_lshl_b32 s24, s2, 5"); a("s_lshl_b32 s25, s100, 3"); a("s_add_u32 s24, s24, s25")
    X = 20; T = 160
    rs = 2560 if src_f32 else 1280
    a("s_mul_i32 s26, s24, %d" % rs)
    for r in range(NR):
        a("s_add_u32 s23, s26, %d" % (r * rs))
        for j in range(5):
            if src_f32: a("buffer_load_dwordx2 v[%d:%d], v5, s[32:35], s23 offen offset:%d" % (X + r * 10 + 2 * j, X + r * 10 + 2 * j + 1, j * 512))
            else: a("buffer_load_dword v%d, v3, s[32:35], s23 offen offset:%d" % (100 + r * 5 + j, j * 256))
    for j in range(5):
        a("s_mov_b32 s14, %d" % (WS_MOD + scale_i * 2560 + j * 512))
        a("buffer_load_dwordx2 v[%d:%d], v5, s[36:39], s14 offen" % (140 + 2 * j, 141 + 2 * j))
        a("s_mov_b32 s14, %d" % (WS_MOD + shift_i * 2560 + j * 512))
        a("buffer_load_dwordx2 v[%d:%d], v5, s[36:39], s14 offen" % (150 + 2 * j, 151 + 2 * j))
    a("v_lshrrev_b32 v6, 4, v1"); a("v_lshlrev_b32 v4, 10, v6"); a("v_bfe_u32 v6, v1, 2, 2"); a("v_lshl_add_u32 v4, v6, 8, v4"); a("v_and_b32 v6, 3, v1"); a("v_lshl_add_u32 v4, v6, 2, v4")
    a("s_lshr_b32 s27, s2, 1"); a("s_mul_i32 s27, s27, 81920"); a("s_and_b32 s28, s2, 1"); a("s_mul_i32 s28, s28, 40960"); a("s_add_u32 s27, s27, s28")
    a("s_lshl_b32 s28, s100, 6"); a("v_add_u32 v4, s28, v4"); a("s_add_u32 s27, s27, %d" % dst_off)
    a("s_waitcnt vmcnt(0)")
    S = [168 + r for r in range(NR)]; TM = [T + i for i in range(NR)]
    TM = [176 + i for i in range(NR + 1)]
    for r in range(NR):
        x = X + r * 10
        if not src_f32:
            for j in range(5):
                a("v_lshlrev_b32 v%d, 16, v%d" % (x + 2 * j, 100 + r * 5 + j)); a("v_and_b32 v%d, 0xffff0000, v%d" % (x + 2 * j + 1, 100 + r * 5 + j))
        a("v_add_f32 v%d, v%d, v%d" % (S[r], x, x + 1))
        for j in range(2, 10): a("v_add_f32 v%d, v%d, v%d" % (S[r], S[r], x + j))
    wave_sum(a, S, TM, 3, NR)
    for r in range(NR):
        x = X + r * 10
        a("v_mul_f32 v%d, 0x3acccccd, v%d" % (S[r], S[r]))
        for j in range(10): a("v_sub_f32 v%d, v%d, v%d" % (x + j, x + j, S[r]))
        a("v_mul_f32 v%d, v%d, v%d" % (S[r], x, x))
        for j in range(1, 10): a("v_fmac_f32 v%d, v%d, v%d" % (S[r], x + j, x + j))
    wave_sum(a, S, TM, 3, NR)
    for j in range(10): a("v_add_f32 v%d, 1.0, v%d" % (140 + j, 140 + j))
    for r in range(NR):
        x = X + r * 10
        a("v_mov_b32 v7, 0x3727c5ac"); a("v_fmac_f32 v7, 0x3acccccd, v%d" % S[r]); a("v_rsq_f32 v7, v7"); a("s_nop 0")
        for j in range(10):
            a("v_mul_f32 v%d, v%d, v7" % (x + j, x + j)); a("v_fma_f32 v%d, v%d, v%d, v%d" % (x + j, x + j, 140 + j, 150 + j))
        for j in range(5):
            a("v_cvt_pk_bf16_f32 v%d, v%d, v%d" % (x + j, x + 2 * j, x + 2 * j + 1))
            a("ds_write_b32 v4, v%d offset:%d" % (x + j, (r >> 2) * 20480 + (r & 3) * 16 + j * 4096))
    a("s_waitcnt lgkmcnt(0)"); a("s_barrier")
    a("v_lshlrev_b32 v5, 4, v0")
    for j in range(10): a("ds_read_b128 v[%d:%d], v5 offset:%d" % (20 + 4 * j, 23 + 4 * j, j * 4096))
    for j in range(10):
        a("s_waitcnt lgkmcnt(%d)" % (9 - j))
        a("s_add_u32 s14, s27, %d" % (j * 4096))
        a("buffer_store_dwordx4 v[%d:%d], v5, s[36:39], s14 offen%s" % (20 + 4 * j, 23 + 4 * j, ST()))
    a("s_branch task_done")
```

```python
import os
from gen import *

class Stream:
    BUF = 20
    def __init__(self, a, nmt, acc, nslot=4, slot_bytes=SLOT):
        self.a = a; self.nmt = nmt; self.acc = acc
        self.q = VMQ(a); self.slots = []; self.units = []
        self.nslot = nslot; self.sb = slot_bytes
        self.base = dict(nat=0, pi=0)
    def accr(self, mt, nt): return self.acc + (mt * 4 + nt) * 4
    def add_slot(self, srd, voff, soff, rs, nrows, mp):
        self.slots.append(dict(srd=srd, voff=voff, soff=soff, rs=rs, nrows=nrows, mp=mp)); return len(self.slots) - 1
    def add_unit(self, slots, afr, swap, epi):
        self.units.append(dict(slots=slots, afr=afr, swap=swap, epi=epi))
    def dma(self, i):
        if i >= len(self.slots): return
        a = self.a; sl = self.slots[i]
        base = (i % self.nslot) * self.sb
        for j in range(sl["nrows"] // 32):
            a("s_add_u32 m0, s21, %d" % (base + j * 4096))
            a("s_mov_b32 s23, %d" % (sl["soff"] + j * 32 * sl["rs"]))
            a("buffer_load_dwordx4 v%d, s[%d:%d], s23 offen lds" % (sl["voff"], sl["srd"], sl["srd"] + 3))
            self.q.op()
        self.q.mark(("dma", i))
    def reads(self, si, ks, buf):
        a = self.a; sl = self.slots[si]; mp = sl["mp"]
        want = (si % self.nslot) * self.sb
        if self.base[mp] != want:
            d = want - self.base[mp]
            regs = range(8, 16) if mp == "nat" else range(16, 20)
            for r in regs:
                if d > 0: a("v_add_u32 v%d, %d, v%d" % (r, d, r))
                else: a("v_subrev_u32 v%d, %d, v%d" % (r, -d, r))
            self.base[mp] = want
        for nt in range(4):
            d = self.BUF + buf * 16 + nt * 4
            for half in range(2):
                if mp == "nat":
                    a("ds_read_b64_tr_b16 v[%d:%d], v%d offset:%d" % (d + 2 * half, d + 2 * half + 1, 8 + half * 4 + nt, ks * 4096))
                else:
                    a("ds_read_b64_tr_b16 v[%d:%d], v%d offset:%d" % (d + 2 * half, d + 2 * half + 1, 16 + nt, ks * 4096 + half * 2048))
    def run(self):
        a = self.a
        seq = []
        for u in self.units:
            k = 0
            tot = sum(self.slots[s]["nrows"] // 32 for s in u["slots"])
            for s in u["slots"]:
                for ks in range(self.slots[s]["nrows"] // 32):
                    seq.append((s, ks, u, k, k == tot - 1)); k += 1
        import gen3
        st = (lambda k: gen3.stamp(a, k)) if getattr(self, "dbg", False) else (lambda k: None)
        if getattr(self, "dbg", False): gen3.dbg_init(a)
        for i in range(self.nslot): self.dma(i)
        if getattr(self, "pre", None):
            self.pre(); a("s_waitcnt vmcnt(0)"); a("s_barrier")
        else:
            self.q.wait(("dma", 0)); a("s_barrier")
        st(0)
        self.reads(seq[0][0], seq[0][1], 0)
        for n, (s, ks, u, k, last) in enumerate(seq):
            a("s_waitcnt lgkmcnt(0)")
            if n + 1 < len(seq):
                s2, ks2 = seq[n + 1][0], seq[n + 1][1]
                if s2 != s:
                    st(1)
                    self.q.wait(("dma", s2)); a("s_barrier")
                    st(2)
                    self.dma(s + self.nslot)
                self.reads(s2, ks2, (n + 1) & 1)
            for nt in range(4):
                b = "v[%d:%d]" % (self.BUF + (n & 1) * 16 + nt * 4, self.BUF + (n & 1) * 16 + nt * 4 + 3)
                for mt in range(self.nmt):
                    d = self.accr(mt, nt); dd = "v[%d:%d]" % (d, d + 3)
                    f = reg(u["afr"](k, mt))
                    c = "0" if k == 0 else dd
                    if u["swap"]: a("v_mfma_f32_16x16x32_bf16 %s, %s, %s, %s" % (dd, b, f, c))
                    else: a("v_mfma_f32_16x16x32_bf16 %s, %s, %s, %s" % (dd, f, b, c))
            if last:
                a("s_nop 7"); a("s_nop 1")
                st(1)
                u["epi"]()
                a("s_nop 1")
                st(3)
        if getattr(self, "dbg", False): gen3.dbg_out(a, 5, 0)

def common_setup(a, s_nat=True, s_pi=True):
    lane_setup(a)
    if s_nat: tr_addr_nat(a, 8, 5, 6, 7)
    if s_pi: tr_addr_pi(a, 16, 5, 6, 7)

def tokbase(a, vd, vt):
    a("v_lshrrev_b32 v%d, 2, v3" % vd)
    a("v_and_b32 v%d, 3, v3" % vt)
    a("v_lshl_add_u32 v%d, v%d, 3, v%d" % (vd, vd, vt))
def mtrow(mt): return (mt >> 1) * 32 + (mt & 1) * 4

def pack_pi(a, S, mt, q):
    x = S.accr(mt, 2 * q); y = S.accr(mt, 2 * q + 1)
    a("v_cvt_pk_bf16_f32 v%d, v%d, v%d" % (x, x, x + 1))
    a("v_cvt_pk_bf16_f32 v%d, v%d, v%d" % (x + 1, x + 2, x + 3))
    a("v_cvt_pk_bf16_f32 v%d, v%d, v%d" % (x + 2, y, y + 1))
    a("v_cvt_pk_bf16_f32 v%d, v%d, v%d" % (x + 3, y + 2, y + 3))
    return x

def u_epilogue(a, S, q, vU, srd, u, mstride, cstride16):
    def epi():
        for m in range(S.nmt // 2):
            for nt in range(4):
                x = S.accr(2 * m, nt); y = S.accr(2 * m + 1, nt)
                a("v_cvt_pk_bf16_f32 v%d, v%d, v%d" % (x, x, x + 1))
                a("v_cvt_pk_bf16_f32 v%d, v%d, v%d" % (x + 1, x + 2, x + 3))
                a("v_cvt_pk_bf16_f32 v%d, v%d, v%d" % (x + 2, y, y + 1))
                a("v_cvt_pk_bf16_f32 v%d, v%d, v%d" % (x + 3, y + 2, y + 3))
                a("s_mov_b32 s23, %d" % (m * mstride + (u * 4 + nt) * cstride16))
                a("buffer_store_dwordx4 v[%d:%d], v%d, s[%d:%d], s23 offen%s" % (x, x + 3, vU, srd, srd + 3, ST()))
                q.op()
    return epi

def gen_qku(a, part="all"):
    K = "qku_kernel" if part == "all" else "qku%s_kernel" % part
    kbegin(a, K, 256)
    a("s_load_dwordx4 s[4:7], s[0:1], %d" % KA["Wq"])
    a("s_load_dwordx4 s[8:11], s[0:1], %d" % KA["Wv"])
    a("s_load_dwordx2 s[12:13], s[0:1], %d" % KA["ws"])
    common_setup(a)
    a("s_and_b32 s24, s2, 7"); a("s_lshl_b32 s24, s24, 2"); a("s_bfe_u32 s25, s2, 0x20003"); a("s_add_u32 s24, s24, s25")
    a("s_lshr_b32 s25, s2, 5")
    a("s_waitcnt lgkmcnt(0)")
    a("s_mul_i32 s26, s24, 384")
    WSZ = 640 * 12288
    a("s_sub_u32 s27, %d, s26" % WSZ)
    srd_from_ptr(a, 32, 4, "s27", add="s26"); srd_from_ptr(a, 36, 6, "s27", add="s26"); srd_from_ptr(a, 40, 8, "s27", add="s26")
    a("s_mul_i32 s28, s24, 245760")
    srd_from_ptr(a, 44, 10, 245760, add="s28")
    a("s_lshl_b32 s29, s25, 2"); a("s_add_u32 s29, s29, s20")
    a("s_mul_i32 s30, s29, %d" % (64 * 1280)); a("s_add_u32 s30, s30, %d" % WS_H)
    srd_from_ptr(a, 48, 12, 64 * 1280, add="s30")
    a("s_mul_i32 s30, s29, %d" % (64 * 12288)); a("s_add_u32 s30, s30, s26")
    a("s_add_u32 s31, s30, %d" % WS_Q); srd_from_ptr(a, 52, 12, 64 * 12288, add="s31")
    a("s_add_u32 s31, s30, %d" % WS_K); srd_from_ptr(a, 56, 12, 64 * 12288, add="s31")
    a("s_lshl_b32 s30, s29, 6"); a("s_add_u32 s30, s30, s24"); a("s_mul_i32 s30, s30, 40960"); a("s_add_u32 s30, s30, %d" % WS_U)
    srd_from_ptr(a, 60, 12, 33 * 40960, add="s30")
    dma_voff(a, 5, 12288, 244, 245, 246)
    dma_voff(a, 6, 1280, 244, 245, 246)
    tokbase(a, 244, 245)
    a("v_lshlrev_b32 v245, 4, v2")
    a("v_mul_u32_u24 v247, 1280, v244"); a("v_add_u32 v247, v247, v245")
    a("v_mul_u32_u24 v248, 12288, v244"); a("v_add_u32 v248, v248, v245")
    a("v_lshl_add_u32 v249, v3, 6, v245")
    S = Stream(a, 4, 52)
    S.dbg = True
    def hfr(k, mt):
        idx = mt * 20 + k
        return ("a", idx * 4) if idx < 64 else ("v", 116 + (idx - 64) * 4)
    for mt in range(4):
        for k in range(20):
            a("s_mov_b32 s23, %d" % (mtrow(mt) * 1280 + k * 64))
            a("buffer_load_dwordx4 %s, v247, s[48:51], s23 offen" % reg(hfr(k, mt))); S.q.op()
    def vfr(k, mt):
        u = k // 2
        if u < 2: return ("v", 180 + ((u * 4 + mt) * 2 + (k & 1)) * 4)
        return ("v", 116 + (mt * 2 + (k & 1)) * 4)
    mats = dict(all=(("k", 36), ("q", 32), ("v", 40)), T1=(("k", 36), ("q", 32)), T2=(("v", 40),))[part]
    for mat, srd in mats:
        for u in range(3):
            sl = [S.add_slot(srd, 5, u * 128 + hh * 320 * 12288, 12288, 320, "nat") for hh in range(2)]
            if mat != "v":
                def epi(u=u, srdo=(52 if mat == "q" else 56), mat=mat):
                    for mt in range(4):
                        for q in range(2):
                            x = pack_pi(a, S, mt, q)
                            a("s_mov_b32 s23, %d" % (mtrow(mt) * 12288 + u * 128 + q * 64))
                            a("buffer_store_dwordx4 v[%d:%d], v248, s[%d:%d], s23 offen%s" % (x, x + 3, srdo, srdo + 3, ST())); S.q.op()
                    if M.MEGA and mat == "k" and u == 2: M.signal_mid(a)
            else:
                def epi(u=u):
                    for mt in range(4):
                        for q in range(2):
                            x = S.accr(mt, 2 * q); y = S.accr(mt, 2 * q + 1); d = vfr(u * 2 + q, mt)[1]
                            a("v_cvt_pk_bf16_f32 v%d, v%d, v%d" % (d, x, x + 1))
                            a("v_cvt_pk_bf16_f32 v%d, v%d, v%d" % (d + 1, x + 2, x + 3))
                            a("v_cvt_pk_bf16_f32 v%d, v%d, v%d" % (d + 2, y, y + 1))
                            a("v_cvt_pk_bf16_f32 v%d, v%d, v%d" % (d + 3, y + 2, y + 3))
            S.add_unit(sl, hfr, True, epi)
    for u in range(10 if part != "T1" else 0):
        sl = [S.add_slot(44, 6, u * 128, 1280, 192, "pi")]
        S.add_unit(sl, vfr, False, u_epilogue(a, S, S.q, 249, 60, u, 32 * 40960, 1024))
    S.run()
    kend(a, K)
    return K, 512, 256

def gen_vo_ln(a, pv=False):
    K = "voln_kernel" if not pv else "pv_kernel"
    if M.MEGA: a.put("vo_kernel_entry")
    else:
        kernel_begin(a, K)
        a("s_cmp_ge_u32 s2, %d" % (256 if pv else 640)); a("s_cbranch_scc1 voln_end")
        a("s_cmp_ge_u32 s2, 128"); a("s_cbranch_scc1 voln_ln")
    a("s_load_dwordx4 s[8:11], s[0:1], %d" % KA["Wv"])
    a("s_load_dwordx2 s[12:13], s[0:1], %d" % KA["ws"])
    common_setup(a)
    a("s_and_b32 s24, s2, 31"); a("s_bfe_u32 s25, s2, 0x10005"); a("s_lshr_b32 s26, s2, 6")
    a("s_waitcnt lgkmcnt(0)")
    a("s_lshl_b32 s27, s25, 2"); a("s_add_u32 s27, s27, s20"); a("s_mul_i32 s27, s27, 80"); a("s_min_u32 s27, s27, 544")
    a("s_mul_i32 s28, s27, 12288"); a("s_mul_i32 s29, s24, 384"); a("s_add_u32 s28, s28, s29")
    a("s_sub_u32 s29, %d, s28" % (640 * 12288))
    srd_from_ptr(a, 32, 8, "s29", add="s28")
    a("s_mul_i32 s28, s24, 245760"); a("s_mul_i32 s29, s26, 640"); a("s_add_u32 s28, s28, s29")
    a("s_sub_u32 s29, %d, s28" % (32 * 245760))
    srd_from_ptr(a, 44, 10, "s29", add="s28")
    a("s_mul_i32 s28, s26, %d" % (40 * 32 * 10240)); a("s_lshr_b32 s29, s24, 1"); a("s_mul_i32 s29, s29, 20480"); a("s_add_u32 s28, s28, s29")
    a("s_and_b32 s29, s24, 1"); a("s_lshl_b32 s29, s29, 7"); a("s_add_u32 s28, s28, s29")
    a("s_lshl_b32 s29, s27, 5"); a("s_add_u32 s28, s28, s29"); a("s_add_u32 s28, s28, %d" % WS_VO)
    srd_from_ptr(a, 60, 12, 40 * 32 * 10240, add="s28")
    dma_voff(a, 6, 1280, 244, 245, 246)
    tokbase(a, 244, 245)
    a("v_lshlrev_b32 v245, 4, v2")
    a("v_mul_u32_u24 v247, 12288, v244"); a("v_add_u32 v247, v247, v245")
    a("v_lshrrev_b32 v249, 3, v3"); a("v_mul_u32_u24 v249, 327680, v249")
    a("v_and_b32 v246, 7, v3"); a("v_lshlrev_b32 v246, 4, v246"); a("v_add_u32 v249, v249, v246"); a("v_lshl_add_u32 v249, v2, 8, v249")
    S = Stream(a, 6, 52)
    def hfr(k, mt): return ("a", (mt * 6 + k) * 4)
    for mt in range(6):
        for k in range(6):
            a("s_mov_b32 s23, %d" % (mtrow(mt) * 12288 + k * 64))
            a("buffer_load_dwordx4 %s, v247, s[32:35], s23 offen" % reg(hfr(k, mt))); S.q.op()
    for u in range(5):
        sl = [S.add_slot(44, 6, u * 128, 1280, 192, "nat")]
        S.add_unit(sl, hfr, False, u_epilogue(a, S, S.q, 249, 60, u, 1024, 2 * 327680))
    S.run()
    if M.MEGA:
        a("s_branch task_done"); return
    a("s_endpgm")
    a.put("voln_ln")
    if pv:
        a("s_sub_u32 s2, s2, 128")
        gen_prep(a, emb=True)
        a.put("voln_end"); a("s_endpgm")
        return K, 400, 256
    a("s_load_dwordx2 s[12:13], s[0:1], %d" % KA["ws"])
    a("s_load_dwordx2 s[6:7], s[0:1], %d" % KA["x"])
    a("s_waitcnt lgkmcnt(0)")
    srd_from_ptr(a, 32, 6, 2048 * 1280)
    srd_from_ptr(a, 36, 12, 0x2000000)
    a("s_sub_u32 s24, s2, 128")
    gen_ln_body(a, "ln1", False, 32, 36, WS_H, 0, 1, 24)
    a.put("voln_end"); a("s_endpgm")
    return K, 400, 256

def gen_ln2(a):
    K = "ln2_kernel"
    kernel_begin(a, K)
    a("s_cmp_ge_u32 s2, 512"); a("s_cbranch_scc1 ln2_end")
    a("s_load_dwordx2 s[12:13], s[0:1], %d" % KA["ws"])
    a("s_waitcnt lgkmcnt(0)")
    srd_from_ptr(a, 32, 12, 2048 * 2560, add=hex(WS_X1))
    srd_from_ptr(a, 36, 12, 0x2000000)
    a("s_mov_b32 s24, s2")
    gen_ln_body(a, "ln2", True, 32, 36, WS_H2, 3, 4, 24)
    a.put("ln2_end"); a("s_endpgm")
    return K, 64, 64

def gen_ffn1(a, nmt=4):
    K = "ffn1_kernel"
    kbegin(a, K, 192)
    a("s_load_dwordx4 s[4:7], s[0:1], %d" % KA["w1"])
    a("s_load_dwordx2 s[12:13], s[0:1], %d" % KA["ws"])
    common_setup(a, s_pi=False)
    if nmt == 4: a("s_and_b32 s24, s2, 7"); a("s_lshr_b32 s25, s2, 3")
    else: a("s_lshr_b32 s24, s2, 5"); a("s_and_b32 s25, s2, 31")
    a("s_waitcnt lgkmcnt(0)")
    a("s_lshl_b32 s26, s25, 7"); a("s_sub_u32 s27, %d, s26" % (640 * 3072))
    srd_from_ptr(a, 32, 4, "s27", add="s26")
    srd_from_ptr(a, 36, 6, 128, add="s26")
    a("s_lshl_b32 s29, s24, 2"); a("s_add_u32 s29, s29, s20")
    FLN = M.MEGA and nmt == 1 and os.environ.get('FLN', '0') == '1'
    if FLN:
        a("s_lshr_b32 s28, s29, 1"); a("s_lshl_b32 s28, s28, 5"); a("s_and_b32 s30, s29, 1"); a("s_lshl_b32 s30, s30, 2"); a("s_add_u32 s28, s28, s30")
        a("s_mul_i32 s30, s28, 2560"); a("s_add_u32 s30, s30, %d" % WS_X1)
        srd_from_ptr(a, 48, 12, 28 * 2560, add="s30")
        srd_from_ptr(a, 56, 12, 5120, add=hex(WS_MOD + 3 * 2560))
    else:
        a("s_mul_i32 s30, s29, %d" % (16 * nmt * 1280)); a("s_add_u32 s30, s30, %d" % WS_H2)
        srd_from_ptr(a, 48, 12, 16 * nmt * 1280, add="s30")
    a("s_mul_i32 s30, s29, %d" % (16 * nmt * 3072)); a("s_lshl_b32 s31, s25, 11"); a("s_add_u32 s30, s30, s31"); a("s_add_u32 s30, s30, %d" % WS_F)
    srd_from_ptr(a, 52, 12, (nmt - 1) * 48 * 1024 + 2048, add="s30")
    a("v_lshlrev_b32 v250, 4, v1")
    dma_voff(a, 5, 3072, 244, 245, 246)
    tokbase(a, 244, 245)
    a("v_lshlrev_b32 v245, 4, v2")
    a("v_mul_u32_u24 v247, 1280, v244"); a("v_add_u32 v247, v247, v245")
    a("v_mul_u32_u24 v248, 3072, v244"); a("v_add_u32 v248, v248, v245")
    S = Stream(a, nmt, 52)
    a("v_lshlrev_b32 v246, 3, v2")
    for nt in range(4):
        a("buffer_load_dwordx2 v[%d:%d], v246, s[36:39], 0 offen offset:%d" % (180 + 2 * nt, 181 + 2 * nt, nt * 32)); S.q.op()
    def hfr(k, mt):
        if FLN: return ("v", 100 + 4 * k)
        idx = mt * 20 + k
        return ("a", idx * 4) if idx < 64 else ("v", 116 + (idx - 64) * 4)
    def loadA_ln():
        MB = 81920
        a("v_lshlrev_b32 v206, 4, v0"); a("v_and_b32 v207, 63, v0"); a("v_lshlrev_b32 v207, 4, v207"); a("v_add_u32 v207, 4096, v207")
        a("buffer_load_dwordx4 v[208:211], v206, s[56:59], 0 offen"); a("buffer_load_dwordx4 v[212:215], v207, s[56:59], 0 offen")
        a("v_mov_b32 v216, 0"); a("v_cmp_le_u32 vcc, 2560, v206"); a("s_nop 1"); a("v_cndmask_b32 v216, v216, 1.0, vcc")
        a("v_mul_u32_u24 v203, 2560, v244"); a("v_lshl_add_u32 v203, v2, 5, v203")
        a("v_lshlrev_b32 v204, 5, v2"); a("v_add_u32 v204, %d, v204" % MB)
        a("v_add_u32 v206, %d, v206" % MB); a("v_add_u32 v207, %d, v207" % MB)
        a("s_waitcnt vmcnt(0)")
        for r in range(4): a("v_add_f32 v%d, v%d, v216" % (208 + r, 208 + r)); a("v_add_f32 v%d, 1.0, v%d" % (212 + r, 212 + r))
        a("ds_write_b128 v206, v[208:211]"); a("ds_write_b128 v207, v[212:215]")
        a("s_waitcnt lgkmcnt(0)")
        M.tpoll40(a, "tf1", 92, 200)
        for k in range(20):
            for hb in range(2):
                a("buffer_load_dwordx4 v[%d:%d], v203, s[48:51], 0 offen offset:%d" % (20 + 8 * k + 4 * hb, 23 + 8 * k + 4 * hb, k * 128 + hb * 16))
        S0, Q0 = 206, 210
        for k in range(20):
            if k % 5 == 0: a("s_waitcnt vmcnt(%d)" % (30 - 2 * k))
            for p in range(4):
                x = "v[%d:%d]" % (20 + 8 * k + 2 * p, 21 + 8 * k + 2 * p)
                sa = "v[%d:%d]" % (S0 + 2 * (p & 1), S0 + 1 + 2 * (p & 1)); qa = "v[%d:%d]" % (Q0 + 2 * (p & 1), Q0 + 1 + 2 * (p & 1))
                if k == 0 and p < 2: a("v_pk_add_f32 %s, %s, 0" % (sa, x)); a("v_pk_mul_f32 %s, %s, %s" % (qa, x, x))
                else: a("v_pk_add_f32 %s, %s, %s" % (sa, sa, x)); a("v_pk_fma_f32 %s, %s, %s, %s" % (qa, x, x, qa))
        MD = 220
        def rdm(k):
            b = 214 if (k & 1) else 230
            return b
        a("v_pk_add_f32 v[206:207], v[206:207], v[208:209]"); a("v_pk_add_f32 v[210:211], v[210:211], v[212:213]")
        a("v_add_f32 v206, v206, v207"); a("v_add_f32 v210, v210, v211")
        for sw in ("v_permlane16_swap_b32", "v_permlane32_swap_b32"):
            a("v_mov_b32 v207, v206"); a("v_mov_b32 v211, v210"); a("s_nop 1")
            a("%s v206, v207" % sw); a("%s v210, v211" % sw); a("s_nop 1")
            a("v_add_f32 v206, v206, v207"); a("v_add_f32 v210, v210, v211")
        a("v_mul_f32 v206, 0x3acccccd, v206"); a("v_mul_f32 v210, 0x3acccccd, v210")
        a("v_fma_f32 v210, -v206, v206, v210"); a("v_max_f32 v210, 0, v210"); a("v_add_f32 v210, 0x3727c5ac, v210")
        a("v_rsq_f32 v208, v210"); a("s_nop 0")
        a("v_mul_f32 v210, v206, v208"); a("v_sub_f32 v210, 0, v210"); a("v_mov_b32 v209, v208"); a("v_mov_b32 v211, v210")
        sets = [188, 220]
        def mreg(k, which, hb):
            n = which * 2 + hb
            if k & 1: return 220 + 4 * n
            return (188, 192, 236, 240)[n]
        def rd(k):
            for which in range(2):
                for hb in range(2):
                    r = mreg(k, which, hb)
                    a("ds_read_b128 v[%d:%d], v204 offset:%d" % (r, r + 3, which * 2560 + k * 128 + hb * 16))
        rd(19)
        for k in range(19, -1, -1):
            if k > 0: rd(k - 1)
            for p in range(4):
                x = "v[%d:%d]" % (20 + 8 * k + 2 * p, 21 + 8 * k + 2 * p)
                a("v_pk_fma_f32 %s, %s, v[208:209], v[210:211]" % (x, x))
            a("s_waitcnt lgkmcnt(%d)" % (4 if k > 0 else 0))
            for p in range(4):
                x = "v[%d:%d]" % (20 + 8 * k + 2 * p, 21 + 8 * k + 2 * p)
                sb = mreg(k, 0, p >> 1) + 2 * (p & 1); cb = mreg(k, 1, p >> 1) + 2 * (p & 1)
                a("v_pk_fma_f32 v[%d:%d], %s, v[%d:%d], v[%d:%d]" % (212 + 2 * p, 213 + 2 * p, x, cb, cb + 1, sb, sb + 1))
            for p in range(4): a("v_cvt_pk_bf16_f32 v%d, v%d, v%d" % (100 + 4 * k + p, 212 + 2 * p, 213 + 2 * p))
    def loadA():
        if FLN: return loadA_ln()
        if M.tpoll: M.tpoll(a, "tf1", 92, 2, 2, 200)
        for mt in range(nmt):
            for k in range(20):
                a("s_mov_b32 s23, %d" % ((mt * 20 + k) * 1024))
                a("buffer_load_dwordx4 %s, v250, s[48:51], s23 offen" % reg(hfr(k, mt))); S.q.op()
    if M.tpoll: S.pre = loadA
    else: loadA()
    sl = [S.add_slot(32, 5, hh * 320 * 3072, 3072, 320, "nat") for hh in range(2)]
    def epi():
        for nt in range(4):
            for j in range(2):
                a("v_lshlrev_b32 v%d, 16, v%d" % (190 + nt * 4 + 2 * j, 180 + 2 * nt + j))
                a("v_and_b32 v%d, 0xffff0000, v%d" % (190 + nt * 4 + 2 * j + 1, 180 + 2 * nt + j))
        for mt in range(nmt):
            for nt in range(4):
                x = S.accr(mt, nt)
                for r in range(4):
                    a("v_add_f32 v%d, v%d, v%d" % (x + r, x + r, 190 + nt * 4 + r))
                    a("v_cvt_pk_bf16_f32 v%d, v%d, v%d" % (x + r, x + r, x + r))
                    a("v_lshlrev_b32 v%d, 16, v%d" % (x + r, x + r))
                    a("v_max_f32 v%d, 0, v%d" % (x + r, x + r))
                    a("v_mul_f32 v%d, v%d, v%d" % (x + r, x + r, x + r))
            for q in range(2):
                x = pack_pi(a, S, mt, q)
                a("s_mov_b32 s23, %d" % ((mt * 48 + q) * 1024))
                a("buffer_store_dwordx4 v[%d:%d], v250, s[52:55], s23 offen%s" % (x, x + 3, ST())); S.q.op()
    S.add_unit(sl, hfr, True, epi)
    S.run()
    kend(a, K)
    return K, 512, 256

def gen_ffn2(a, nmt=2):
    K = "ffn2_kernel"
    kbegin(a, K, 160)
    a("s_load_dwordx4 s[4:7], s[0:1], %d" % KA["w2"])
    a("s_load_dwordx4 s[8:11], s[0:1], %d" % KA["out"])
    a("s_load_dwordx2 s[12:13], s[0:1], %d" % KA["ws"])
    common_setup(a, s_nat=False)
    if nmt == 2: a("s_and_b32 s24, s2, 15"); a("s_lshr_b32 s25, s2, 4")
    else: a("s_lshr_b32 s24, s2, 4"); a("s_and_b32 s25, s2, 15")
    a("s_waitcnt lgkmcnt(0)")
    a("s_lshl_b32 s26, s25, 7"); a("s_sub_u32 s27, %d, s26" % (1536 * 1280))
    srd_from_ptr(a, 32, 4, "s27", add="s26")
    srd_from_ptr(a, 36, 6, 128, add="s26")
    a("s_lshl_b32 s29, s24, 2"); a("s_add_u32 s29, s29, s20")
    a("s_mul_i32 s30, s29, %d" % (16 * nmt * 3072)); a("s_add_u32 s30, s30, %d" % WS_F)
    srd_from_ptr(a, 48, 12, 16 * nmt * 3072, add="s30")
    if nmt == 2: a("s_lshl_b32 s28, s29, 5"); NR = 32
    else:
        a("s_lshr_b32 s28, s29, 1"); a("s_lshl_b32 s28, s28, 5"); a("s_and_b32 s30, s29, 1"); a("s_lshl_b32 s30, s30, 2"); a("s_add_u32 s28, s28, s30"); NR = 28
    a("s_mul_i32 s30, s28, 2560"); a("s_lshl_b32 s31, s26, 1"); a("s_add_u32 s30, s30, s31"); a("s_add_u32 s30, s30, %d" % WS_X1)
    srd_from_ptr(a, 52, 12, NR * 2560, add="s30")
    a("s_mul_i32 s30, s28, 1280"); a("s_add_u32 s30, s30, s26")
    srd_from_ptr(a, 56, 8, NR * 1280, add="s30")
    a("s_add_u32 s30, s31, %d" % (WS_MOD + 5 * 2560))
    srd_from_ptr(a, 60, 12, 256, add="s30")
    dma_voff(a, 6, 1280, 244, 245, 246)
    tokbase(a, 244, 245)
    a("v_lshlrev_b32 v245, 4, v2")
    a("v_mul_u32_u24 v247, 3072, v244"); a("v_add_u32 v247, v247, v245")
    a("v_mul_u32_u24 v248, 2560, v244"); a("v_add_u32 v248, v248, v245")
    a("v_lshlrev_b32 v246, 3, v2")
    a("v_mul_u32_u24 v249, 1280, v244"); a("v_add_u32 v249, v249, v246")
    a("v_lshlrev_b32 v250, 4, v1")
    S = Stream(a, nmt, 52)
    for nt in range(4):
        a("buffer_load_dwordx2 v[%d:%d], v246, s[36:39], 0 offen offset:%d" % (84 + 2 * nt, 85 + 2 * nt, nt * 32)); S.q.op()
        a("buffer_load_dwordx4 v[%d:%d], v245, s[60:63], 0 offen offset:%d" % (92 + 4 * nt, 95 + 4 * nt, nt * 64)); S.q.op()
    def hfr(k, mt):
        idx = mt * 48 + k
        return ("a", idx * 4) if idx < 64 else ("v", 116 + (idx - 64) * 4)
    def loadA():
        if M.tpoll: M.tpoll(a, "tf2", 92, 24, 2, 200)
        for mt in range(nmt):
            for k in range(48):
                a("s_mov_b32 s23, %d" % ((mt * 48 + k) * 1024))
                a("buffer_load_dwordx4 %s, v250, s[48:51], s23 offen" % reg(hfr(k, mt))); S.q.op()
        if XE: x1loads()
    XE = bool(M.tpoll) and nmt == 1 and os.environ.get('XE', '1') == '1'
    def x1loads():
        for mt in range(nmt):
            for nt in range(4):
                a("s_mov_b32 s23, %d" % (mtrow(mt) * 2560 + nt * 64))
                a("buffer_load_dwordx4 v[%d:%d], v248, s[52:55], s23 offen" % (116 + (mt * 4 + nt) * 4, 119 + (mt * 4 + nt) * 4)); S.q.op()
    if M.tpoll: S.pre = loadA
    else: loadA()
    sl = [S.add_slot(32, 6, hh * 256 * 1280, 1280, 256, "pi") for hh in range(6)]
    def epi():
        for mt in range(0 if XE else nmt):
            for nt in range(4):
                a("s_mov_b32 s23, %d" % (mtrow(mt) * 2560 + nt * 64))
                a("buffer_load_dwordx4 v[%d:%d], v248, s[52:55], s23 offen" % (116 + (mt * 4 + nt) * 4, 119 + (mt * 4 + nt) * 4)); S.q.op()
        for nt in range(4):
            for j in range(2):
                a("v_lshlrev_b32 v%d, 16, v%d" % (150 + nt * 4 + 2 * j, 84 + 2 * nt + j))
                a("v_and_b32 v%d, 0xffff0000, v%d" % (150 + nt * 4 + 2 * j + 1, 84 + 2 * nt + j))
        a("s_waitcnt vmcnt(0)")
        for mt in range(nmt):
            for nt in range(4):
                x = S.accr(mt, nt)
                for r in range(4):
                    a("v_add_f32 v%d, v%d, v%d" % (x + r, x + r, 150 + nt * 4 + r))
                    a("v_fma_f32 v%d, v%d, v%d, v%d" % (x + r, x + r, 92 + nt * 4 + r, 116 + (mt * 4 + nt) * 4 + r))
                a("v_cvt_pk_bf16_f32 v%d, v%d, v%d" % (x, x, x + 1))
                a("v_cvt_pk_bf16_f32 v%d, v%d, v%d" % (x + 1, x + 2, x + 3))
                a("s_mov_b32 s23, %d" % (mtrow(mt) * 1280 + nt * 32))
                a("buffer_store_dwordx2 v[%d:%d], v249, s[56:59], s23 offen" % (x, x + 1))
    S.add_unit(sl, hfr, True, epi)
    S.run()
    kend(a, K)
    return K, 512, 256
```

```python
from gen import *
from gen2 import *
import gen3, gen4, gen5, os
from gen3 import SPIN
POST = True
NT0 = 512
HALF = os.environ.get("HALF", "1") == "1"
FINE = os.environ.get("FINE", "1") == "1"
XQ = os.environ.get("XQ", "1") == "1"
LAG = [int(x) for x in os.environ.get("LAG", "2,4,7,9").split(",")]

WSLP = int(os.environ.get('WSLP', '32'))
WT = int(os.environ.get('WT', '0'))
WTR = int(os.environ.get('WTR', '64'))
PAP = os.environ.get('PAP', '1') == '1'
FLN = os.environ.get('FLN', '0') == '1'
STT = os.environ.get('STT', '1') == '1'

def signal_mid(a):
    a("v_mov_b32 v251, 0"); a("s_mov_b64 exec, 1")
    a("buffer_store_dword v251, off, s[92:95], s99 sc1")
    a("s_mov_b64 exec, -1")

def wpoll(a, lab, srd, s_off, cnt, shift, slp=None, vb=250):
    n = (cnt + 63) // 64
    for j in range(n):
        a("v_and_b32 v%d, 63, v0" % vb); a("v_add_u32 v%d, %d, v%d" % (vb, 64 * j, vb)); a("v_min_u32 v%d, %d, v%d" % (vb, cnt - 1, vb)); a(("v_lshlrev_b32 v%d, %d, v%d" % (vb + 2 + j, shift, vb)) if shift < 32 else ("v_mul_u32_u24 v%d, %d, v%d" % (vb + 2 + j, shift, vb)))
    a("s_mov_b32 s60, 0")
    a.put(lab)
    for j in range(n): a("buffer_load_dword v%d, v%d, s[%d:%d], %s offen sc1" % (vb + j, vb + 2 + j, srd, srd + 3, s_off))
    a("s_waitcnt vmcnt(0)")
    if n == 2: a("v_max_u32 v%d, v%d, v%d" % (vb, vb, vb + 1))
    a("v_cmp_ne_u32 vcc, -1, v%d" % vb); a("s_nop 1"); a("s_cmp_eq_u64 vcc, exec"); a("s_cbranch_scc1 %s_ok" % lab)
    if slp is None and WT:
        a("s_sleep %d" % WT); a("s_cmp_ge_u32 s97, %d" % (64 + NT0 + 46 * WTR)); a("s_cbranch_scc1 %s_ns" % lab); a("s_sleep %d" % (WSLP - WT)); a.put(lab + "_ns")
    else: a("s_sleep %d" % (slp or WSLP))
    a("s_add_u32 s60, s60, 1"); a("s_cmp_gt_u32 s60, %d" % SPIN); a("s_cbranch_scc1 mega_exit")
    a("s_branch %s" % lab)
    a.put(lab + "_ok")

def tpoll(a, lab, srd, cnt, shift, vb):
    a("s_cmp_lg_u32 s100, 0"); a("s_cbranch_scc1 %s_skip" % lab)
    wpoll(a, lab, srd, "s99", cnt, shift, None, vb)
    a.put(lab + "_skip"); a("s_barrier")

def tpoll40(a, lab, srd, vb):
    a("s_cmp_lg_u32 s100, 0"); a("s_cbranch_scc1 %s_ok" % lab)
    a("v_and_b32 v%d, 63, v0" % vb); a("v_min_u32 v%d, 39, v%d" % (vb, vb)); a("v_lshlrev_b32 v%d, 2, v%d" % (vb + 2, vb))
    a("v_add_u32 v%d, 48, v%d" % (vb + 1, vb + 2)); a("v_cmp_lt_u32 vcc, 19, v%d" % vb); a("s_nop 1"); a("v_cndmask_b32 v%d, v%d, v%d, vcc" % (vb + 2, vb + 2, vb + 1))
    a("s_mov_b32 s60, 0")
    a.put(lab)
    a("buffer_load_dword v%d, v%d, s[%d:%d], s99 offen sc1" % (vb, vb + 2, srd, srd + 3))
    a("s_waitcnt vmcnt(0)")
    a("v_cmp_ne_u32 vcc, -1, v%d" % vb); a("s_nop 1"); a("s_cmp_eq_u64 vcc, exec"); a("s_cbranch_scc1 %s_ok" % lab)
    if WT:
        a("s_sleep %d" % WT); a("s_cmp_ge_u32 s97, %d" % (64 + NT0 + 46 * WTR)); a("s_cbranch_scc1 %s_ns" % lab); a("s_sleep %d" % (WSLP - WT)); a.put(lab + "_ns")
    else: a("s_sleep %d" % WSLP)
    a("s_add_u32 s60, s60, 1"); a("s_cmp_gt_u32 s60, %d" % SPIN); a("s_cbranch_scc1 mega_exit")
    a("s_branch %s" % lab)
    a.put(lab + "_ok"); a("s_barrier")

def ticket(a, off, sdst):
    a("s_cmp_lg_u32 s100, 0"); lab = a.label("tk"); a("s_cbranch_scc1 %s" % lab)
    a("v_mov_b32 v251, 1"); a("s_mov_b32 s23, %s" % off); a("s_mov_b64 exec, 1")
    a("buffer_atomic_add v251, off, s[92:95], s23 sc0 sc1")
    a("s_waitcnt vmcnt(0)")
    a("v_mov_b32 v252, 0"); a("ds_write_b32 v252, v251"); a("s_waitcnt lgkmcnt(0)")
    a("s_mov_b64 exec, -1")
    a.put(lab)
    a("s_barrier")
    a("v_mov_b32 v252, 0"); a("ds_read_b32 v251, v252"); a("s_waitcnt lgkmcnt(0)"); a("s_nop 0")
    a("v_readfirstlane_b32 s%d, v251" % sdst); a("s_nop 3")
    a("s_barrier")

TSR = int(os.environ.get("TSR", "55"))
def wstamp(a, which):
    if not M.TS: return
    lab = a.label("ws")
    a("s_sub_u32 s22, s97, %d" % (64 + NT0 + (46 if FINE else 20) * TSR)); a("s_cmp_ge_u32 s22, %d" % (46 if FINE else 20)); a("s_cbranch_scc1 %s" % lab)
    a("s_cmp_lg_u32 s100, 0"); a("s_cbranch_scc1 %s" % lab)
    if FINE: a("s_mul_i32 s22, s22, 28"); a("s_lshr_b32 s22, s22, 6")
    a("s_lshl_b32 s23, s22, 3"); a("s_add_u32 s23, s23, %d" % (96 + 4 * which)); tstamp(a, "s23")
    a.put(lab)
def gen_ln2m(a):
    a.put("ln2_kernel_entry")
    a("s_load_dwordx2 s[12:13], s[0:1], %d" % KA["ws"])
    a("s_waitcnt lgkmcnt(0)")
    srd_from_ptr(a, 32, 12, 2048 * 2560, add=hex(WS_X1))
    srd_from_ptr(a, 36, 12, 0x2000000)
    a("s_mov_b32 s24, s2"); a("s_mov_b32 s25, 8")
    a.put("ln2_lp")
    gen_ln_body(a, "ln2", True, 32, 36, WS_H2, 3, 4, 24)
    a("s_add_u32 s24, s24, 1"); a("s_sub_u32 s25, s25, 1"); a("s_cmp_lg_u32 s25, 0"); a("s_cbranch_scc1 ln2_lp")
    a("s_branch task_done")

def gen_mega(a):
    K = "mega_kernel"
    M.MEGA = True; M.signal_mid = staticmethod(signal_mid); M.tpoll = staticmethod(tpoll); M.tpoll40 = staticmethod(tpoll40)
    kernel_begin(a, K)
    a("s_cmp_ge_u32 s2, 256"); a("s_cbranch_scc1 mega_exit2")
    a("s_load_dwordx2 s[12:13], s[0:1], %d" % KA["ws"])
    a("v_lshrrev_b32 v4, 6, v0"); a("s_nop 0"); a("v_readfirstlane_b32 s100, v4")
    a("s_waitcnt lgkmcnt(0)")
    srd_from_ptr(a, 92, 12, 0x10000)
    srd_from_ptr(a, 88, 12, (WS_P + 65 * 20480 - WS_MEM) if PAP else 66 * 10240, add=hex(WS_MEM))
    if M.TS:
        a("s_load_dwordx2 s[14:15], s[0:1], %d" % KA["dbg"]); a("s_waitcnt lgkmcnt(0)")
        srd_from_ptr(a, 80, 14, 256)
    if os.environ.get("ROLE", "static") == "static": a("s_mov_b32 s96, s2")
    elif os.environ.get("ROLE", "").startswith("m"):
        a("s_getreg_b32 s22, hwreg(HW_REG_XCC_ID)"); a("s_and_b32 s22, s22, 15"); a("s_lshr_b32 s22, %s, s22" % os.environ["ROLE"][1:]); a("s_and_b32 s22, s22, 1")
        a("s_mov_b32 s96, 1000"); a("s_cmp_eq_u32 s22, 0"); a("s_cbranch_scc1 role_skip")
        ticket(a, WS_TKT, 96)
        a.put("role_skip")
    else: ticket(a, WS_TKT, 96)
    a("s_mov_b32 s101, 0")
    if M.TS:
        a("s_cmp_lg_u32 s96, 0"); a("s_cbranch_scc1 ts_a"); a("s_mov_b32 s23, 36"); tstamp(a, "s23"); a.put("ts_a")
    if M.TS:
        a("s_cmp_lg_u32 s100, 0"); a("s_cbranch_scc1 ts_hw")
        a("s_getreg_b32 s22, hwreg(HW_REG_XCC_ID)"); a("s_getreg_b32 s23, hwreg(HW_REG_HW_ID)")
        a("v_mov_b32 v250, s22"); a("v_mov_b32 v251, s23"); a("s_lshl_b32 s22, s96, 3"); a("s_add_u32 s22, s22, 0x4000")
        a("s_mov_b64 exec, 1"); a("buffer_store_dwordx2 v[250:251], off, s[92:95], s22"); a("s_mov_b64 exec, -1")
        a.put("ts_hw")
    if XQ:
        a("s_mov_b32 s2, s96"); a("s_mov_b32 s97, 0x7fffffff")
        a("s_cmp_lt_u32 s96, 32"); a("s_cbranch_scc1 chain_entry")
        a("s_cmp_ge_u32 s96, 160"); a("s_cbranch_scc1 task_take")
        a("s_cmp_lt_u32 s96, 112"); a("s_cselect_b32 s101, 1, 0")
        a("s_sub_u32 s2, s96, 32"); a("s_lshl_b32 s98, s2, 2"); a("s_add_u32 s98, s98, %d" % F_VO); a("s_branch vo_kernel_entry")
    else:
        a("s_cmp_ge_u32 s96, 112"); a("s_cbranch_scc1 task_take")
        a("s_mov_b32 s2, s96"); a("s_mov_b32 s97, 0x7fffffff")
        a("s_cmp_lt_u32 s96, 32"); a("s_cbranch_scc1 chain_entry")
        a("s_sub_u32 s2, s96, 32"); a("s_lshl_b32 s98, s2, 2"); a("s_add_u32 s98, s98, %d" % F_VO); a("s_mov_b32 s101, 1"); a("s_branch vo_kernel_entry")
    a.put("task_done")
    a("s_mov_b64 exec, -1")
    a("s_waitcnt vmcnt(0) lgkmcnt(0)"); a("s_barrier")
    wstamp(a, 1)
    a("s_cmp_lg_u32 s100, 0"); a("s_cbranch_scc1 task_take")
    a("v_mov_b32 v251, 0"); a("s_mov_b64 exec, 1")
    a("buffer_store_dword v251, off, s[92:95], s98 sc1")
    a("s_mov_b64 exec, -1")
    a("s_branch task_take")
    if STT and FINE:
        a.put("tail_static")
        a("s_mov_b64 exec, -1")
        a("s_waitcnt vmcnt(0) lgkmcnt(0)"); a("s_barrier")
        a("s_sub_u32 s22, s96, 32"); a("s_cmp_ge_u32 s22, 76"); a("s_cbranch_scc1 task_take")
        tb = [(20, (63 + LAG[0]) * 46 + 8), (40, (62 + LAG[0]) * 46 + 8 - 20), (41, (63 + LAG[1]) * 46 + 28 - 40), (42, (62 + LAG[1]) * 46 + 28 - 41),
              (54, (62 + LAG[2]) * 46 + 29 - 42), (66, (63 + LAG[2]) * 46 + 29 - 54), (71, (62 + LAG[3]) * 46 + 41 - 66), (76, (63 + LAG[3]) * 46 + 41 - 71)]
        a("s_add_u32 s97, s22, %d" % (tb[-1][1] + 64 + NT0))
        for bound, c in reversed(tb[:-1]):
            a("s_add_u32 s23, s22, %d" % (c + 64 + NT0)); a("s_cmp_lt_u32 s22, %d" % bound); a("s_cselect_b32 s97, s23, s97")
        a("s_mov_b32 s101, 2"); a("s_branch task_post")
    a.put("task_next")
    a("s_mov_b64 exec, -1")
    a("s_waitcnt vmcnt(0) lgkmcnt(0)"); a("s_barrier")
    a.put("task_take")
    a("s_cmp_eq_u32 s101, 0"); a("s_cbranch_scc1 task_take2")
    a("s_mov_b32 s101, 0"); a("s_mov_b32 s2, s96"); a("s_branch chain_entry")
    a.put("task_take2")
    if XQ:
        assert HALF
        a("s_cmp_lt_u32 s96, 112"); a("s_cbranch_scc1 tq_post")
        a("s_cmp_ge_u32 s96, 1000"); a("s_cbranch_scc1 tq_x")
        ticket(a, WS_TKT + 128, 97)
        a("s_cmp_lt_u32 s97, 64"); a("s_cbranch_scc1 task_l1")
        a("s_mov_b32 s96, 1000")
        a.put("tq_x")
        a("s_cmp_ge_u32 s96, 1008"); a("s_cbranch_scc1 tq_post")
        a("s_getreg_b32 s22, hwreg(HW_REG_XCC_ID)"); a("s_add_u32 s22, s22, s96"); a("s_and_b32 s61, s22, 7")
        a("s_lshl_b32 s62, s61, 2"); a("s_add_u32 s62, s62, %d" % WS_TKT)
        ticket(a, "s62", 97)
        a("s_cmp_lt_u32 s97, 72"); a("s_cbranch_scc1 tq_go")
        a("s_add_u32 s96, s96, 1"); a("s_branch tq_x")
        a.put("tq_go")
        a("s_mov_b32 s22, s97"); a("s_lshr_b32 s62, s22, 3")
        a("s_bfe_u32 s23, s22, 0x20001"); a("s_lshl_b32 s23, s23, 3"); a("s_add_u32 s23, s23, s61")
        a("s_lshl_b32 s23, s23, 1"); a("s_and_b32 s22, s22, 1"); a("s_add_u32 s23, s23, s22")
        a("s_mov_b32 s97, 100")
        a("s_cmp_ge_u32 s62, 2"); a("s_cbranch_scc1 tq_full")
        a("s_lshl_b32 s24, s62, 6"); a("s_add_u32 s24, s24, s23"); a("s_branch task_h_in")
        a.put("tq_full")
        a("s_sub_u32 s62, s62, 1"); a("s_lshl_b32 s24, s62, 6"); a("s_add_u32 s24, s24, s23"); a("s_branch task_t")
        a.put("tq_post")
        ticket(a, WS_TKT + 64, 97)
        a("s_add_u32 s97, s97, %d" % (64 + NT0)); a("s_branch task_post")
    ticket(a, WS_TKT + 128, 97)
    a("s_cmp_lt_u32 s97, 8"); a("s_cbranch_scc1 task_l1")
    a("s_cmp_ge_u32 s97, 56"); a("s_cbranch_scc1 task_nv")
    a("s_add_u32 s2, s97, 72"); a("s_lshl_b32 s98, s2, 2"); a("s_add_u32 s98, s98, %d" % F_VO); a("s_branch vo_kernel_entry")
    a.put("task_nv")
    a("s_sub_u32 s97, s97, 48")
    RS = 20 if NT0 == 512 else 28
    if FINE: RS = 46
    if HALF:
        a("s_cmp_lt_u32 s97, 64"); a("s_cbranch_scc1 task_l1")
        a("s_sub_u32 s24, s97, 64"); a("s_cmp_ge_u32 s24, 128"); a("s_cbranch_scc1 task_nh")
        a.put("task_h_in")
        a("s_cmp_lg_u32 s100, 0"); a("s_cbranch_scc1 task_h_go")
        a("s_mov_b32 s22, %d" % F_L1)
        wpoll(a, "w_h", 92, "s22", 8, 2, 8)
        a.put("task_h_go"); a("s_barrier")
        a("s_lshr_b32 s2, s24, 1")
        a("s_and_b32 s22, s2, 31"); a("s_lshl_b32 s22, s22, 2"); a("s_cmp_ge_u32 s2, 32"); a("s_cbranch_scc1 task_h1")
        a("s_add_u32 s98, s22, %d" % F_U); a("s_add_u32 s99, s22, %d" % F_K); a("s_add_u32 s23, s22, %d" % F_Q); a("s_branch task_h2")
        a.put("task_h1")
        a("s_add_u32 s98, s22, %d" % F_X); a("s_add_u32 s99, s22, %d" % (F_X + 128)); a("s_add_u32 s23, s22, %d" % (F_X + 256))
        a.put("task_h2")
        a("s_bitcmp1_b32 s24, 0"); a("s_cbranch_scc0 t2h_kernel_entry")
        a("s_mov_b32 s98, s23"); a("s_branch t1h_kernel_entry")
        a.put("task_nh")
        a("s_sub_u32 s97, s97, 64")
    a("s_cmp_ge_u32 s97, %d" % (64 + NT0)); a("s_cbranch_scc1 task_post")
    a("s_sub_u32 s24, s97, 64")
    a("s_cmp_ge_u32 s97, 64"); a("s_cbranch_scc1 task_t")
    a.put("task_l1")
    a("s_mov_b32 s2, s97"); a("s_lshl_b32 s98, s97, 2"); a("s_add_u32 s98, s98, %d" % F_L1); a("s_branch ln1_kernel_entry")
    a.put("task_t")
    a("s_cmp_lg_u32 s100, 0"); a("s_cbranch_scc1 task_t_go")
    a("s_lshr_b32 s22, s24, 6"); a("s_lshl_b32 s22, s22, 5"); a("s_add_u32 s22, s22, %d" % F_L1)
    wpoll(a, "w_t", 92, "s22", 8, 2, 8)
    a.put("task_t_go"); a("s_barrier")
    a("s_lshr_b32 s22, s24, 6"); a("s_bfe_u32 s23, s24, 0x50001"); a("s_lshl_b32 s2, s22, 5"); a("s_add_u32 s2, s2, s23")
    a("s_lshl_b32 s22, s2, 2")
    a("s_bitcmp1_b32 s24, 0"); a("s_cbranch_scc1 task_t1")
    a("s_add_u32 s98, s22, %d" % F_U); a("s_branch t2_kernel_entry")
    a.put("task_t1")
    a("s_add_u32 s98, s22, %d" % F_Q); a("s_add_u32 s99, s22, %d" % F_K); a("s_branch t1_kernel_entry")
    a.put("task_post")
    if M.TS:
        a("s_cmp_lg_u32 s97, %d" % (64 + NT0)); a("s_cbranch_scc1 ts_b"); a("s_mov_b32 s23, 40"); tstamp(a, "s23"); a.put("ts_b")
    if not POST:
        a("s_branch mega_exit")
    elif FINE:
        FPO = WS_FLG + 24576; FF1 = WS_FLG + 8192; FDUM = WS_FLG + 13312
        a("s_sub_u32 s22, s97, %d" % (64 + NT0)); a("s_mul_i32 s24, s22, 1425"); a("s_lshr_b32 s24, s24, 16")
        a("s_mul_i32 s23, s24, 46"); a("s_sub_u32 s25, s22, s23")
        a("s_cmp_ge_u32 s24, %d" % (64 + LAG[3])); a("s_cbranch_scc1 mega_exit")
        a("s_cmp_ge_u32 s25, 41"); a("s_cbranch_scc1 task_f2")
        a("s_cmp_ge_u32 s25, 29"); a("s_cbranch_scc1 task_f1")
        a("s_cmp_ge_u32 s25, 28"); a("s_cbranch_scc1 task_ln2")
        a("s_cmp_ge_u32 s25, 8"); a("s_cbranch_scc1 task_po")
        a("s_cmp_ge_u32 s24, 64"); a("s_cbranch_scc1 task_take")
        a("s_lshl_b32 s2, s24, 3"); a("s_add_u32 s2, s2, s25"); a("s_lshl_b32 s98, s2, 2"); a("s_add_u32 s98, s98, %d" % F_PA)
        a("s_cmp_lg_u32 s100, 0"); a("s_cbranch_scc1 task_pa_go")
        a("s_lshr_b32 s22, s24, 3"); a("s_lshl_b32 s22, s22, 7"); a("s_add_u32 s22, s22, %d" % F_Q)
        wpoll(a, "w_pa1", 92, "s22", 32, 2)
        if HALF:
            a("s_cmp_ge_u32 s24, 8"); a("s_cbranch_scc1 w_pa1x_ok")
            a("s_mov_b32 s22, %d" % (F_X + 256))
            wpoll(a, "w_pa1x", 92, "s22", 32, 2)
        a.put("task_pa_go")
        if PAP: a("s_add_u32 s99, s24, 1"); a("s_mul_i32 s99, s99, 20480"); a("s_mul_i32 s22, s25, 2560"); a("s_add_u32 s99, s99, s22"); a("s_add_u32 s99, s99, %d" % (WS_P - WS_MEM))
        else: a("s_add_u32 s99, s24, 2"); a("s_mul_i32 s99, s99, 10240")
        wstamp(a, 0); a("s_barrier"); a("s_branch pattn_kernel_entry")
        a.put("task_po")
        a("s_sub_u32 s24, s24, %d" % LAG[0]); a("s_cmp_ge_u32 s24, 64"); a("s_cbranch_scc1 task_take")
        if STT:
            a("s_cmp_lt_u32 s24, 62"); a("s_cbranch_scc1 task_po_st"); a("s_cmp_eq_u32 s101, 2"); a("s_cbranch_scc0 task_take"); a("s_mov_b32 s101, 0"); a.put("task_po_st")
        a("s_sub_u32 s25, s25, 8"); a("s_lshl_b32 s2, s24, 5"); a("s_add_u32 s2, s2, s25")
        a("s_lshl_b32 s98, s2, 2"); a("s_add_u32 s98, s98, %d" % FPO)
        a("s_cmp_lg_u32 s100, 0"); a("s_cbranch_scc1 task_po_go")
        a("s_add_u32 s22, s24, %d" % (1 if PAP else 2)); a("s_mul_i32 s22, s22, 10240")
        wpoll(a, "w_po", 88, "s22", 80, 7)
        a.put("task_po_go"); a("s_lshl_b32 s99, s24, 5"); a("s_add_u32 s99, s99, %d" % F_PA); wstamp(a, 0); a("s_barrier"); a("s_branch pout_kernel_entry")
        a.put("task_ln2")
        if FLN: a("s_branch task_take")
        a("s_sub_u32 s24, s24, %d" % LAG[1]); a("s_cmp_ge_u32 s24, 64"); a("s_cbranch_scc1 task_take")
        if STT:
            a("s_cmp_lt_u32 s24, 62"); a("s_cbranch_scc1 task_ln2_st"); a("s_cmp_eq_u32 s101, 2"); a("s_cbranch_scc0 task_take"); a("s_mov_b32 s101, 0"); a.put("task_ln2_st")
        a("s_mov_b32 s2, s24"); a("s_lshl_b32 s98, s24, 2"); a("s_add_u32 s98, s98, %d" % F_L2)
        a("s_cmp_lg_u32 s100, 0"); a("s_cbranch_scc1 task_ln2_go")
        a("s_lshl_b32 s22, s24, 7"); a("s_add_u32 s22, s22, %d" % FPO)
        wpoll(a, "w_ln2", 92, "s22", 20, 2)
        a.put("task_ln2_go"); wstamp(a, 0); a("s_barrier"); a("s_branch ln2_kernel_entry")
        a.put("task_f1")
        a("s_sub_u32 s24, s24, %d" % LAG[2]); a("s_cmp_ge_u32 s24, 64"); a("s_cbranch_scc1 task_take")
        if STT:
            a("s_cmp_lt_u32 s24, 62"); a("s_cbranch_scc1 task_f1_st"); a("s_cmp_eq_u32 s101, 2"); a("s_cbranch_scc0 task_take"); a("s_mov_b32 s101, 0"); a.put("task_f1_st")
        a("s_sub_u32 s25, s25, 29"); a("s_and_b32 s22, s24, 1"); a("s_mul_i32 s22, s22, 12"); a("s_add_u32 s25, s25, s22")
        a("s_lshr_b32 s24, s24, 1"); a("s_lshl_b32 s2, s24, 5"); a("s_add_u32 s2, s2, s25")
        a("s_lshl_b32 s98, s2, 2"); a("s_add_u32 s98, s98, %d" % FF1)
        if FLN: a("s_lshl_b32 s99, s24, 8"); a("s_add_u32 s99, s99, %d" % FPO)
        else: a("s_lshl_b32 s99, s24, 3"); a("s_add_u32 s99, s99, %d" % F_L2)
        a.put("task_f1_go"); wstamp(a, 0); a("s_barrier"); a("s_branch ffn1_kernel_entry")
        a.put("task_f2")
        a("s_sub_u32 s24, s24, %d" % LAG[3]); a("s_cmp_ge_u32 s24, 64"); a("s_cbranch_scc1 task_take")
        if STT:
            a("s_cmp_lt_u32 s24, 62"); a("s_cbranch_scc1 task_f2_st"); a("s_cmp_eq_u32 s101, 2"); a("s_cbranch_scc0 task_take"); a("s_mov_b32 s101, 0"); a.put("task_f2_st")
        a("s_sub_u32 s25, s25, 41"); a("s_and_b32 s22, s24, 1"); a("s_mul_i32 s22, s22, 5"); a("s_add_u32 s25, s25, s22")
        a("s_lshr_b32 s24, s24, 1"); a("s_lshl_b32 s2, s24, 4"); a("s_add_u32 s2, s2, s25")
        a("s_mov_b32 s98, %d" % FDUM)
        a("s_lshl_b32 s99, s24, 7"); a("s_add_u32 s99, s99, %d" % FF1)
        a.put("task_f2_go"); wstamp(a, 0); a("s_barrier"); a("s_branch ffn2_kernel_entry")
    else:
        a("s_sub_u32 s22, s97, %d" % (64 + NT0)); a("s_mul_i32 s24, s22, %d" % (3277 if RS == 20 else 2341)); a("s_lshr_b32 s24, s24, 16")
        a("s_mul_i32 s23, s24, %d" % RS); a("s_sub_u32 s25, s22, s23")
        a("s_cmp_ge_u32 s24, 74"); a("s_cbranch_scc1 mega_exit")
        if RS == 28:
            a("s_cmp_lt_u32 s25, 20"); a("s_cbranch_scc1 task_np")
            a("s_lshl_b32 s24, s24, 3"); a("s_add_u32 s24, s24, s25"); a("s_add_u32 s24, s24, %d" % (NT0 - 20))
            a("s_cmp_ge_u32 s24, 512"); a("s_cbranch_scc1 task_take")
            a("s_branch task_t")
            a.put("task_np")
        a("s_cmp_ge_u32 s25, 14"); a("s_cbranch_scc1 task_ffn")
        a("s_cmp_ge_u32 s25, 13"); a("s_cbranch_scc1 task_ln2")
        a("s_cmp_ge_u32 s25, 8"); a("s_cbranch_scc1 task_po")
        a("s_cmp_ge_u32 s24, 64"); a("s_cbranch_scc1 task_take")
        a("s_lshl_b32 s2, s24, 3"); a("s_add_u32 s2, s2, s25"); a("s_lshl_b32 s98, s2, 2"); a("s_add_u32 s98, s98, %d" % F_PA)
        a("s_cmp_lg_u32 s100, 0"); a("s_cbranch_scc1 task_pa_go")
        a("s_lshr_b32 s22, s24, 3"); a("s_lshl_b32 s22, s22, 7"); a("s_add_u32 s22, s22, %d" % F_Q)
        wpoll(a, "w_pa1", 92, "s22", 32, 2)
        if HALF:
            a("s_cmp_ge_u32 s24, 8"); a("s_cbranch_scc1 w_pa1x_ok")
            a("s_mov_b32 s22, %d" % (F_X + 256))
            wpoll(a, "w_pa1x", 92, "s22", 32, 2)
        a("s_add_u32 s22, s24, 2"); a("s_mul_i32 s22, s22, 10240")
        wpoll(a, "w_pa2", 88, "s22", 80, 7)
        a.put("task_pa_go"); wstamp(a, 0); a("s_barrier"); a("s_branch pattn_kernel_entry")
        a.put("task_po")
        a("s_sub_u32 s24, s24, 1"); a("s_cmp_ge_u32 s24, 64"); a("s_cbranch_scc1 task_take")
        a("s_sub_u32 s25, s25, 8"); a("s_mul_i32 s2, s24, 5"); a("s_add_u32 s2, s2, s25")
        a("s_lshl_b32 s98, s24, 5"); a("s_lshl_b32 s22, s25, 2"); a("s_add_u32 s98, s98, s22"); a("s_add_u32 s98, s98, %d" % F_PO)
        a("s_cmp_lg_u32 s100, 0"); a("s_cbranch_scc1 task_po_go")
        a("s_lshl_b32 s22, s24, 5"); a("s_add_u32 s22, s22, %d" % F_PA)
        wpoll(a, "w_po", 92, "s22", 8, 2)
        a.put("task_po_go"); wstamp(a, 0); a("s_barrier"); a("s_branch pout_kernel_entry")
        a.put("task_ln2")
        a("s_sub_u32 s24, s24, 2"); a("s_cmp_ge_u32 s24, 64"); a("s_cbranch_scc1 task_take")
        a("s_mov_b32 s2, s24"); a("s_lshl_b32 s98, s24, 2"); a("s_add_u32 s98, s98, %d" % F_L2)
        a("s_cmp_lg_u32 s100, 0"); a("s_cbranch_scc1 task_ln2_go")
        a("s_lshl_b32 s22, s24, 5"); a("s_add_u32 s22, s22, %d" % F_PO)
        wpoll(a, "w_ln2", 92, "s22", 5, 2)
        a.put("task_ln2_go"); wstamp(a, 0); a("s_barrier"); a("s_branch ln2_kernel_entry")
        a.put("task_ffn")
        a("s_cmp_lt_u32 s24, 10"); a("s_cbranch_scc1 task_take")
        a("s_sub_u32 s24, s24, 10"); a("s_mul_i32 s24, s24, 6"); a("s_add_u32 s24, s24, s25"); a("s_sub_u32 s24, s24, 14")
        a("s_mul_i32 s25, s24, 1366"); a("s_lshr_b32 s25, s25, 16")
        a("s_mul_i32 s22, s25, 48"); a("s_sub_u32 s24, s24, s22")
        a("s_cmp_ge_u32 s24, 44"); a("s_cbranch_scc1 task_take")
        a("s_cmp_ge_u32 s24, 24"); a("s_cbranch_scc1 task_f2")
        a("s_lshl_b32 s2, s24, 3"); a("s_add_u32 s2, s2, s25")
        a("s_lshl_b32 s98, s25, 7"); a("s_lshl_b32 s22, s24, 2"); a("s_add_u32 s98, s98, s22"); a("s_add_u32 s98, s98, %d" % F_F1)
        a("s_cmp_lg_u32 s100, 0"); a("s_cbranch_scc1 task_f1_go")
        a("s_lshl_b32 s22, s25, 5"); a("s_add_u32 s22, s22, %d" % F_L2)
        wpoll(a, "w_f1", 92, "s22", 8, 2)
        a.put("task_f1_go"); wstamp(a, 0); a("s_barrier"); a("s_branch ffn1_kernel_entry")
        a.put("task_f2")
        a("s_sub_u32 s24, s24, 24"); a("s_lshl_b32 s2, s25, 1")
        a("s_cmp_lt_u32 s24, 10"); a("s_cbranch_scc1 task_f2a")
        a("s_sub_u32 s24, s24, 10"); a("s_add_u32 s2, s2, 1")
        a.put("task_f2a")
        a("s_lshl_b32 s22, s24, 4"); a("s_add_u32 s2, s2, s22")
        a("s_mov_b32 s98, %d" % (F_F1 + 2048))
        a("s_cmp_lg_u32 s100, 0"); a("s_cbranch_scc1 task_f2_go")
        a("s_lshl_b32 s22, s25, 7"); a("s_add_u32 s22, s22, %d" % F_F1)
        wpoll(a, "w_f2", 92, "s22", 24, 2)
        a.put("task_f2_go"); wstamp(a, 0); a("s_barrier"); a("s_branch ffn2_kernel_entry")
    a.put("mega_exit")
    if M.TS:
        a("s_cmp_ge_u32 s2, 100000"); a("s_cbranch_scc1 ts_c")
        a("s_mov_b32 s23, 44"); tstamp(a, "s23", atomic=True); a.put("ts_c")
    a("s_endpgm")
    a.put("mega_exit2"); a("s_endpgm")
    gen4.gen_chain(a)
    gen5.gen_t2(a); gen5.gen_t1(a)
    if HALF: gen5.gen_t2(a, 2); gen5.gen_t1(a, 2)
    if POST:
        gen3.gen_pattn(a); (gen3.gen_pout_f if FINE else gen3.gen_pout)(a); gen_ln_seg(a, "ln2_kernel", True, "ws", WS_X1, 2048 * 2560, WS_H2, 3, 4); gen_ln_seg(a, "ln1_kernel", False, "x", 0, 2048 * 1280, WS_H, 0, 1); gen_vo_ln(a); gen_ffn1(a, 1 if FINE else 4); gen_ffn2(a, 1 if FINE else 2)
    M.MEGA = False
    return K, 512, 256

def gen_ln_seg(a, name, src_f32, src_ka, src_add, src_size, dst_off, shift_i, scale_i):
    NR = 8
    a.put(name + "_entry")
    a("s_load_dwordx2 s[12:13], s[0:1], %d" % KA["ws"])
    a("s_load_dwordx2 s[6:7], s[0:1], %d" % KA[src_ka])
    a("v_and_b32 v1, 63, v0"); a("v_lshlrev_b32 v3, 2, v1"); a("v_lshlrev_b32 v5, 3, v1")
    a("s_waitcnt lgkmcnt(0)")
    srd_from_ptr(a, 32, 6, src_size, add=(hex(src_add) if src_add else None))
    srd_from_ptr(a, 36, 12, 0x2000000)
    a("s_lshl_b32 s24, s2, 5"); a("s_lshl_b32 s25, s100, 3"); a("s_add_u32 s24, s24, s25")
    X = 20; T = 160
    rs = 2560 if src_f32 else 1280
    a("s_mul_i32 s26, s24, %d" % rs)
    for r in range(NR):
        a("s_add_u32 s23, s26, %d" % (r * rs))
        for j in range(5):
            if src_f32: a("buffer_load_dwordx2 v[%d:%d], v5, s[32:35], s23 offen offset:%d" % (X + r * 10 + 2 * j, X + r * 10 + 2 * j + 1, j * 512))
            else: a("buffer_load_dword v%d, v3, s[32:35], s23 offen offset:%d" % (100 + r * 5 + j, j * 256))
    for j in range(5):
        a("s_mov_b32 s14, %d" % (WS_MOD + scale_i * 2560 + j * 512))
        a("buffer_load_dwordx2 v[%d:%d], v5, s[36:39], s14 offen" % (140 + 2 * j, 141 + 2 * j))
        a("s_mov_b32 s14, %d" % (WS_MOD + shift_i * 2560 + j * 512))
        a("buffer_load_dwordx2 v[%d:%d], v5, s[36:39], s14 offen" % (150 + 2 * j, 151 + 2 * j))
    a("v_lshrrev_b32 v6, 4, v1"); a("v_lshlrev_b32 v4, 10, v6"); a("v_bfe_u32 v6, v1, 2, 2"); a("v_lshl_add_u32 v4, v6, 8, v4"); a("v_and_b32 v6, 3, v1"); a("v_lshl_add_u32 v4, v6, 2, v4")
    a("s_lshr_b32 s27, s2, 1"); a("s_mul_i32 s27, s27, 81920"); a("s_and_b32 s28, s2, 1"); a("s_mul_i32 s28, s28, 40960"); a("s_add_u32 s27, s27, s28")
    a("s_lshl_b32 s28, s100, 6"); a("v_add_u32 v4, s28, v4"); a("s_add_u32 s27, s27, %d" % dst_off)
    a("s_waitcnt vmcnt(0)")
    S = [168 + r for r in range(NR)]; TM = [T + i for i in range(NR)]
    TM = [176 + i for i in range(NR + 1)]
    for r in range(NR):
        x = X + r * 10
        if not src_f32:
            for j in range(5):
                a("v_lshlrev_b32 v%d, 16, v%d" % (x + 2 * j, 100 + r * 5 + j)); a("v_and_b32 v%d, 0xffff0000, v%d" % (x + 2 * j + 1, 100 + r * 5 + j))
        a("v_add_f32 v%d, v%d, v%d" % (S[r], x, x + 1))
        for j in range(2, 10): a("v_add_f32 v%d, v%d, v%d" % (S[r], S[r], x + j))
    wave_sum(a, S, TM, 3, NR)
    for r in range(NR):
        x = X + r * 10
        a("v_mul_f32 v%d, 0x3acccccd, v%d" % (S[r], S[r]))
        for j in range(10): a("v_sub_f32 v%d, v%d, v%d" % (x + j, x + j, S[r]))
        a("v_mul_f32 v%d, v%d, v%d" % (S[r], x, x))
        for j in range(1, 10): a("v_fmac_f32 v%d, v%d, v%d" % (S[r], x + j, x + j))
    wave_sum(a, S, TM, 3, NR)
    for j in range(10): a("v_add_f32 v%d, 1.0, v%d" % (140 + j, 140 + j))
    for r in range(NR):
        x = X + r * 10
        a("v_mov_b32 v7, 0x3727c5ac"); a("v_fmac_f32 v7, 0x3acccccd, v%d" % S[r]); a("v_rsq_f32 v7, v7"); a("s_nop 0")
        for j in range(10):
            a("v_mul_f32 v%d, v%d, v7" % (x + j, x + j)); a("v_fma_f32 v%d, v%d, v%d, v%d" % (x + j, x + j, 140 + j, 150 + j))
        for j in range(5):
            a("v_cvt_pk_bf16_f32 v%d, v%d, v%d" % (x + j, x + 2 * j, x + 2 * j + 1))
            a("ds_write_b32 v4, v%d offset:%d" % (x + j, (r >> 2) * 20480 + (r & 3) * 16 + j * 4096))
    a("s_waitcnt lgkmcnt(0)"); a("s_barrier")
    a("v_lshlrev_b32 v5, 4, v0")
    for j in range(10): a("ds_read_b128 v[%d:%d], v5 offset:%d" % (20 + 4 * j, 23 + 4 * j, j * 4096))
    for j in range(10):
        a("s_waitcnt lgkmcnt(%d)" % (9 - j))
        a("s_add_u32 s14, s27, %d" % (j * 4096))
        a("buffer_store_dwordx4 v[%d:%d], v5, s[36:39], s14 offen%s" % (20 + 4 * j, 23 + 4 * j, ST()))
    a("s_branch task_done")
```

```python
import os
from gen import *

class Stream:
    BUF = 20
    def __init__(self, a, nmt, acc, nslot=4, slot_bytes=SLOT):
        self.a = a; self.nmt = nmt; self.acc = acc
        self.q = VMQ(a); self.slots = []; self.units = []
        self.nslot = nslot; self.sb = slot_bytes
        self.base = dict(nat=0, pi=0)
    def accr(self, mt, nt): return self.acc + (mt * 4 + nt) * 4
    def add_slot(self, srd, voff, soff, rs, nrows, mp):
        self.slots.append(dict(srd=srd, voff=voff, soff=soff, rs=rs, nrows=nrows, mp=mp)); return len(self.slots) - 1
    def add_unit(self, slots, afr, swap, epi):
        self.units.append(dict(slots=slots, afr=afr, swap=swap, epi=epi))
    def dma(self, i):
        if i >= len(self.slots): return
        a = self.a; sl = self.slots[i]
        base = (i % self.nslot) * self.sb
        for j in range(sl["nrows"] // 32):
            a("s_add_u32 m0, s21, %d" % (base + j * 4096))
            a("s_mov_b32 s23, %d" % (sl["soff"] + j * 32 * sl["rs"]))
            a("buffer_load_dwordx4 v%d, s[%d:%d], s23 offen lds" % (sl["voff"], sl["srd"], sl["srd"] + 3))
            self.q.op()
        self.q.mark(("dma", i))
    def reads(self, si, ks, buf):
        a = self.a; sl = self.slots[si]; mp = sl["mp"]
        want = (si % self.nslot) * self.sb
        if self.base[mp] != want:
            d = want - self.base[mp]
            regs = range(8, 16) if mp == "nat" else range(16, 20)
            for r in regs:
                if d > 0: a("v_add_u32 v%d, %d, v%d" % (r, d, r))
                else: a("v_subrev_u32 v%d, %d, v%d" % (r, -d, r))
            self.base[mp] = want
        for nt in range(4):
            d = self.BUF + buf * 16 + nt * 4
            for half in range(2):
                if mp == "nat":
                    a("ds_read_b64_tr_b16 v[%d:%d], v%d offset:%d" % (d + 2 * half, d + 2 * half + 1, 8 + half * 4 + nt, ks * 4096))
                else:
                    a("ds_read_b64_tr_b16 v[%d:%d], v%d offset:%d" % (d + 2 * half, d + 2 * half + 1, 16 + nt, ks * 4096 + half * 2048))
    def run(self):
        a = self.a
        seq = []
        for u in self.units:
            k = 0
            tot = sum(self.slots[s]["nrows"] // 32 for s in u["slots"])
            for s in u["slots"]:
                for ks in range(self.slots[s]["nrows"] // 32):
                    seq.append((s, ks, u, k, k == tot - 1)); k += 1
        import gen3
        st = (lambda k: gen3.stamp(a, k)) if getattr(self, "dbg", False) else (lambda k: None)
        if getattr(self, "dbg", False): gen3.dbg_init(a)
        for i in range(self.nslot): self.dma(i)
        if getattr(self, "pre", None):
            self.pre(); a("s_waitcnt vmcnt(0)"); a("s_barrier")
        else:
            self.q.wait(("dma", 0)); a("s_barrier")
        st(0)
        self.reads(seq[0][0], seq[0][1], 0)
        for n, (s, ks, u, k, last) in enumerate(seq):
            a("s_waitcnt lgkmcnt(0)")
            if n + 1 < len(seq):
                s2, ks2 = seq[n + 1][0], seq[n + 1][1]
                if s2 != s:
                    st(1)
                    self.q.wait(("dma", s2)); a("s_barrier")
                    st(2)
                    self.dma(s + self.nslot)
                self.reads(s2, ks2, (n + 1) & 1)
            for nt in range(4):
                b = "v[%d:%d]" % (self.BUF + (n & 1) * 16 + nt * 4, self.BUF + (n & 1) * 16 + nt * 4 + 3)
                for mt in range(self.nmt):
                    d = self.accr(mt, nt); dd = "v[%d:%d]" % (d, d + 3)
                    f = reg(u["afr"](k, mt))
                    c = "0" if k == 0 else dd
                    if u["swap"]: a("v_mfma_f32_16x16x32_bf16 %s, %s, %s, %s" % (dd, b, f, c))
                    else: a("v_mfma_f32_16x16x32_bf16 %s, %s, %s, %s" % (dd, f, b, c))
            if last:
                a("s_nop 7"); a("s_nop 1")
                st(1)
                u["epi"]()
                a("s_nop 1")
                st(3)
        if getattr(self, "dbg", False): gen3.dbg_out(a, 5, 0)

def common_setup(a, s_nat=True, s_pi=True):
    lane_setup(a)
    if s_nat: tr_addr_nat(a, 8, 5, 6, 7)
    if s_pi: tr_addr_pi(a, 16, 5, 6, 7)

def tokbase(a, vd, vt):
    a("v_lshrrev_b32 v%d, 2, v3" % vd)
    a("v_and_b32 v%d, 3, v3" % vt)
    a("v_lshl_add_u32 v%d, v%d, 3, v%d" % (vd, vd, vt))
def mtrow(mt): return (mt >> 1) * 32 + (mt & 1) * 4

def pack_pi(a, S, mt, q):
    x = S.accr(mt, 2 * q); y = S.accr(mt, 2 * q + 1)
    a("v_cvt_pk_bf16_f32 v%d, v%d, v%d" % (x, x, x + 1))
    a("v_cvt_pk_bf16_f32 v%d, v%d, v%d" % (x + 1, x + 2, x + 3))
    a("v_cvt_pk_bf16_f32 v%d, v%d, v%d" % (x + 2, y, y + 1))
    a("v_cvt_pk_bf16_f32 v%d, v%d, v%d" % (x + 3, y + 2, y + 3))
    return x

def u_epilogue(a, S, q, vU, srd, u, mstride, cstride16):
    def epi():
        for m in range(S.nmt // 2):
            for nt in range(4):
                x = S.accr(2 * m, nt); y = S.accr(2 * m + 1, nt)
                a("v_cvt_pk_bf16_f32 v%d, v%d, v%d" % (x, x, x + 1))
                a("v_cvt_pk_bf16_f32 v%d, v%d, v%d" % (x + 1, x + 2, x + 3))
                a("v_cvt_pk_bf16_f32 v%d, v%d, v%d" % (x + 2, y, y + 1))
                a("v_cvt_pk_bf16_f32 v%d, v%d, v%d" % (x + 3, y + 2, y + 3))
                a("s_mov_b32 s23, %d" % (m * mstride + (u * 4 + nt) * cstride16))
                a("buffer_store_dwordx4 v[%d:%d], v%d, s[%d:%d], s23 offen%s" % (x, x + 3, vU, srd, srd + 3, ST()))
                q.op()
    return epi

def gen_qku(a, part="all"):
    K = "qku_kernel" if part == "all" else "qku%s_kernel" % part
    kbegin(a, K, 256)
    a("s_load_dwordx4 s[4:7], s[0:1], %d" % KA["Wq"])
    a("s_load_dwordx4 s[8:11], s[0:1], %d" % KA["Wv"])
    a("s_load_dwordx2 s[12:13], s[0:1], %d" % KA["ws"])
    common_setup(a)
    a("s_and_b32 s24, s2, 7"); a("s_lshl_b32 s24, s24, 2"); a("s_bfe_u32 s25, s2, 0x20003"); a("s_add_u32 s24, s24, s25")
    a("s_lshr_b32 s25, s2, 5")
    a("s_waitcnt lgkmcnt(0)")
    a("s_mul_i32 s26, s24, 384")
    WSZ = 640 * 12288
    a("s_sub_u32 s27, %d, s26" % WSZ)
    srd_from_ptr(a, 32, 4, "s27", add="s26"); srd_from_ptr(a, 36, 6, "s27", add="s26"); srd_from_ptr(a, 40, 8, "s27", add="s26")
    a("s_mul_i32 s28, s24, 245760")
    srd_from_ptr(a, 44, 10, 245760, add="s28")
    a("s_lshl_b32 s29, s25, 2"); a("s_add_u32 s29, s29, s20")
    a("s_mul_i32 s30, s29, %d" % (64 * 1280)); a("s_add_u32 s30, s30, %d" % WS_H)
    srd_from_ptr(a, 48, 12, 64 * 1280, add="s30")
    a("s_mul_i32 s30, s29, %d" % (64 * 12288)); a("s_add_u32 s30, s30, s26")
    a("s_add_u32 s31, s30, %d" % WS_Q); srd_from_ptr(a, 52, 12, 64 * 12288, add="s31")
    a("s_add_u32 s31, s30, %d" % WS_K); srd_from_ptr(a, 56, 12, 64 * 12288, add="s31")
    a("s_lshl_b32 s30, s29, 6"); a("s_add_u32 s30, s30, s24"); a("s_mul_i32 s30, s30, 40960"); a("s_add_u32 s30, s30, %d" % WS_U)
    srd_from_ptr(a, 60, 12, 33 * 40960, add="s30")
    dma_voff(a, 5, 12288, 244, 245, 246)
    dma_voff(a, 6, 1280, 244, 245, 246)
    tokbase(a, 244, 245)
    a("v_lshlrev_b32 v245, 4, v2")
    a("v_mul_u32_u24 v247, 1280, v244"); a("v_add_u32 v247, v247, v245")
    a("v_mul_u32_u24 v248, 12288, v244"); a("v_add_u32 v248, v248, v245")
    a("v_lshl_add_u32 v249, v3, 6, v245")
    S = Stream(a, 4, 52)
    S.dbg = True
    def hfr(k, mt):
        idx = mt * 20 + k
        return ("a", idx * 4) if idx < 64 else ("v", 116 + (idx - 64) * 4)
    for mt in range(4):
        for k in range(20):
            a("s_mov_b32 s23, %d" % (mtrow(mt) * 1280 + k * 64))
            a("buffer_load_dwordx4 %s, v247, s[48:51], s23 offen" % reg(hfr(k, mt))); S.q.op()
    def vfr(k, mt):
        u = k // 2
        if u < 2: return ("v", 180 + ((u * 4 + mt) * 2 + (k & 1)) * 4)
        return ("v", 116 + (mt * 2 + (k & 1)) * 4)
    mats = dict(all=(("k", 36), ("q", 32), ("v", 40)), T1=(("k", 36), ("q", 32)), T2=(("v", 40),))[part]
    for mat, srd in mats:
        for u in range(3):
            sl = [S.add_slot(srd, 5, u * 128 + hh * 320 * 12288, 12288, 320, "nat") for hh in range(2)]
            if mat != "v":
                def epi(u=u, srdo=(52 if mat == "q" else 56), mat=mat):
                    for mt in range(4):
                        for q in range(2):
                            x = pack_pi(a, S, mt, q)
                            a("s_mov_b32 s23, %d" % (mtrow(mt) * 12288 + u * 128 + q * 64))
                            a("buffer_store_dwordx4 v[%d:%d], v248, s[%d:%d], s23 offen%s" % (x, x + 3, srdo, srdo + 3, ST())); S.q.op()
                    if M.MEGA and mat == "k" and u == 2: M.signal_mid(a)
            else:
                def epi(u=u):
                    for mt in range(4):
                        for q in range(2):
                            x = S.accr(mt, 2 * q); y = S.accr(mt, 2 * q + 1); d = vfr(u * 2 + q, mt)[1]
                            a("v_cvt_pk_bf16_f32 v%d, v%d, v%d" % (d, x, x + 1))
                            a("v_cvt_pk_bf16_f32 v%d, v%d, v%d" % (d + 1, x + 2, x + 3))
                            a("v_cvt_pk_bf16_f32 v%d, v%d, v%d" % (d + 2, y, y + 1))
                            a("v_cvt_pk_bf16_f32 v%d, v%d, v%d" % (d + 3, y + 2, y + 3))
            S.add_unit(sl, hfr, True, epi)
    for u in range(10 if part != "T1" else 0):
        sl = [S.add_slot(44, 6, u * 128, 1280, 192, "pi")]
        S.add_unit(sl, vfr, False, u_epilogue(a, S, S.q, 249, 60, u, 32 * 40960, 1024))
    S.run()
    kend(a, K)
    return K, 512, 256

def gen_vo_ln(a, pv=False):
    K = "voln_kernel" if not pv else "pv_kernel"
    if M.MEGA: a.put("vo_kernel_entry")
    else:
        kernel_begin(a, K)
        a("s_cmp_ge_u32 s2, %d" % (256 if pv else 640)); a("s_cbranch_scc1 voln_end")
        a("s_cmp_ge_u32 s2, 128"); a("s_cbranch_scc1 voln_ln")
    a("s_load_dwordx4 s[8:11], s[0:1], %d" % KA["Wv"])
    a("s_load_dwordx2 s[12:13], s[0:1], %d" % KA["ws"])
    common_setup(a)
    a("s_and_b32 s24, s2, 31"); a("s_bfe_u32 s25, s2, 0x10005"); a("s_lshr_b32 s26, s2, 6")
    a("s_waitcnt lgkmcnt(0)")
    a("s_lshl_b32 s27, s25, 2"); a("s_add_u32 s27, s27, s20"); a("s_mul_i32 s27, s27, 80"); a("s_min_u32 s27, s27, 544")
    a("s_mul_i32 s28, s27, 12288"); a("s_mul_i32 s29, s24, 384"); a("s_add_u32 s28, s28, s29")
    a("s_sub_u32 s29, %d, s28" % (640 * 12288))
    srd_from_ptr(a, 32, 8, "s29", add="s28")
    a("s_mul_i32 s28, s24, 245760"); a("s_mul_i32 s29, s26, 640"); a("s_add_u32 s28, s28, s29")
    a("s_sub_u32 s29, %d, s28" % (32 * 245760))
    srd_from_ptr(a, 44, 10, "s29", add="s28")
    a("s_mul_i32 s28, s26, %d" % (40 * 32 * 10240)); a("s_lshr_b32 s29, s24, 1"); a("s_mul_i32 s29, s29, 20480"); a("s_add_u32 s28, s28, s29")
    a("s_and_b32 s29, s24, 1"); a("s_lshl_b32 s29, s29, 7"); a("s_add_u32 s28, s28, s29")
    a("s_lshl_b32 s29, s27, 5"); a("s_add_u32 s28, s28, s29"); a("s_add_u32 s28, s28, %d" % WS_VO)
    srd_from_ptr(a, 60, 12, 40 * 32 * 10240, add="s28")
    dma_voff(a, 6, 1280, 244, 245, 246)
    tokbase(a, 244, 245)
    a("v_lshlrev_b32 v245, 4, v2")
    a("v_mul_u32_u24 v247, 12288, v244"); a("v_add_u32 v247, v247, v245")
    a("v_lshrrev_b32 v249, 3, v3"); a("v_mul_u32_u24 v249, 327680, v249")
    a("v_and_b32 v246, 7, v3"); a("v_lshlrev_b32 v246, 4, v246"); a("v_add_u32 v249, v249, v246"); a("v_lshl_add_u32 v249, v2, 8, v249")
    S = Stream(a, 6, 52)
    def hfr(k, mt): return ("a", (mt * 6 + k) * 4)
    for mt in range(6):
        for k in range(6):
            a("s_mov_b32 s23, %d" % (mtrow(mt) * 12288 + k * 64))
            a("buffer_load_dwordx4 %s, v247, s[32:35], s23 offen" % reg(hfr(k, mt))); S.q.op()
    for u in range(5):
        sl = [S.add_slot(44, 6, u * 128, 1280, 192, "nat")]
        S.add_unit(sl, hfr, False, u_epilogue(a, S, S.q, 249, 60, u, 1024, 2 * 327680))
    S.run()
    if M.MEGA:
        a("s_branch task_done"); return
    a("s_endpgm")
    a.put("voln_ln")
    if pv:
        a("s_sub_u32 s2, s2, 128")
        gen_prep(a, emb=True)
        a.put("voln_end"); a("s_endpgm")
        return K, 400, 256
    a("s_load_dwordx2 s[12:13], s[0:1], %d" % KA["ws"])
    a("s_load_dwordx2 s[6:7], s[0:1], %d" % KA["x"])
    a("s_waitcnt lgkmcnt(0)")
    srd_from_ptr(a, 32, 6, 2048 * 1280)
    srd_from_ptr(a, 36, 12, 0x2000000)
    a("s_sub_u32 s24, s2, 128")
    gen_ln_body(a, "ln1", False, 32, 36, WS_H, 0, 1, 24)
    a.put("voln_end"); a("s_endpgm")
    return K, 400, 256

def gen_ln2(a):
    K = "ln2_kernel"
    kernel_begin(a, K)
    a("s_cmp_ge_u32 s2, 512"); a("s_cbranch_scc1 ln2_end")
    a("s_load_dwordx2 s[12:13], s[0:1], %d" % KA["ws"])
    a("s_waitcnt lgkmcnt(0)")
    srd_from_ptr(a, 32, 12, 2048 * 2560, add=hex(WS_X1))
    srd_from_ptr(a, 36, 12, 0x2000000)
    a("s_mov_b32 s24, s2")
    gen_ln_body(a, "ln2", True, 32, 36, WS_H2, 3, 4, 24)
    a.put("ln2_end"); a("s_endpgm")
    return K, 64, 64

def gen_ffn1(a, nmt=4):
    K = "ffn1_kernel"
    kbegin(a, K, 192)
    a("s_load_dwordx4 s[4:7], s[0:1], %d" % KA["w1"])
    a("s_load_dwordx2 s[12:13], s[0:1], %d" % KA["ws"])
    common_setup(a, s_pi=False)
    if nmt == 4: a("s_and_b32 s24, s2, 7"); a("s_lshr_b32 s25, s2, 3")
    else: a("s_lshr_b32 s24, s2, 5"); a("s_and_b32 s25, s2, 31")
    a("s_waitcnt lgkmcnt(0)")
    a("s_lshl_b32 s26, s25, 7"); a("s_sub_u32 s27, %d, s26" % (640 * 3072))
    srd_from_ptr(a, 32, 4, "s27", add="s26")
    srd_from_ptr(a, 36, 6, 128, add="s26")
    a("s_lshl_b32 s29, s24, 2"); a("s_add_u32 s29, s29, s20")
    FLN = M.MEGA and nmt == 1 and os.environ.get('FLN', '0') == '1'
    if FLN:
        a("s_lshr_b32 s28, s29, 1"); a("s_lshl_b32 s28, s28, 5"); a("s_and_b32 s30, s29, 1"); a("s_lshl_b32 s30, s30, 2"); a("s_add_u32 s28, s28, s30")
        a("s_mul_i32 s30, s28, 2560"); a("s_add_u32 s30, s30, %d" % WS_X1)
        srd_from_ptr(a, 48, 12, 28 * 2560, add="s30")
        srd_from_ptr(a, 56, 12, 5120, add=hex(WS_MOD + 3 * 2560))
    else:
        a("s_mul_i32 s30, s29, %d" % (16 * nmt * 1280)); a("s_add_u32 s30, s30, %d" % WS_H2)
        srd_from_ptr(a, 48, 12, 16 * nmt * 1280, add="s30")
    a("s_mul_i32 s30, s29, %d" % (16 * nmt * 3072)); a("s_lshl_b32 s31, s25, 11"); a("s_add_u32 s30, s30, s31"); a("s_add_u32 s30, s30, %d" % WS_F)
    srd_from_ptr(a, 52, 12, (nmt - 1) * 48 * 1024 + 2048, add="s30")
    a("v_lshlrev_b32 v250, 4, v1")
    dma_voff(a, 5, 3072, 244, 245, 246)
    tokbase(a, 244, 245)
    a("v_lshlrev_b32 v245, 4, v2")
    a("v_mul_u32_u24 v247, 1280, v244"); a("v_add_u32 v247, v247, v245")
    a("v_mul_u32_u24 v248, 3072, v244"); a("v_add_u32 v248, v248, v245")
    S = Stream(a, nmt, 52)
    a("v_lshlrev_b32 v246, 3, v2")
    for nt in range(4):
        a("buffer_load_dwordx2 v[%d:%d], v246, s[36:39], 0 offen offset:%d" % (180 + 2 * nt, 181 + 2 * nt, nt * 32)); S.q.op()
    def hfr(k, mt):
        if FLN: return ("v", 100 + 4 * k)
        idx = mt * 20 + k
        return ("a", idx * 4) if idx < 64 else ("v", 116 + (idx - 64) * 4)
    def loadA_ln():
        MB = 81920
        a("v_lshlrev_b32 v206, 4, v0"); a("v_and_b32 v207, 63, v0"); a("v_lshlrev_b32 v207, 4, v207"); a("v_add_u32 v207, 4096, v207")
        a("buffer_load_dwordx4 v[208:211], v206, s[56:59], 0 offen"); a("buffer_load_dwordx4 v[212:215], v207, s[56:59], 0 offen")
        a("v_mov_b32 v216, 0"); a("v_cmp_le_u32 vcc, 2560, v206"); a("s_nop 1"); a("v_cndmask_b32 v216, v216, 1.0, vcc")
        a("v_mul_u32_u24 v203, 2560, v244"); a("v_lshl_add_u32 v203, v2, 5, v203")
        a("v_lshlrev_b32 v204, 5, v2"); a("v_add_u32 v204, %d, v204" % MB)
        a("v_add_u32 v206, %d, v206" % MB); a("v_add_u32 v207, %d, v207" % MB)
        a("s_waitcnt vmcnt(0)")
        for r in range(4): a("v_add_f32 v%d, v%d, v216" % (208 + r, 208 + r)); a("v_add_f32 v%d, 1.0, v%d" % (212 + r, 212 + r))
        a("ds_write_b128 v206, v[208:211]"); a("ds_write_b128 v207, v[212:215]")
        a("s_waitcnt lgkmcnt(0)")
        M.tpoll40(a, "tf1", 92, 200)
        for k in range(20):
            for hb in range(2):
                a("buffer_load_dwordx4 v[%d:%d], v203, s[48:51], 0 offen offset:%d" % (20 + 8 * k + 4 * hb, 23 + 8 * k + 4 * hb, k * 128 + hb * 16))
        S0, Q0 = 206, 210
        for k in range(20):
            if k % 5 == 0: a("s_waitcnt vmcnt(%d)" % (30 - 2 * k))
            for p in range(4):
                x = "v[%d:%d]" % (20 + 8 * k + 2 * p, 21 + 8 * k + 2 * p)
                sa = "v[%d:%d]" % (S0 + 2 * (p & 1), S0 + 1 + 2 * (p & 1)); qa = "v[%d:%d]" % (Q0 + 2 * (p & 1), Q0 + 1 + 2 * (p & 1))
                if k == 0 and p < 2: a("v_pk_add_f32 %s, %s, 0" % (sa, x)); a("v_pk_mul_f32 %s, %s, %s" % (qa, x, x))
                else: a("v_pk_add_f32 %s, %s, %s" % (sa, sa, x)); a("v_pk_fma_f32 %s, %s, %s, %s" % (qa, x, x, qa))
        MD = 220
        def rdm(k):
            b = 214 if (k & 1) else 230
            return b
        a("v_pk_add_f32 v[206:207], v[206:207], v[208:209]"); a("v_pk_add_f32 v[210:211], v[210:211], v[212:213]")
        a("v_add_f32 v206, v206, v207"); a("v_add_f32 v210, v210, v211")
        for sw in ("v_permlane16_swap_b32", "v_permlane32_swap_b32"):
            a("v_mov_b32 v207, v206"); a("v_mov_b32 v211, v210"); a("s_nop 1")
            a("%s v206, v207" % sw); a("%s v210, v211" % sw); a("s_nop 1")
            a("v_add_f32 v206, v206, v207"); a("v_add_f32 v210, v210, v211")
        a("v_mul_f32 v206, 0x3acccccd, v206"); a("v_mul_f32 v210, 0x3acccccd, v210")
        a("v_fma_f32 v210, -v206, v206, v210"); a("v_max_f32 v210, 0, v210"); a("v_add_f32 v210, 0x3727c5ac, v210")
        a("v_rsq_f32 v208, v210"); a("s_nop 0")
        a("v_mul_f32 v210, v206, v208"); a("v_sub_f32 v210, 0, v210"); a("v_mov_b32 v209, v208"); a("v_mov_b32 v211, v210")
        sets = [188, 220]
        def mreg(k, which, hb):
            n = which * 2 + hb
            if k & 1: return 220 + 4 * n
            return (188, 192, 236, 240)[n]
        def rd(k):
            for which in range(2):
                for hb in range(2):
                    r = mreg(k, which, hb)
                    a("ds_read_b128 v[%d:%d], v204 offset:%d" % (r, r + 3, which * 2560 + k * 128 + hb * 16))
        rd(19)
        for k in range(19, -1, -1):
            if k > 0: rd(k - 1)
            for p in range(4):
                x = "v[%d:%d]" % (20 + 8 * k + 2 * p, 21 + 8 * k + 2 * p)
                a("v_pk_fma_f32 %s, %s, v[208:209], v[210:211]" % (x, x))
            a("s_waitcnt lgkmcnt(%d)" % (4 if k > 0 else 0))
            for p in range(4):
                x = "v[%d:%d]" % (20 + 8 * k + 2 * p, 21 + 8 * k + 2 * p)
                sb = mreg(k, 0, p >> 1) + 2 * (p & 1); cb = mreg(k, 1, p >> 1) + 2 * (p & 1)
                a("v_pk_fma_f32 v[%d:%d], %s, v[%d:%d], v[%d:%d]" % (212 + 2 * p, 213 + 2 * p, x, cb, cb + 1, sb, sb + 1))
            for p in range(4): a("v_cvt_pk_bf16_f32 v%d, v%d, v%d" % (100 + 4 * k + p, 212 + 2 * p, 213 + 2 * p))
    def loadA():
        if FLN: return loadA_ln()
        if M.tpoll: M.tpoll(a, "tf1", 92, 2, 2, 200)
        for mt in range(nmt):
            for k in range(20):
                a("s_mov_b32 s23, %d" % ((mt * 20 + k) * 1024))
                a("buffer_load_dwordx4 %s, v250, s[48:51], s23 offen" % reg(hfr(k, mt))); S.q.op()
    if M.tpoll: S.pre = loadA
    else: loadA()
    sl = [S.add_slot(32, 5, hh * 320 * 3072, 3072, 320, "nat") for hh in range(2)]
    def epi():
        for nt in range(4):
            for j in range(2):
                a("v_lshlrev_b32 v%d, 16, v%d" % (190 + nt * 4 + 2 * j, 180 + 2 * nt + j))
                a("v_and_b32 v%d, 0xffff0000, v%d" % (190 + nt * 4 + 2 * j + 1, 180 + 2 * nt + j))
        for mt in range(nmt):
            for nt in range(4):
                x = S.accr(mt, nt)
                for r in range(4):
                    a("v_add_f32 v%d, v%d, v%d" % (x + r, x + r, 190 + nt * 4 + r))
                    a("v_cvt_pk_bf16_f32 v%d, v%d, v%d" % (x + r, x + r, x + r))
                    a("v_lshlrev_b32 v%d, 16, v%d" % (x + r, x + r))
                    a("v_max_f32 v%d, 0, v%d" % (x + r, x + r))
                    a("v_mul_f32 v%d, v%d, v%d" % (x + r, x + r, x + r))
            for q in range(2):
                x = pack_pi(a, S, mt, q)
                a("s_mov_b32 s23, %d" % ((mt * 48 + q) * 1024))
                a("buffer_store_dwordx4 v[%d:%d], v250, s[52:55], s23 offen%s" % (x, x + 3, ST())); S.q.op()
    S.add_unit(sl, hfr, True, epi)
    S.run()
    kend(a, K)
    return K, 512, 256

def gen_ffn2(a, nmt=2):
    K = "ffn2_kernel"
    kbegin(a, K, 160)
    a("s_load_dwordx4 s[4:7], s[0:1], %d" % KA["w2"])
    a("s_load_dwordx4 s[8:11], s[0:1], %d" % KA["out"])
    a("s_load_dwordx2 s[12:13], s[0:1], %d" % KA["ws"])
    common_setup(a, s_nat=False)
    if nmt == 2: a("s_and_b32 s24, s2, 15"); a("s_lshr_b32 s25, s2, 4")
    else: a("s_lshr_b32 s24, s2, 4"); a("s_and_b32 s25, s2, 15")
    a("s_waitcnt lgkmcnt(0)")
    a("s_lshl_b32 s26, s25, 7"); a("s_sub_u32 s27, %d, s26" % (1536 * 1280))
    srd_from_ptr(a, 32, 4, "s27", add="s26")
    srd_from_ptr(a, 36, 6, 128, add="s26")
    a("s_lshl_b32 s29, s24, 2"); a("s_add_u32 s29, s29, s20")
    a("s_mul_i32 s30, s29, %d" % (16 * nmt * 3072)); a("s_add_u32 s30, s30, %d" % WS_F)
    srd_from_ptr(a, 48, 12, 16 * nmt * 3072, add="s30")
    if nmt == 2: a("s_lshl_b32 s28, s29, 5"); NR = 32
    else:
        a("s_lshr_b32 s28, s29, 1"); a("s_lshl_b32 s28, s28, 5"); a("s_and_b32 s30, s29, 1"); a("s_lshl_b32 s30, s30, 2"); a("s_add_u32 s28, s28, s30"); NR = 28
    a("s_mul_i32 s30, s28, 2560"); a("s_lshl_b32 s31, s26, 1"); a("s_add_u32 s30, s30, s31"); a("s_add_u32 s30, s30, %d" % WS_X1)
    srd_from_ptr(a, 52, 12, NR * 2560, add="s30")
    a("s_mul_i32 s30, s28, 1280"); a("s_add_u32 s30, s30, s26")
    srd_from_ptr(a, 56, 8, NR * 1280, add="s30")
    a("s_add_u32 s30, s31, %d" % (WS_MOD + 5 * 2560))
    srd_from_ptr(a, 60, 12, 256, add="s30")
    dma_voff(a, 6, 1280, 244, 245, 246)
    tokbase(a, 244, 245)
    a("v_lshlrev_b32 v245, 4, v2")
    a("v_mul_u32_u24 v247, 3072, v244"); a("v_add_u32 v247, v247, v245")
    a("v_mul_u32_u24 v248, 2560, v244"); a("v_add_u32 v248, v248, v245")
    a("v_lshlrev_b32 v246, 3, v2")
    a("v_mul_u32_u24 v249, 1280, v244"); a("v_add_u32 v249, v249, v246")
    a("v_lshlrev_b32 v250, 4, v1")
    S = Stream(a, nmt, 52)
    for nt in range(4):
        a("buffer_load_dwordx2 v[%d:%d], v246, s[36:39], 0 offen offset:%d" % (84 + 2 * nt, 85 + 2 * nt, nt * 32)); S.q.op()
        a("buffer_load_dwordx4 v[%d:%d], v245, s[60:63], 0 offen offset:%d" % (92 + 4 * nt, 95 + 4 * nt, nt * 64)); S.q.op()
    def hfr(k, mt):
        idx = mt * 48 + k
        return ("a", idx * 4) if idx < 64 else ("v", 116 + (idx - 64) * 4)
    def loadA():
        if M.tpoll: M.tpoll(a, "tf2", 92, 24, 2, 200)
        for mt in range(nmt):
            for k in range(48):
                a("s_mov_b32 s23, %d" % ((mt * 48 + k) * 1024))
                a("buffer_load_dwordx4 %s, v250, s[48:51], s23 offen" % reg(hfr(k, mt))); S.q.op()
    if M.tpoll: S.pre = loadA
    else: loadA()
    sl = [S.add_slot(32, 6, hh * 256 * 1280, 1280, 256, "pi") for hh in range(6)]
    def epi():
        for mt in range(nmt):
            for nt in range(4):
                a("s_mov_b32 s23, %d" % (mtrow(mt) * 2560 + nt * 64))
                a("buffer_load_dwordx4 v[%d:%d], v248, s[52:55], s23 offen" % (116 + (mt * 4 + nt) * 4, 119 + (mt * 4 + nt) * 4)); S.q.op()
        for nt in range(4):
            for j in range(2):
                a("v_lshlrev_b32 v%d, 16, v%d" % (150 + nt * 4 + 2 * j, 84 + 2 * nt + j))
                a("v_and_b32 v%d, 0xffff0000, v%d" % (150 + nt * 4 + 2 * j + 1, 84 + 2 * nt + j))
        a("s_waitcnt vmcnt(0)")
        for mt in range(nmt):
            for nt in range(4):
                x = S.accr(mt, nt)
                for r in range(4):
                    a("v_add_f32 v%d, v%d, v%d" % (x + r, x + r, 150 + nt * 4 + r))
                    a("v_fma_f32 v%d, v%d, v%d, v%d" % (x + r, x + r, 92 + nt * 4 + r, 116 + (mt * 4 + nt) * 4 + r))
                a("v_cvt_pk_bf16_f32 v%d, v%d, v%d" % (x, x, x + 1))
                a("v_cvt_pk_bf16_f32 v%d, v%d, v%d" % (x + 1, x + 2, x + 3))
                a("s_mov_b32 s23, %d" % (mtrow(mt) * 1280 + nt * 32))
                a("buffer_store_dwordx2 v[%d:%d], v249, s[56:59], s23 offen" % (x, x + 1))
    S.add_unit(sl, hfr, True, epi)
    S.run()
    kend(a, K)
    return K, 512, 256
```
